```python
import torch

def _softmax(x, axis=-1):
    return torch.softmax(x, dim=axis)

def _gelu(x):
    return torch.nn.functional.gelu(x, approximate='tanh')

def _silu(x):
    return torch.nn.functional.silu(x)

def _sigmoid(x):
    return torch.sigmoid(x)

def _layernorm(x, axis=-1, eps=1e-05):
    m = x.mean(dim=axis, keepdim=True)
    v = x.var(dim=axis, keepdim=True, unbiased=False)
    return (x - m) / torch.sqrt(v + eps)

def _scatter_add(tgt, idx, src, axis=0):
    return tgt.clone().index_add_(axis, idx, src)

def _segment_sum(src, seg, n):
    out = torch.zeros((n,) + src.shape[1:], dtype=src.dtype)
    return out.index_add_(0, seg, src)

def _pad(x, pw):
    flat = tuple((v for pair in reversed(pw) for v in pair))
    return torch.nn.functional.pad(x, flat)
kernel_name = 'gated_mix__linear_kernel_hedgehog__mixer_gmlp__prompt'

def setup_inputs():

    _w = lambda a: (lambda t: t.to(torch.bfloat16) if t.is_floating_point() else t)(torch.as_tensor(a))

    def _A_setup():
        B, S, D, H = (1, 2048, 1024, 32)
        Dh = D // H
        return {'x': _w((lambda *s: torch.randn(*s, dtype=torch.bfloat16) * 0.05)(B, S, D)), 'wqkv': _w((lambda *s: torch.randn(*s, dtype=torch.bfloat16) * 1.6)(D, 3 * D)), 'w_phi': _w((lambda *s: torch.randn(*s, dtype=torch.bfloat16) * 1.6)(H, Dh, Dh) * Dh ** (-0.5)), 'wo': _w((lambda *s: torch.randn(*s, dtype=torch.bfloat16) * 0.1)(D, D))}
    _A_in = _A_setup()

    def _B_setup():
        B, S, D, F = (1, 2048, 1024, 3584)
        Fh = F // 2
        return {'x': _w((lambda *s: torch.randn(*s, dtype=torch.bfloat16) * 0.05)(B, S, D)), 'w_in': _w((lambda *s: torch.randn(*s, dtype=torch.bfloat16) * 0.4)(D, 2 * Fh)), 'w_sp': _w(0.01 * (lambda *s: torch.randn(*s, dtype=torch.bfloat16) * 0.4)(S, S)), 'b_sp': _w(1.0 + 0.01 * (lambda *s: torch.randn(*s, dtype=torch.bfloat16) * 0.05)(S)), 'w_out': _w((lambda *s: torch.randn(*s, dtype=torch.bfloat16) * 0.05)(Fh, D))}
    _B_in = _B_setup()
    return {'A_x': _A_in['x'], 'A_wqkv': _A_in['wqkv'], 'A_w_phi': _A_in['w_phi'], 'A_wo': _A_in['wo'], 'B_x': _B_in['x'], 'B_w_in': _B_in['w_in'], 'B_w_sp': _B_in['w_sp'], 'B_b_sp': _B_in['b_sp'], 'B_w_out': _B_in['w_out'], 'gate_w': _w((lambda *s: torch.randn(*s, dtype=torch.bfloat16) * 0.05)(1024) * 16.0)}

def reference(A_x, A_wqkv, A_w_phi, A_wo, B_x, B_w_in, B_w_sp, B_b_sp, B_w_out, gate_w):

    def _A_ref(x, wqkv, w_phi, wo):
        B, S, D = x.shape
        H = 32
        Dh = D // H
        qkv = (lambda x, *d: x.permute(*d))((x @ wqkv).reshape(B, S, 3, H, Dh), 2, 0, 3, 1, 4)
        q, k, v = (qkv[0], qkv[1], qkv[2])
        pq = torch.einsum('bhsd,hdf->bhsf', q, w_phi)
        pk = torch.einsum('bhsd,hdf->bhsf', k, w_phi)
        phi_q = torch.concatenate([_softmax(pq, axis=-1), _softmax(-pq, axis=-1)], axis=-1)
        phi_k = torch.concatenate([_softmax(pk, axis=-1), _softmax(-pk, axis=-1)], axis=-1)
        kv = torch.einsum('bhsf,bhsd->bhfd', phi_k, v)
        z = torch.einsum('bhsf->bhf', phi_k)
        num = torch.einsum('bhqf,bhfd->bhqd', phi_q, kv)
        den = torch.einsum('bhqf,bhf->bhq', phi_q, z)[..., None] + 1e-06
        o = num / den
        return (lambda x, *d: x.permute(*d))(o, 0, 2, 1, 3).reshape(B, S, D) @ wo

    def _B_ref(x, w_in, w_sp, b_sp, w_out):
        B, S, D = x.shape
        F = w_in.shape[-1]
        Fh = F // 2
        z = _gelu(torch.einsum('bsd,df->bsf', x, w_in))
        z1 = z[..., :Fh].clone()
        z2 = _layernorm(z[..., Fh:], axis=-1)
        g = torch.einsum('ts,bsf->btf', w_sp, z2) + b_sp[None, :, None]
        return torch.einsum('bsf,fd->bsd', z1 * g, w_out)
    x = A_x
    g = _sigmoid((x * gate_w).sum(-1, keepdims=True))
    a = _A_ref(x, A_wqkv, A_w_phi, A_wo)
    b = _B_ref(x, B_w_in, B_w_sp, B_b_sp, B_w_out)
    return g * a + (1 - g) * b
```

```python
import re

class Ins:
    __slots__ = ("text", "op", "args", "kind", "dst", "src", "sdst", "ssrc", "flags", "raw")
    def __init__(self, text):
        self.text = text

REG_RE = re.compile(r"^(-?)(?:abs\()?\|?([vas])(?:(\d+)|\[(\d+):(\d+)\])\|?\)?$")

def regs_of(tok):
    t = tok.strip()
    if t in ("vcc", "vcc_lo", "vcc_hi"): return ("s", ["vcc"])
    if t in ("exec", "exec_lo", "exec_hi"): return ("s", ["exec"])
    if t == "m0": return ("s", ["m0"])
    m = REG_RE.match(t)
    if not m: return None
    c = m.group(2)
    if m.group(3) is not None: r = [int(m.group(3))]
    else: r = list(range(int(m.group(4)), int(m.group(5)) + 1))
    return (c, r)

TRANS = ("v_exp_f32", "v_log_f32", "v_rcp_f32", "v_rsq_f32", "v_sqrt_f32", "v_sin_f32", "v_cos_f32", "v_rcp_iflag_f32")

def split_args(s):
    out = []; depth = 0; cur = ""
    for ch in s:
        if ch == "[": depth += 1
        if ch == "]": depth -= 1
        if ch == "," and depth == 0:
            out.append(cur.strip()); cur = ""
        else: cur += ch
    if cur.strip(): out.append(cur.strip())
    return out

def parse(text):
    i = Ins(text)
    t = text.split(";")[0].strip()
    i.raw = t
    if not t or t.endswith(":") or t.startswith("."):
        i.op = None; i.kind = "label" if t.endswith(":") else "none"; i.dst = set(); i.src = set(); return i
    sp = t.split(None, 1)
    op = sp[0]; rest = sp[1] if len(sp) > 1 else ""
    i.op = op
    args = split_args(rest)
    mods = []
    clean = []
    for a in args:
        parts = a.split()
        clean.append(parts[0]); mods += parts[1:]
    i.args = clean; i.flags = mods
    def R(tok):
        r = regs_of(tok)
        if r is None: return set()
        return {(r[0], x) for x in r[1]}
    dst = set(); src = set()
    if op.startswith("v_mfma") or op.startswith("v_smfmac"):
        i.kind = "mfma"; dst = R(clean[0]); src = R(clean[1]) | R(clean[2]) | R(clean[3])
    elif op.startswith("v_cmp"):
        i.kind = "valu"; dst = R(clean[0]); src = set().union(*[R(a) for a in clean[1:]])
        if op.startswith("v_cmpx"): dst |= {("s", "exec")}
    elif op.startswith("v_permlane") and "swap" in op:
        i.kind = "valu"; dst = R(clean[0]) | R(clean[1]); src = set(dst)
    elif op.startswith("v_readfirstlane") or op.startswith("v_readlane"):
        i.kind = "valu"; dst = R(clean[0]); src = set().union(*[R(a) for a in clean[1:]])
    elif op.startswith("v_writelane"):
        i.kind = "valu"; dst = R(clean[0]); src = set().union(*[R(a) for a in clean])
    elif op.startswith("v_"):
        i.kind = "valu"; dst = R(clean[0]); k = 1
        if "_co_" in op or op.startswith("v_div_scale") or op.startswith("v_mad_u64_u32"):
            dst |= R(clean[1]); k = 2
        src = set().union(*[R(a) for a in clean[k:]]) if len(clean) > k else set()
        if op.startswith("v_fmac") or op.startswith("v_pk_fmac") or op.startswith("v_dot2c") or op.startswith("v_mac"):
            src |= R(clean[0])
        if op.startswith("v_cndmask") and len(clean) == 3: src |= {("s", "vcc")}
        if any(m.startswith("row_") or m.startswith("quad_perm") or m.startswith("wave_") or m.startswith("bank_mask") for m in mods):
            src |= R(clean[0])
    elif op.startswith("ds_"):
        i.kind = "ds"
        if op.startswith("ds_read") or op.startswith("ds_bpermute") or op.startswith("ds_permute") or op.startswith("ds_swizzle") or "_rtn" in op:
            dst = R(clean[0]); src = set().union(*[R(a) for a in clean[1:]])
        else:
            src = set().union(*[R(a) for a in clean])
    elif op.startswith("buffer_") or op.startswith("global_"):
        i.kind = "vmem"
        lds = "lds" in mods
        if op in ("buffer_wbl2", "buffer_inv"):
            pass
        elif lds:
            src = set().union(*[R(a) for a in clean]) | {("s", "m0")}
        elif "load" in op:
            dst = R(clean[0]); src = set().union(*[R(a) for a in clean[1:]])
        elif "atomic" in op:
            src = set().union(*[R(a) for a in clean])
            if "sc0" in mods:
                dst = R(clean[0]) if op.startswith("global_") else R(clean[0])
        else:
            src = set().union(*[R(a) for a in clean])
    elif op.startswith("s_"):
        i.kind = "salu"
        if op in ("s_nop", "s_waitcnt", "s_barrier", "s_endpgm", "s_branch", "s_setprio", "s_sleep") or op.startswith("s_cbranch"):
            pass
        elif op.startswith("s_cmp") or op.startswith("s_bitcmp"):
            src = set().union(*[R(a) for a in clean])
        elif op.startswith("s_load") or op.startswith("s_memtime") or op.startswith("s_memrealtime") or op.startswith("s_buffer_load"):
            i.kind = "smem"; dst = R(clean[0]); src = set().union(*[R(a) for a in clean[1:]]) if len(clean) > 1 else set()
        else:
            dst = R(clean[0]); src = set().union(*[R(a) for a in clean[1:]]) if len(clean) > 1 else set()
            if "saveexec" in op: dst |= {("s", "exec")}; src |= {("s", "exec")}
    else:
        raise ValueError("cannot parse: " + text)
    i.dst = dst; i.src = src
    return i

def mfma_passes(op):
    if "32x32x16" in op or "32x32x8" in op: return 8
    if "16x16x32" in op or "16x16x16" in op: return 4
    raise ValueError(op)

def is_dpp(i):
    return any(m.startswith("row_") or m.startswith("quad_perm") or m.startswith("wave_") for m in i.flags)

def vreg(s): return {x for x in s if x[0] in ("v", "a")}
def sreg(s): return {x for x in s if x[0] == "s"}

def required(prev, cur):
    need = 0
    if prev.op is None or cur.op is None: return 0
    pk, ck = prev.kind, cur.kind
    pw = vreg(prev.dst)
    if pk == "valu":
        if ck == "mfma" and pw & cur.src: need = max(need, 2)
        if ck == "valu":
            if prev.op in TRANS and pw & cur.src: need = max(need, 1)
            if (is_dpp(cur) or cur.op.startswith("v_permlane")) and pw & (cur.src): need = max(need, 2)
            if (cur.op.startswith("v_readfirstlane") or cur.op.startswith("v_readlane")) and pw & cur.src: need = max(need, 1)
            if any(m.startswith("op_sel") for m in prev.flags) and not prev.op.startswith("v_pk") and pw & (cur.src | cur.dst): need = max(need, 1)
        ps = sreg(prev.dst)
        if ps:
            if ck == "valu" and ps & cur.src:
                need = max(need, 4 if (cur.op.startswith("v_readlane") or cur.op.startswith("v_writelane")) else 2)
            if ck == "vmem" and ps & cur.src: need = max(need, 5)
            if ck in ("salu", "smem") and ps & cur.src: need = max(need, 1)
            if ("s", "exec") in ps:
                if ck == "mfma": need = max(need, 4)
                if ck == "valu" and is_dpp(cur): need = max(need, 5)
                if ck == "valu" and (cur.op.startswith("v_readlane") or cur.op.startswith("v_readfirstlane") or cur.op.startswith("v_permlane") or cur.op.startswith("v_writelane")): need = max(need, 4)
    if pk == "mfma":
        p = mfma_passes(prev.op)
        D = prev.dst
        big = {4: 8, 8: 12}[p]; ovl = {4: 6, 8: 10}[p]; war = {4: 3, 8: 7}[p]
        if ck == "mfma":
            a = set();
            r = regs_of(cur.args[1]); a |= {(r[0], x) for x in r[1]} if r else set()
            r = regs_of(cur.args[2]); a |= {(r[0], x) for x in r[1]} if r else set()
            r = regs_of(cur.args[3]); c = {(r[0], x) for x in r[1]} if r else set()
            if D & a: need = max(need, big)
            if D & c:
                if not (c == D and mfma_passes(cur.op) == p): need = max(need, ovl)
            if D & cur.dst and not (D & c): need = max(need, big)
        elif ck in ("valu", "vmem", "ds"):
            if D & (cur.src | cur.dst): need = max(need, big)
            r = regs_of(prev.args[3]); c = {(r[0], x) for x in r[1]} if r else set()
            if ck == "valu" and c & cur.dst: need = max(need, war)
    if pk == "salu" and ("s", "m0") in prev.dst:
        if (ck == "vmem" and "lds" in cur.flags) or (cur.op.startswith("v_writelane") and ("s","m0") in cur.src) or "addtid" in cur.op: need = max(need, 1)
    if pk == "vmem" and ("store" in prev.op) and ("x4" in prev.op or "x3" in prev.op):
        data = regs_of(prev.args[0] if prev.op.startswith("buffer_") else prev.args[1])
        d = {(data[0], x) for x in data[1]}
        if ck == "valu" and d & cur.dst: need = max(need, 2)
        elif d & cur.dst and ck in ("mfma", "ds", "vmem"): need = max(need, 1)
    return need

def states(i):
    if i.op is None: return 0
    if i.op == "s_nop": return int(i.args[0], 0) + 1
    return 1

WINDOW = 14
def fix_hazards(lines, loops=True):
    ins = [parse(l) for l in lines]
    out = []
    n_ins = 0
    for cur in ins:
        if cur.op is not None:
            need_total = 0
            dist = 0
            for prev in reversed(out):
                if prev.op is None: continue
                if dist >= WINDOW: break
                r = required(prev, cur)
                if r > dist: need_total = max(need_total, r - dist)
                dist += states(prev)
            if need_total > 0:
                n_ins += 1
                k = need_total
                while k > 0:
                    m = min(k, 16); out.append(parse(f"    s_nop {m-1}")); k -= m
        out.append(cur)
    labels = {o.raw[:-1]: k for k, o in enumerate(out) if o.kind == "label"}
    for k, o in enumerate(out):
        if o.op and (o.op.startswith("s_cbranch") or o.op == "s_branch"):
            tgt = o.args[0]
            if tgt not in labels: continue
            tail = [x for x in out[max(0, k - 40):k + 1] if x.op]
            head = [x for x in out[labels[tgt]:labels[tgt] + 40] if x.op]
            dist_head = 0
            for h in head:
                if dist_head >= WINDOW: break
                dist = dist_head
                for prev in reversed(tail):
                    if dist >= WINDOW: break
                    r = required(prev, h)
                    if r > dist:
                        raise RuntimeError(f"hazard across branch {o.raw}: {prev.raw} -> {h.raw} needs {r} has {dist}")
                    dist += states(prev)
                dist_head += states(h)
                if h.op in ("s_branch", "s_endpgm"): break
    return [o.text for o in out], n_ins

class Asm:
    def __init__(self):
        self.lines = []
    def __call__(self, s):
        for l in s.split("\n"):
            l = l.strip()
            if not l: continue
            if l.endswith(":") or l.startswith("."): self.lines.append(l)
            elif l.startswith(";"): self.lines.append("    " + l)
            else: self.lines.append("    " + l)
    def label(self, n): self.lines.append(n + ":")
    def text(self, fix=True):
        if fix:
            t, n = fix_hazards(self.lines)
            return "\n".join(t) + "\n"
        return "\n".join(self.lines) + "\n"

def vr(a, n=1):
    return f"v{a}" if n == 1 else f"v[{a}:{a+n-1}]"
def ar(a, n=1):
    return f"a{a}" if n == 1 else f"a[{a}:{a+n-1}]"
def sr(a, n=1):
    return f"s{a}" if n == 1 else f"s[{a}:{a+n-1}]"

def interleave(main, fillers, start=0, per=1):
    out = []
    n = len(main); m = len(fillers)
    if m == 0: return list(main)
    span = n - start
    pos = [start + (span * i) // m for i in range(m)]
    j = 0
    for i, x in enumerate(main):
        out.append(x)
        while j < m and pos[j] <= i:
            out += fillers[j]; j += 1
    while j < m:
        out += fillers[j]; j += 1
    return out

KD = """.section .rodata,"a"
.p2align 6
.amdhsa_kernel {name}
  .amdhsa_next_free_vgpr {nv}
  .amdhsa_next_free_sgpr {ns}
  .amdhsa_accum_offset {ao}
  .amdhsa_group_segment_fixed_size 0
  .amdhsa_kernarg_size 104
  .amdhsa_user_sgpr_count 2
  .amdhsa_user_sgpr_kernarg_segment_ptr 1
  .amdhsa_system_sgpr_workgroup_id_x 1
  .amdhsa_float_denorm_mode_32 3
.end_amdhsa_kernel
.text
"""
def kernel_text(name, body_asm, nv=256, ns=102, ao=256):
    hdr = f".text\n.globl {name}\n.p2align 8\n.type {name},@function\n{name}:\n"
    return hdr + body_asm.text() + KD.format(name=name, nv=nv, ns=ns, ao=ao)
```

```python
import sys, os
sys.path.insert(0, os.path.dirname(__file__))
from common import *
NAME = "gated_mix__linear_kernel_hedgehog__mixer_gmlp__prompt"
HEADER_COMMENT = open(os.path.join(os.path.dirname(__file__), "header.txt")).read()
def build(kernels):
    s = HEADER_COMMENT
    for (label, text, grid, block, lds) in kernels:
        s += f"; @launch kernel={label} grid=({grid},1,1) block=({block},1,1) lds={lds}\n"
    s += '.amdgcn_target "amdgcn-amd-amdhsa--gfx950"\n'
    seen = set()
    for (label, text, grid, block, lds) in kernels:
        if label in seen: continue
        seen.add(label); s += text
    if 'L_text_end' in s: s += 'L_text_end:\n'
    return s
```

```python
KA_X, KA_WQKV, KA_WPHI, KA_WO, KA_BX, KA_WIN, KA_WSP, KA_BSP, KA_WOUT, KA_GATE, KA_OUT, KA_DBG, KA_WS = [8*i for i in range(13)]
NKB = 88
ACAT_OFF = 0
ACAT_SZ  = 128 * NKB * 1024
QBUF_OFF = ACAT_OFF + ACAT_SZ
QBUF_SZ  = 32 * 128 * 1024
Z1_OFF   = QBUF_OFF + QBUF_SZ
Z1_SZ    = 64 * 112 * 1024
Z2_OFF   = Z1_OFF + Z1_SZ
Z2_SZ    = 64 * 112 * 1024
KVP_OFF  = Z2_OFF + Z2_SZ
KVP_SZ   = 8 * 32 * 12 * 1024
STAT_OFF = KVP_OFF + KVP_SZ
STAT_SZ  = 8 * 16 * 256 * 8
GATE_OFF = STAT_OFF + STAT_SZ
GATE_SZ  = 2048 * 4
WT_OFF   = GATE_OFF + GATE_SZ
WT_SZ    = 16 * 44 * 8192
WS_USED  = WT_OFF + WT_SZ
SRD3 = 0x00020000

def srd(a, base, ptr, off, size):
    if off:
        a(f"s_add_u32 s{base}, s{ptr}, {off}")
        a(f"s_addc_u32 s{base+1}, s{ptr+1}, 0")
    else:
        a(f"s_mov_b32 s{base}, s{ptr}")
        a(f"s_mov_b32 s{base+1}, s{ptr+1}")
    a(f"s_mov_b32 s{base+2}, {size}")
    a(f"s_mov_b32 s{base+3}, {hex(SRD3)}")

class VmTracker:
    def __init__(self): self.ops = []
    def issue(self, tag): self.ops.append(tag)
    def need(self, tags):
        last = -1
        for i, t in enumerate(self.ops):
            if t in tags: last = i
        missing = [t for t in tags if t not in self.ops]
        assert not missing, missing
        return len(self.ops) - 1 - last

def fold_loop(a, steps, start, n_iter, U, label, counter):
    import re
    def norm(l): return re.sub(r"vmcnt\(\d+\)", "vmcnt(#)", l)
    body = [list(st) for st in steps[start:start+U]]
    for it in range(1, n_iter):
        other = steps[start+it*U:start+(it+1)*U]
        for u in range(U):
            assert [norm(l) for l in other[u]] == [norm(l) for l in body[u]], f"loop not periodic at iter {it} step {u}"
            for k, l in enumerate(other[u]):
                m = re.search(r"vmcnt\((\d+)\)", l)
                if m:
                    m0 = re.search(r"vmcnt\((\d+)\)", body[u][k])
                    if int(m.group(1)) < int(m0.group(1)): body[u][k] = l
    for it in range(0):
        other = steps[start+it*U:start+(it+1)*U]
        assert other == body, f"loop not periodic at iter {it}"
    a(f"s_mov_b32 s{counter}, 0")
    a(".p2align 6")
    a.label(label)
    for st in body:
        for l in st: a(l.replace("@IT@", f"s{counter}"))
    a(f"s_add_u32 s{counter}, s{counter}, 1")
    a(f"s_cmp_lt_u32 s{counter}, {n_iter}")
    a(f"s_cbranch_scc1 {label}")

class Prof:
    def __init__(self, a, on, base=60, n=8):
        self.a, self.on, self.base, self.k, self.n = a, on, base, 0, n
    def stamp(self, idx=None):
        if not self.on: return
        if idx is None: idx = self.k
        assert idx < self.n
        a = self.a; b = self.base + 4*idx
        a(f"s_memrealtime s[{b}:{b+1}]")
        a(f"s_memtime s[{b+2}:{b+3}]")
        self.k = max(self.k, idx + 1)
    def stamp_same(self):
        if not self.on: return
        self.k -= 1; self.stamp()
    def dump(self, vlane, wave_sgpr, waves=8):
        if not self.on: return
        a = self.a
        a("s_waitcnt lgkmcnt(0) vmcnt(0)")
        a(f"s_load_dwordx2 s[96:97], s[0:1], {KA_BX}")
        a("s_waitcnt lgkmcnt(0)")
        a("s_mov_b32 s92, s96"); a("s_mov_b32 s93, s97"); a("s_mov_b32 s94, 0x400000"); a("s_mov_b32 s95, 0x20000")
        a(f"s_lshl_b32 s98, s2, 3"); a(f"s_add_u32 s98, s98, s{wave_sgpr}"); a("s_lshl_b32 s98, s98, 6")
        a("v_mov_b32 v2, 0")
        for k in range(self.k):
            b = self.base + 4*k
            a(f"v_writelane_b32 v2, s{b}, {2*k}")
            a(f"v_writelane_b32 v2, s{b+2}, {2*k+1}")
        a(f"v_lshlrev_b32 v3, 2, v{vlane}")
        a("v_add_u32 v3, s98, v3")
        a(f"v_cmp_gt_u32 vcc, 16, v{vlane}")
        a("s_and_saveexec_b64 s[90:91], vcc")
        a("buffer_store_dword v2, v3, s[92:95], 0 offen")
        a("s_mov_b64 exec, s[90:91]")

def show_prof(raw, nstamps, tag=""):
    import numpy as np
    d = raw.reshape(-1, 8, 16)[:256].astype(np.int64)
    rt = d[:, :, 0:2*nstamps:2]; cy = d[:, :, 1:2*nstamps:2]
    t0 = rt[:, :, 0].min()
    s = tag
    for k in range(nstamps):
        s += f" | t{k}: {(rt[:,:,k].min()-t0)/100:.2f}/{np.median(rt[:,:,k]-t0)/100:.2f}/{(rt[:,:,k].max()-t0)/100:.2f}"
    s += " || cyc:"
    for k in range(1, nstamps):
        dc = (cy[:,:,k] - cy[:,:,k-1]) & 0xffffffff; dr = (rt[:,:,k]-rt[:,:,k-1])
        s += f" {np.median(dc):.0f}@{np.median(dc)/max(np.median(dr),1)*100:.0f}MHz"
    print(s)
```

```python
import sys, os
sys.path.insert(0, os.path.dirname(__file__))
import build, s1, s2, s3
def kernels(prof=False, k1={}, k2={}, k3={}):
    t1, l1 = s1.gen_s1("s1_kernel", prof=prof, **k1)
    t2, l2 = s2.gen_s2("s2_kernel", prof=prof, **k2)
    t3, l3, b3 = s3.gen_s3("s3_kernel", prof=prof, **k3)
    return [("s1_kernel", t1, 256, 512, l1), ("s2_kernel", t2, 256, 512, l2), ("s3_kernel", t3, 256, b3, l3)]
if __name__ == "__main__":
    out = sys.argv[1] if len(sys.argv) > 1 else "cdna_kernels/" + build.NAME + ".s"
    open(out, "w").write(build.build(kernels()))
    print("wrote", out, os.path.getsize(out))
```

```python
from asmlib import *
from common import *

LOG2E = 1.4426950408889634
import struct
def f2h(x): return hex(struct.unpack("<I", struct.pack("<f", x))[0])

A_SLOT = 32768; NA = 3
W_BASE = NA*A_SLOT; W_SLOT = 14336; NW = 3
WPHI   = W_BASE + 4*W_SLOT
DUMMY  = WPHI + 2048
MISC   = DUMMY + 1024
S1_LDS = MISC + 256
PHI_SCR = 0
KV_SCR  = 32768

def gen_s1(name="s1_kernel", prof=False, st="sc1", touch=True, relayout=True):
    a = Asm()
    P = Prof(a, prof)
    NS = 32
    U = 6
    pX, pQKV, pPHI, pWO = 4, 6, 8, 10
    pWIN, pWSP = 12, 14
    pWOUT, pGATE = 16, 18
    pDBG, pWS = 20, 22
    SX, SD, SD3, SWS = 24, 28, 32, 36
    ST, SRL = 40, 44
    sW, sWQ, sMI, sNJ, sODD = 48, 49, 50, 51, 52
    sKA, sKD, sKD3, sIncD = 53, 54, 55, 56
    sM0, sM0d = 57, 58
    sMs = [59, 60, 61, 62]
    sTo, sTinc = 63, 64
    sRLs, sRLd = 65, 66
    sIT = 67
    t0, t1, t2, t3 = 68, 69, 70, 71
    sC = 72
    if prof: P.base = 76; P.n = 4
    vLane, vA, vB_, vC, vD = 1, 2, 3, 4, 5
    vX = [[6, 7], [8, 9]]
    vDs = [10, 11, 12, 13, 14, 15, 16, 17]
    vW1 = [18, 19]; vW2 = [18, 19]
    vT = 20
    vRL = 21
    vRLd = 22
    vDum = 23
    vRLb = 24
    XF = 32
    WF = 64
    ACC_A = 112; ACC_G = 120

    a("s_cmp_ge_u32 s2, 256")
    a(f"s_cbranch_scc1 L_{name}_end")
    P.stamp(0)
    a(f"s_load_dwordx8 s[4:11], s[0:1], 0")
    a(f"s_load_dwordx4 s[12:15], s[0:1], {KA_WIN}")
    a(f"s_load_dwordx4 s[16:19], s[0:1], {KA_WOUT}")
    a(f"s_load_dwordx4 s[20:23], s[0:1], {KA_DBG}")
    a(f"v_lshrrev_b32 v{vA}, 6, v0")
    a(f"v_and_b32 v{vLane}, 63, v0")
    a(f"v_readfirstlane_b32 s{sW}, v{vA}")
    a(f"s_and_b32 s{t0}, s2, 7")
    a(f"s_lshr_b32 s{t1}, s2, 3")
    a(f"s_and_b32 s{t2}, s{t0}, 1"); a(f"s_lshl_b32 s{t2}, s{t2}, 2"); a(f"s_and_b32 s{t3}, s{t1}, 3")
    a(f"s_add_u32 s{sMI}, s{t2}, s{t3}")
    a(f"s_lshr_b32 s{t1}, s{t1}, 2")
    a(f"s_lshr_b32 s{t0}, s{t0}, 1"); a(f"s_lshl_b32 s{t0}, s{t0}, 2")
    a(f"s_and_b32 s{t2}, s{t1}, 3"); a(f"s_add_u32 s{t0}, s{t0}, s{t2}")
    a(f"s_lshr_b32 s{t2}, s{t1}, 2"); a(f"s_lshl_b32 s{t2}, s{t2}, 4"); a(f"s_add_u32 s{sNJ}, s{t0}, s{t2}")
    a(f"s_and_b32 s{sODD}, s{sNJ}, 1")
    a(f"s_and_b32 s{sWQ}, s{sW}, 3")
    a(f"s_mov_b32 s{sC}, 1.0"); a(f"s_mov_b32 s{sC+1}, 1.0")
    a(f"v_mov_b32 v{vA}, 0"); a(f"v_lshlrev_b32 v{vB_}, 2, v{vLane}"); a(f"v_add_u32 v{vB_}, {MISC}, v{vB_}"); a(f"ds_write_b32 v{vB_}, v{vA}")
    a("s_waitcnt lgkmcnt(0)")
    srd(a, SX, pX, 0, 2048*2048)
    srd(a, SWS, pWS, 0, WS_USED)
    G0 = 32
    a(f"s_lshl_b32 s{t0}, s{sMI}, 8"); a(f"s_lshl_b32 s{t1}, s{sNJ}, 3"); a(f"s_add_u32 s{t0}, s{t0}, s{t1}"); a(f"s_add_u32 s{sRLs}, s{t0}, s{sW}")
    a(f"s_lshl_b32 s{t0}, s{sRLs}, 11")
    a(f"v_lshlrev_b32 v{vRLd}, 4, v{vLane}")
    srd(a, ST, pGATE, 0, 2048)
    a(f"buffer_load_dwordx4 v[{G0}:{G0+3}], v{vRLd}, s[{SX}:{SX+3}], s{t0} offen")
    a(f"buffer_load_dwordx4 v[{G0+4}:{G0+7}], v{vRLd}, s[{SX}:{SX+3}], s{t0} offen offset:1024")
    a(f"buffer_load_dwordx4 v[{G0+8}:{G0+11}], v{vRLd}, s[{ST}:{ST+3}], 0 offen")
    a(f"buffer_load_dwordx4 v[{G0+12}:{G0+15}], v{vRLd}, s[{ST}:{ST+3}], 0 offen offset:1024")
    vmA = VmTracker(); vmG = VmTracker()
    for vm in (vmA, vmG):
        for q in range(4): vm.issue(("gate", q))
    a(f"v_and_b32 v{vA}, 15, v{vLane}")
    a(f"v_lshrrev_b32 v{vB_}, 1, v{vA}")
    a(f"v_lshrrev_b32 v{vC}, 4, v{vLane}")
    a(f"v_xor_b32 v{vB_}, v{vB_}, v{vC}")
    a(f"v_lshlrev_b32 v{vA}, 7, v{vA}")
    a(f"s_lshl_b32 s{t0}, s{sWQ}, 13")
    a(f"v_add_u32 v{vA}, s{t0}, v{vA}")
    a(f"v_lshlrev_b32 v{vC}, 4, v{vB_}")
    a(f"v_add_u32 v{vX[0][0]}, v{vA}, v{vC}")
    a(f"v_xor_b32 v{vX[0][1]}, 64, v{vX[0][0]}")
    a(f"v_add_u32 v{vX[1][0]}, 65536, v{vX[0][0]}")
    a(f"v_add_u32 v{vX[1][1]}, 65536, v{vX[0][1]}")
    def relayout_setup():
        a(f"s_lshl_b32 s{t0}, s2, 3"); a(f"s_add_u32 s{t0}, s{t0}, s{sW}")
        a(f"s_lshr_b32 s{t1}, s{t0}, 2")
        a(f"s_and_b32 s{t2}, s{t0}, 3")
        a(f"s_cmp_lt_u32 s{t1}, 128")
        a(f"s_cselect_b32 s{SRL}, s{pWO}, s{pWOUT}")
        a(f"s_cselect_b32 s{SRL+1}, s{pWO+1}, s{pWOUT+1}")
        a(f"s_cselect_b32 s{SRL+2}, {1024*2048}, {1792*2048}") if False else None
        a(f"s_mov_b32 s{t3}, {1792*2048}")
        a(f"s_cselect_b32 s{SRL+2}, {1024*2048}, s{t3}")
        a(f"s_mov_b32 s{SRL+3}, {hex(SRD3)}")
        a(f"s_cselect_b32 s{t3}, 0, 128")
        a(f"s_sub_u32 s{t3}, s{t1}, s{t3}")
        a(f"s_lshl_b32 s{t3}, s{t3}, 14")
        a(f"s_lshl_b32 s{sRLs}, s{t2}, 9"); a(f"s_add_u32 s{sRLs}, s{sRLs}, s{t3}")
        a(f"s_mul_i32 s{sRLd}, s{t2}, {4*44*8192}"); a(f"s_lshl_b32 s{t3}, s{t1}, 10"); a(f"s_add_u32 s{sRLd}, s{sRLd}, s{t3}")
        a(f"s_add_u32 s{sRLd}, s{sRLd}, {WT_OFF}")
        a(f"s_cmp_lt_u32 s{t0}, 1408")
        a(f"s_cselect_b32 s{sRLs}, s{sRLs}, 0x40000000")
        a(f"s_cselect_b32 s{sRLd}, s{sRLd}, 0x40000000")
        a(f"v_lshrrev_b32 v{vA}, 3, v{vLane}"); a(f"v_lshrrev_b32 v{vB_}, 1, v{vA}")
        a(f"v_bfe_u32 v{vC}, v{vLane}, 1, 2"); a(f"v_xor_b32 v{vC}, v{vC}, v{vB_}"); a(f"v_lshlrev_b32 v{vC}, 5, v{vC}")
        a(f"v_and_b32 v{vB_}, 1, v{vLane}"); a(f"v_lshlrev_b32 v{vB_}, 4, v{vB_}"); a(f"v_add_u32 v{vC}, v{vC}, v{vB_}")
        a(f"v_lshlrev_b32 v{vA}, 11, v{vA}"); a(f"v_add_u32 v{vRL}, v{vA}, v{vC}")
    a(f"s_cmp_ge_u32 s{sW}, 4")
    a(f"s_cbranch_scc1 L_{name}_gsetup")
    a(f"v_lshrrev_b32 v{vA}, 3, v{vLane}")
    a(f"s_lshl_b32 s{t0}, s{sMI}, 8"); a(f"s_lshl_b32 s{t1}, s{sWQ}, 6"); a(f"s_add_u32 s{t0}, s{t0}, s{t1}")
    a(f"v_add_u32 v{vA}, s{t0}, v{vA}"); a(f"v_lshlrev_b32 v{vA}, 11, v{vA}")
    a(f"v_and_b32 v{vB_}, 7, v{vLane}"); a(f"v_lshrrev_b32 v{vC}, 4, v{vLane}"); a(f"v_xor_b32 v{vB_}, v{vB_}, v{vC}")
    a(f"v_lshlrev_b32 v{vC}, 4, v{vB_}"); a(f"v_add_u32 v{vDs[0]}, v{vA}, v{vC}")
    a(f"v_xor_b32 v{vC}, 64, v{vC}"); a(f"v_add_u32 v{vDs[1]}, v{vA}, v{vC}"); a(f"v_add_u32 v{vDs[1]}, {8*2048}, v{vDs[1]}")
    for e in range(2, 8): a(f"v_add_u32 v{vDs[e]}, {16*2048}, v{vDs[e-2]}")
    a(f"s_lshl_b32 s{sM0}, s{sWQ}, 13")
    a(f"s_mov_b32 s{sKA}, 0")
    a(f"v_lshrrev_b32 v{vA}, 4, v{vLane}"); a(f"v_mul_u32_u24 v{vB_}, 1536, v{vA}")
    a(f"v_bfe_u32 v{vC}, v{vLane}, 2, 2"); a(f"v_lshlrev_b32 v{vC}, 6, v{vC}"); a(f"v_add_u32 v{vB_}, v{vB_}, v{vC}")
    a(f"v_and_b32 v{vC}, 3, v{vLane}"); a(f"v_lshlrev_b32 v{vC}, 3, v{vC}"); a(f"v_add_u32 v{vB_}, v{vB_}, v{vC}")
    a(f"v_and_b32 v{vA}, 1, v{vA}"); a(f"v_lshlrev_b32 v{vA}, 5, v{vA}"); a(f"v_add_u32 v{vB_}, {W_BASE}, v{vB_}")
    a(f"v_add_u32 v{vW1[0]}, v{vB_}, v{vA}"); a(f"v_xor_b32 v{vA}, 32, v{vA}"); a(f"v_add_u32 v{vW1[1]}, v{vB_}, v{vA}")
    a(f"s_lshr_b32 s{t1}, s2, 3"); a(f"s_and_b32 s{t2}, s{t1}, 3"); a(f"s_lshr_b32 s{t1}, s{t1}, 2")
    a(f"s_cmp_eq_u32 s{sWQ}, 0")
    a(f"s_cbranch_scc0 L_{name}_t1")
    srd(a, ST, pX, 0, 2048*2048)
    a(f"s_lshl_b32 s{t0}, s{sMI}, 8"); a(f"s_lshl_b32 s{t3}, s{t1}, 5"); a(f"s_add_u32 s{t0}, s{t0}, s{t3}")
    a(f"v_add_u32 v{vT}, s{t0}, v{vLane}"); a(f"v_lshlrev_b32 v{vT}, 11, v{vT}")
    a(f"v_cmp_gt_u32 vcc, 32, v{vLane}"); a(f"v_mov_b32 v{vA}, 0x40000000"); a(f"v_cndmask_b32 v{vT}, v{vA}, v{vT}, vcc")
    a(f"s_mov_b32 s{sTinc}, 128")
    a(f"s_branch L_{name}_tdone")
    a.label(f"L_{name}_t1")
    a(f"v_mul_u32_u24 v{vA}, 43, v{vLane}"); a(f"v_lshrrev_b32 v{vA}, 7, v{vA}")
    a(f"v_mul_u32_u24 v{vB_}, 3, v{vA}"); a(f"v_sub_u32 v{vB_}, v{vLane}, v{vB_}")
    a(f"s_lshl_b32 s{t0}, s{t2}, 4"); a(f"v_add_u32 v{vA}, s{t0}, v{vA}")
    a(f"s_cmp_eq_u32 s{sWQ}, 1")
    a(f"s_cbranch_scc0 L_{name}_t2")
    srd(a, ST, pQKV, 0, 1024*6144)
    a(f"v_mul_u32_u24 v{vT}, 6144, v{vA}"); a(f"v_lshlrev_b32 v{vB_}, 11, v{vB_}"); a(f"v_add_u32 v{vT}, v{vT}, v{vB_}")
    a(f"s_lshl_b32 s{t0}, s{sNJ}, 6"); a(f"v_add_u32 v{vT}, s{t0}, v{vT}")
    a(f"v_cmp_gt_u32 vcc, 48, v{vLane}"); a(f"v_mov_b32 v{vA}, 0x40000000"); a(f"v_cndmask_b32 v{vT}, v{vA}, v{vT}, vcc")
    a(f"s_mov_b32 s{sTinc}, {64*6144}")
    a(f"s_branch L_{name}_tdone")
    a.label(f"L_{name}_t2")
    a(f"s_cmp_eq_u32 s{sWQ}, 2")
    a(f"s_cbranch_scc0 L_{name}_t3")
    srd(a, ST, pWIN, 0, 1024*7168)
    a(f"v_mul_u32_u24 v{vT}, 7168, v{vA}"); a(f"v_lshlrev_b32 v{vB_}, 7, v{vB_}"); a(f"v_min_u32 v{vB_}, 252, v{vB_}"); a(f"v_add_u32 v{vT}, v{vT}, v{vB_}")
    a(f"s_mul_i32 s{t0}, s{sNJ}, 224"); a(f"s_lshl_b32 s{t3}, s{sODD}, 5"); a(f"s_sub_u32 s{t0}, s{t0}, s{t3}"); a(f"v_add_u32 v{vT}, s{t0}, v{vT}")
    a(f"v_cmp_gt_u32 vcc, 48, v{vLane}"); a(f"v_mov_b32 v{vA}, 0x40000000"); a(f"v_cndmask_b32 v{vT}, v{vA}, v{vT}, vcc")
    a(f"s_mov_b32 s{sTinc}, {64*7168}")
    a(f"s_branch L_{name}_tdone")
    a.label(f"L_{name}_t3")
    srd(a, ST, pWSP, 0, 2048*4096)
    a(f"v_lshlrev_b32 v{vT}, 7, v{vLane}"); a(f"s_lshl_b32 s{t0}, s2, 15"); a(f"v_add_u32 v{vT}, s{t0}, v{vT}")
    a(f"s_mov_b32 s{sTinc}, 8192")
    a(f"s_add_u32 s{ST+2}, s{t0}, 32768")
    a.label(f"L_{name}_tdone")
    a(f"s_lshl_b32 s{sTo}, s{sTinc}, 1")
    a(f"s_cmp_eq_u32 s{sWQ}, 3"); a(f"s_cselect_b32 s{sTo}, 0, s{sTo}")
    srd(a, SD, pPHI, 0, 65536)
    a(f"s_and_b32 s{t0}, s{sWQ}, 1"); a(f"s_lshl_b32 s{t0}, s{t0}, 10")
    a(f"s_lshl_b32 s{t1}, s{sNJ}, 11"); a(f"s_add_u32 s{t1}, s{t1}, s{t0}")
    a(f"s_add_u32 m0, s{t0}, {WPHI}")
    a(f"buffer_load_dwordx4 v{vRLd}, s[{SD}:{SD+3}], s{t1} offen lds")
    vmA.issue("wphi")
    if relayout: relayout_setup()
    def touch_ops(vm, tag, wave3_only_ok=True):
        vm.issue(tag)
        return [f"buffer_load_dword v{vDum}, v{vT}, s[{ST}:{ST+3}], s{sTo} offen", f"s_add_u32 s{sTo}, s{sTo}, s{sTinc}"]
    def dmaA(tile, half):
        out = []
        for e in range(4*half, 4*half+4):
            vmA.issue(("A", tile, e))
            out.append([f"s_add_u32 m0, s{sM0}, {(tile % NA)*A_SLOT + e*1024}",
                        f"buffer_load_dwordx4 v{vDs[e]}, s[{SX}:{SX+3}], s{sKA} offen lds"])
        if half == 1: out[-1].append(f"s_add_u32 s{sKA}, s{sKA}, 128")
        return out
    PT = 4
    for tile in range(2):
        for half in range(2):
            for grp in dmaA(tile, half):
                for l in grp: a(l)
    if touch:
        for q in range(2, PT):
            for l in touch_ops(vmA, ("T", q)): a(l)
    for grp in dmaA(2, 0):
        for l in grp: a(l)
    a(f"s_waitcnt vmcnt({vmA.need([('gate', 3)])})")
    a(f"s_branch L_{name}_gate")
    a.label(f"L_{name}_gsetup")
    a(f"v_lshrrev_b32 v{vA}, 2, v{vLane}")
    a(f"v_and_b32 v{vB_}, 3, v{vA}")
    a(f"v_lshrrev_b32 v{vC}, 2, v{vA}")
    a(f"v_and_b32 v{vD}, 3, v{vLane}")
    a(f"s_mul_i32 s{t3}, s{sNJ}, 224"); a(f"s_lshl_b32 s{t2}, s{sODD}, 5"); a(f"s_sub_u32 s{t3}, s{t3}, s{t2}")
    def w2src(dst, kq_s):
        a(f"s_lshl_b32 s{t0}, s{kq_s}, 2")
        a(f"v_add_u32 v{dst}, s{t0}, v{vB_}"); a(f"v_mul_u32_u24 v{dst}, 7168, v{dst}")
        a(f"s_and_b32 s{t0}, s{kq_s}, 2")
        a(f"v_xor_b32 v{vDum}, s{t0}, v{vD}"); a(f"v_lshlrev_b32 v{vDum}, 4, v{vDum}"); a(f"v_add_u32 v{dst}, v{dst}, v{vDum}")
        a(f"v_lshlrev_b32 v{vDum}, 6, v{vC}"); a(f"v_add_u32 v{dst}, v{dst}, v{vDum}")
        a(f"v_add_u32 v{dst}, s{t3}, v{dst}")
    srd(a, SD3, pWIN, 0, 1024*7168)
    a(f"s_cmp_ge_u32 s{sWQ}, 2")
    a(f"s_cbranch_scc1 L_{name}_g23")
    srd(a, SD, pQKV, 0, 1024*6144)
    a(f"s_mov_b32 s{sIncD}, {32*6144}")
    for j in range(3):
        a(f"s_mul_i32 s{t0}, s{sWQ}, 12"); a(f"s_add_u32 s{t0}, s{t0}, {4*j}")
        a(f"v_add_u32 v{vDs[j]}, s{t0}, v{vC}")
        a(f"v_mul_u32_u24 v{vDum}, 11, v{vDs[j]}"); a(f"v_lshrrev_b32 v{vDum}, 5, v{vDum}")
        a(f"v_mul_u32_u24 v{vT}, 3, v{vDum}"); a(f"v_sub_u32 v{vT}, v{vDs[j]}, v{vT}")
        a(f"v_lshlrev_b32 v{vT}, 11, v{vT}")
        a(f"v_and_b32 v{vDs[j]}, 2, v{vDum}"); a(f"v_xor_b32 v{vDs[j]}, v{vDs[j]}, v{vD}"); a(f"v_lshlrev_b32 v{vDs[j]}, 4, v{vDs[j]}")
        a(f"v_add_u32 v{vT}, v{vT}, v{vDs[j]}")
        a(f"v_lshlrev_b32 v{vDum}, 2, v{vDum}"); a(f"v_add_u32 v{vDum}, v{vDum}, v{vB_}"); a(f"v_mul_u32_u24 v{vDum}, 6144, v{vDum}")
        a(f"v_add_u32 v{vT}, v{vT}, v{vDum}")
        a(f"s_lshl_b32 s{t0}, s{sNJ}, 6"); a(f"v_add_u32 v{vDs[j]}, s{t0}, v{vT}")
        a(f"s_mul_i32 s{t0}, s{sWQ}, 3072"); a(f"s_add_u32 s{sMs[j]}, s{t0}, {W_BASE + j*1024}")
    a(f"s_mov_b32 s{t1}, s{sWQ}"); w2src(vDs[3], t1)
    a(f"s_lshl_b32 s{t0}, s{sWQ}, 10"); a(f"s_add_u32 s{sMs[3]}, s{t0}, {W_BASE + 6144}")
    a(f"s_branch L_{name}_g23done")
    a.label(f"L_{name}_g23")
    srd(a, SD, pWIN, 0, 1024*7168)
    a(f"s_mov_b32 s{sIncD}, {32*7168}")
    for j in range(3):
        a(f"s_mul_i32 s{t1}, s{sWQ}, 3"); a(f"s_add_u32 s{t1}, s{t1}, {j}"); a(f"s_sub_u32 s{t1}, s{t1}, 4")
        w2src(vDs[j], t1)
        a(f"s_lshl_b32 s{t0}, s{t1}, 10"); a(f"s_add_u32 s{sMs[j]}, s{t0}, {W_BASE + 6144}")
    a(f"v_mov_b32 v{vDs[3]}, 0x40000000")
    a(f"s_mov_b32 s{sMs[3]}, {DUMMY}")
    a.label(f"L_{name}_g23done")
    a(f"s_cmp_ge_u32 s{sWQ}, 2"); a(f"s_cselect_b32 s{sM0d}, 0, {W_SLOT}")
    a(f"s_mov_b32 s{sKD}, 0"); a(f"s_mov_b32 s{sKD3}, 0")
    a(f"v_lshrrev_b32 v{vA}, 4, v{vLane}"); a(f"v_lshlrev_b32 v{vB_}, 11, v{vA}")
    a(f"v_bfe_u32 v{vC}, v{vLane}, 2, 2"); a(f"v_lshlrev_b32 v{vC}, 6, v{vC}"); a(f"v_add_u32 v{vB_}, v{vB_}, v{vC}")
    a(f"v_and_b32 v{vC}, 3, v{vLane}"); a(f"v_lshlrev_b32 v{vC}, 3, v{vC}"); a(f"v_add_u32 v{vB_}, v{vB_}, v{vC}")
    a(f"v_add_u32 v{vB_}, {W_BASE + 6144}, v{vB_}")
    a(f"v_and_b32 v{vA}, 1, v{vA}"); a(f"v_xor_b32 v{vA}, s{sODD}, v{vA}"); a(f"v_lshlrev_b32 v{vA}, 5, v{vA}")
    a(f"v_add_u32 v{vW2[0]}, v{vB_}, v{vA}"); a(f"v_xor_b32 v{vA}, 32, v{vA}"); a(f"v_add_u32 v{vW2[1]}, v{vB_}, v{vA}")
    a(f"s_lshl_b32 s{t0}, s{sODD}, 8"); a(f"v_add_u32 v{vW2[1]}, s{t0}, v{vW2[1]}")
    if relayout: relayout_setup()
    def dmaW(tile):
        out = []
        for j in range(4):
            vmG.issue(("W", tile, j))
            slot = tile % NW
            if j < 3:
                out.append([f"s_add_u32 m0, s{sMs[j]}, {slot*W_SLOT}",
                            f"buffer_load_dwordx4 v{vDs[j]}, s[{SD}:{SD+3}], s{sKD} offen lds"])
            else:
                out.append([f"s_mul_i32 s{t0}, s{sM0d}, {slot}", f"s_add_u32 m0, s{sMs[3]}, s{t0}",
                            f"buffer_load_dwordx4 v{vDs[3]}, s[{SD3}:{SD3+3}], s{sKD3} offen lds",
                            f"s_add_u32 s{sKD}, s{sKD}, s{sIncD}", f"s_add_u32 s{sKD3}, s{sKD3}, {32*7168}"])
        return out
    for tile in range(NW):
        for grp in dmaW(tile):
            for l in grp: a(l)
    a(f"s_waitcnt vmcnt({vmG.need([('gate', 3)])})")
    a.label(f"L_{name}_gate")
    T = 48
    a(f"v_mov_b32 v{T+2}, 0"); a(f"v_mov_b32 v{T+3}, 0")
    for q in range(8):
        xr, gr = G0 + q, G0 + 8 + q
        a(f"v_lshlrev_b32 v{T}, 16, v{xr}"); a(f"v_and_b32 v{T+1}, 0xffff0000, v{xr}")
        a(f"v_lshlrev_b32 v{T+4}, 16, v{gr}"); a(f"v_and_b32 v{T+5}, 0xffff0000, v{gr}")
        a(f"v_pk_fma_f32 v[{T+2}:{T+3}], v[{T}:{T+1}], v[{T+4}:{T+5}], v[{T+2}:{T+3}]")
    a(f"v_add_f32 v{T}, v{T+2}, v{T+3}")
    for sh in (8, 4, 2, 1):
        a(f"v_add_f32_dpp v{T}, v{T}, v{T} row_ror:{sh} row_mask:0xf bank_mask:0xf")
    a(f"v_mov_b32 v{T+1}, v{T}"); a(f"v_permlane16_swap_b32 v{T}, v{T+1}"); a(f"v_add_f32 v{T}, v{T}, v{T+1}")
    a(f"v_mov_b32 v{T+1}, v{T}"); a(f"v_permlane32_swap_b32 v{T}, v{T+1}"); a(f"v_add_f32 v{T}, v{T}, v{T+1}")
    a(f"v_mul_f32 v{T}, {f2h(-LOG2E)}, v{T}"); a(f"v_exp_f32 v{T}, v{T}"); a(f"v_add_f32 v{T}, 1.0, v{T}"); a(f"v_rcp_f32 v{T}, v{T}")
    a(f"s_lshl_b32 s{t0}, s{sMI}, 8"); a(f"s_lshl_b32 s{t1}, s{sNJ}, 3"); a(f"s_add_u32 s{t0}, s{t0}, s{t1}"); a(f"s_add_u32 s{t0}, s{t0}, s{sW}")
    a(f"s_lshl_b32 s{t0}, s{t0}, 2"); a(f"s_add_u32 s{t0}, s{t0}, {GATE_OFF}")
    a(f"v_lshlrev_b32 v{T+1}, 2, v{vLane}")
    a(f"v_cmp_eq_u32 vcc, 0, v{vLane}"); a(f"v_mov_b32 v{T+2}, 0x40000000"); a(f"v_cndmask_b32 v{T+1}, v{T+2}, v{T+1}, vcc")
    a(f"buffer_store_dword v{T}, v{T+1}, s[{SWS}:{SWS+3}], s{t0} offen")
    vmA.issue("gst"); vmG.issue("gst")
    a(f"s_cmp_ge_u32 s{sW}, 4")
    a(f"s_cbranch_scc1 L_{name}_gmain")

    def xreads(step):
        tile = step >> 1; kh = step & 1; slot = tile % NA
        base = XF + (step % 2)*16
        hi = 1 if slot == 2 else 0; off = 0 if slot == 2 else slot*A_SLOT
        return [f"ds_read_b128 v[{base+4*tb}:{base+4*tb+3}], v{vX[hi][kh]} offset:{off + tb*2048}" for tb in range(4)]
    def main_loop(role):
        att = role == "A"
        vm = vmA if att else vmG
        nb = 6 if att else 7
        ACC = ACC_A if att else ACC_G
        WSET = 4*nb
        def wreads(step):
            base = WF + (step % 2)*WSET; slot = step % NW; out = []
            for i in range(nb):
                for sec in range(2):
                    r = base + 4*i + 2*sec
                    if att: out.append(f"ds_read_b64_tr_b16 v[{r}:{r+1}], v{vW1[i & 1]} offset:{slot*W_SLOT + sec*768 + (i >> 1)*256}")
                    else:   out.append(f"ds_read_b64_tr_b16 v[{r}:{r+1}], v{vW2[i & 1]} offset:{slot*W_SLOT + sec*1024 + (i >> 1)*256}")
            return out
        def mfmas(step):
            xb = XF + (step % 2)*16; wb = WF + (step % 2)*WSET; out = []
            for i in range(nb):
                for tb in range(4):
                    c = ACC + (i*4+tb)*4
                    w_, x_ = f"v[{wb+4*i}:{wb+4*i+3}]", f"v[{xb+4*tb}:{xb+4*tb+3}]"
                    if att and i >= 4: w_, x_ = x_, w_
                    out.append(f"v_mfma_f32_16x16x32_bf16 v[{c}:{c+3}], {w_}, {x_}, v[{c}:{c+3}]")
            return out
        for i in range(nb*16): a(f"v_mov_b32 v{ACC+i}, 0")
        if att: need = [("A", 0, e) for e in range(8)] + ["wphi"]
        else: need = [("W", 0, j) for j in range(4)] + [("W", 1, j) for j in range(4)]
        a(f"s_waitcnt vmcnt({vm.need(need)})")
        a("s_barrier")
        P.stamp(1)
        for l in xreads(0) + wreads(0): a(l)
        a("s_waitcnt lgkmcnt(0)")
        a("s_barrier")
        steps = []
        for s in range(NS):
            m = mfmas(s)
            fill = []
            rd = (xreads(s+1) + wreads(s+1)) if s + 1 < NS else []
            dm = []
            if relayout and s < 24 and s % U == 5:
                n = vm.need([("RL", s // U)])
                vm.issue(("RS", s // U))
                dm.append([f"s_waitcnt vmcnt({n})", f"buffer_store_dwordx4 v[{vRLb}:{vRLb+3}], v{vRLd}, s[{SWS}:{SWS+3}], s{sRLd} offen {st}", f"s_add_u32 s{sRLd}, s{sRLd}, {44*8192}"])
            if att:
                t2_ = ((s + 1) >> 1) + 2; half = (s + 1) & 1
                if touch and s % 2 == 0 and (s // 2 + PT) < 16 + 0:
                    dm.append(touch_ops(vm, ("T", s // 2 + PT)))
                if t2_ < NS // 2: dm += dmaA(t2_, half)
            else:
                if s + NW < NS: dm += dmaW(s + NW)
            if relayout and s < 24:
                if s % U == 1:
                    vm.issue(("RL", s // U))
                    dm.append([f"buffer_load_dwordx4 v[{vRLb}:{vRLb+3}], v{vRL}, s[{SRL}:{SRL+3}], s{sRLs} offen", f"s_add_u32 s{sRLs}, s{sRLs}, 128"])
            groups = []
            rdg = [[x] for x in rd]
            i_d = 0; i_r = 0
            seq = []
            nm = len(m)
            slots = [[] for _ in range(nm)]
            for k, g in enumerate(rdg): slots[min(nm-1, (k*(nm-5))//max(len(rdg), 1))].extend(g)
            last_pos = -9
            for k, g in enumerate(dm):
                pos = min(nm-2, 1 + (k*(nm-4))//max(len(dm), 1))
                assert pos - last_pos >= 2; last_pos = pos
                if g[0].startswith("s_add_u32 m0") or g[0].startswith("s_mul_i32"):
                    n0 = 2 if g[0].startswith("s_mul_i32") else 1
                    slots[pos-1].extend(g[:n0]); slots[pos] = g[n0:] + slots[pos]
                else: slots[pos].extend(g)
            for k in range(nm):
                seq.append(m[k]); seq += slots[k]
            need = []
            if s + 2 < NS:
                if att: need = [("A", (s+2) >> 1, e) for e in range(8)]
                else: need = [("W", s+2, j) for j in range(4)]
            if s + 1 < NS:
                w = f"s_waitcnt lgkmcnt(0)" if not need else f"s_waitcnt vmcnt({vm.need(need)}) lgkmcnt(0)"
                seq.append(w); seq.append("s_barrier")
            steps.append(seq)
        n_iter = 4
        fold_loop(a, steps, 0, n_iter, U, f"L_{name}_loop{role}", sIT)
        for s in range(n_iter*U, NS):
            for l in steps[s]: a(l)
    main_loop("A")
    P.stamp(2)
    epilogue_att(a, locals())
    a(f"s_branch L_{name}_fin")
    a.label(f"L_{name}_gmain")
    main_loop("G")
    P.stamp(2)
    epilogue_gmlp(a, locals())
    a.label(f"L_{name}_fin")
    a("s_waitcnt vmcnt(0)")
    P.stamp(3)
    P.dump(vLane, sW)
    a.label(f"L_{name}_end")
    a("s_endpgm")
    return kernel_text(name, a, nv=256, ns=102, ao=256), S1_LDS

from s1_epi import epilogue_att, epilogue_gmlp
```

```python
from asmlib import *
from common import *
import struct
LOG2E = 1.4426950408889634
SPIN_MAX = 400000
def f2h(x): return hex(struct.unpack("<I", struct.pack("<f", x))[0])

def allreduce4(a, op, vals, tmp):
    for v, t in zip(vals, tmp): a(f"v_mov_b32 v{t}, v{v}")
    for v, t in zip(vals, tmp): a(f"v_permlane16_swap_b32 v{v}, v{t}")
    for v, t in zip(vals, tmp): a(f"{op} v{v}, v{v}, v{t}")
    for v, t in zip(vals, tmp): a(f"v_mov_b32 v{t}, v{v}")
    for v, t in zip(vals, tmp): a(f"v_permlane32_swap_b32 v{v}, v{t}")
    for v, t in zip(vals, tmp): a(f"{op} v{v}, v{v}, v{t}")

def softmax_pm(a, L, E, tmp, sC):
    mx, mn, t0, t1 = tmp, tmp+1, tmp+2, tmp+3
    a(f"v_max3_f32 v{mx}, v{L}, v{L+1}, v{L+2}"); a(f"v_min3_f32 v{mn}, v{L}, v{L+1}, v{L+2}")
    a(f"v_max3_f32 v{mx}, v{mx}, v{L+3}, v{L+4}"); a(f"v_min3_f32 v{mn}, v{mn}, v{L+3}, v{L+4}")
    a(f"v_max3_f32 v{mx}, v{mx}, v{L+5}, v{L+6}"); a(f"v_min3_f32 v{mn}, v{mn}, v{L+5}, v{L+6}")
    a(f"v_max_f32 v{mx}, v{mx}, v{L+7}"); a(f"v_min_f32 v{mn}, v{mn}, v{L+7}")
    a(f"v_sub_f32 v{mn}, 0, v{mn}")
    allreduce4(a, "v_max_f32", [mx, mn], [t0, t1])
    B = tmp + 4
    a(f"v_mul_f32 v{B}, {f2h(-LOG2E)}, v{mx}")
    a(f"v_mul_f32 v{B+1}, {f2h(-LOG2E)}, v{mn}")
    Cp = tmp + 6
    a(f"v_mov_b32 v{Cp}, {f2h(LOG2E)}"); a(f"v_mov_b32 v{Cp+1}, {f2h(-LOG2E)}")
    Pp = tmp + 8
    Pm = tmp + 16
    for i in range(0, 8, 2):
        a(f"v_pk_fma_f32 v[{Pp+i}:{Pp+i+1}], v[{L+i}:{L+i+1}], v[{Cp}:{Cp+1}], v[{B}:{B+1}] op_sel:[0,0,0] op_sel_hi:[1,0,0]")
        a(f"v_pk_fma_f32 v[{Pm+i}:{Pm+i+1}], v[{L+i}:{L+i+1}], v[{Cp}:{Cp+1}], v[{B}:{B+1}] op_sel:[0,1,1] op_sel_hi:[1,1,1]")
    for i in range(8):
        a(f"v_exp_f32 v{Pp+i}, v{Pp+i}"); a(f"v_exp_f32 v{Pm+i}, v{Pm+i}")
    a(f"v_pk_add_f32 v[{L}:{L+1}], v[{Pp}:{Pp+1}], v[{Pp+2}:{Pp+3}]"); a(f"v_pk_add_f32 v[{L+2}:{L+3}], v[{Pm}:{Pm+1}], v[{Pm+2}:{Pm+3}]")
    a(f"v_pk_add_f32 v[{L+4}:{L+5}], v[{Pp+4}:{Pp+5}], v[{Pp+6}:{Pp+7}]"); a(f"v_pk_add_f32 v[{L+6}:{L+7}], v[{Pm+4}:{Pm+5}], v[{Pm+6}:{Pm+7}]")
    a(f"v_pk_add_f32 v[{L}:{L+1}], v[{L}:{L+1}], v[{L+4}:{L+5}]"); a(f"v_pk_add_f32 v[{L+2}:{L+3}], v[{L+2}:{L+3}], v[{L+6}:{L+7}]")
    a(f"v_add_f32 v{mx}, v{L}, v{L+1}"); a(f"v_add_f32 v{mn}, v{L+2}, v{L+3}")
    allreduce4(a, "v_add_f32", [mx, mn], [t0, t1])
    a(f"v_rcp_f32 v{B}, v{mx}"); a(f"v_rcp_f32 v{B+1}, v{mn}")
    for i in range(0, 8, 2):
        a(f"v_pk_mul_f32 v[{Pp+i}:{Pp+i+1}], v[{Pp+i}:{Pp+i+1}], v[{B}:{B+1}] op_sel:[0,0] op_sel_hi:[1,0]")
        a(f"v_pk_mul_f32 v[{Pm+i}:{Pm+i+1}], v[{Pm+i}:{Pm+i+1}], v[{B}:{B+1}] op_sel:[0,1] op_sel_hi:[1,1]")
    for i in range(4):
        a(f"v_cvt_pk_bf16_f32 v{E+i}, v{Pp+2*i}, v{Pp+2*i+1}")
        a(f"v_cvt_pk_bf16_f32 v{E+4+i}, v{Pm+2*i}, v{Pm+2*i+1}")

def pack8(a, dst, lo, hi):
    a(f"v_cvt_pk_bf16_f32 v{dst}, v{lo}, v{lo+1}"); a(f"v_cvt_pk_bf16_f32 v{dst+1}, v{lo+2}, v{lo+3}")
    a(f"v_cvt_pk_bf16_f32 v{dst+2}, v{hi}, v{hi+1}"); a(f"v_cvt_pk_bf16_f32 v{dst+3}, v{hi+2}, v{hi+3}")

def epilogue_att(a, E):
    g = lambda k: E[k]
    name, st = g("name"), g("st")
    vLane, vA, vB_, vC, vD = g("vLane"), g("vA"), g("vB_"), g("vC"), g("vD")
    sWQ, sMI, sNJ, t0, t1, t2, t3, SWS, sC = g("sWQ"), g("sMI"), g("sNJ"), g("t0"), g("t1"), g("t2"), g("t3"), g("SWS"), g("sC")
    ACC = g("ACC_A"); vRLd = g("vRLd")
    from s1 import WPHI, PHI_SCR, KV_SCR, MISC
    acc = lambda i, tb: ACC + (i*4+tb)*4
    WP = 32
    a(f"v_lshrrev_b32 v{vA}, 2, v{vLane}"); a(f"v_lshlrev_b32 v{vA}, 6, v{vA}")
    a(f"v_and_b32 v{vB_}, 3, v{vLane}"); a(f"v_lshlrev_b32 v{vB_}, 3, v{vB_}"); a(f"v_add_u32 v{vA}, v{vA}, v{vB_}")
    a(f"v_add_u32 v{vA}, {WPHI}, v{vA}")
    for fb in range(2):
        for sec in range(2):
            r = WP + 4*fb + 2*sec
            a(f"ds_read_b64_tr_b16 v[{r}:{r+1}], v{vA} offset:{sec*1024 + fb*32}")
    a(f"s_lshl_b32 s{t0}, s{sNJ}, 7"); a(f"s_lshl_b32 s{t1}, s{sMI}, 4"); a(f"s_add_u32 s{t0}, s{t0}, s{t1}")
    a(f"s_lshl_b32 s{t1}, s{sWQ}, 2"); a(f"s_add_u32 s{t0}, s{t0}, s{t1}"); a(f"s_lshl_b32 s{t0}, s{t0}, 10"); a(f"s_add_u32 s{t0}, s{t0}, {QBUF_OFF}")
    QF = 40
    for tb in range(4):
        pack8(a, QF+4*tb, acc(0, tb), acc(1, tb))
        a(f"buffer_store_dwordx4 v[{QF+4*tb}:{QF+4*tb+3}], v{vRLd}, s[{SWS}:{SWS+3}], s{t0} offen offset:{tb*1024} {st}")
    KF = 56
    for tb in range(4): pack8(a, KF+4*tb, acc(2, tb), acc(3, tb))
    a("s_waitcnt lgkmcnt(0)")
    LG = acc(0, 0)
    for tb in range(4):
        for fb in range(2):
            d = LG + tb*8 + fb*4
            a(f"v_mfma_f32_16x16x32_bf16 v[{d}:{d+3}], v[{WP+4*fb}:{WP+4*fb+3}], v[{KF+4*tb}:{KF+4*tb+3}], 0")
    VF = 72
    for Pp in range(2):
        for db in range(2):
            pack8(a, VF + (Pp*2+db)*4, acc(4+db, 2*Pp), acc(4+db, 2*Pp+1))
    vPW, vPR = 88, 89
    a(f"v_and_b32 v{vA}, 15, v{vLane}"); a(f"v_lshlrev_b32 v{vA}, 5, v{vA}"); a(f"v_lshrrev_b32 v{vB_}, 4, v{vLane}"); a(f"v_lshlrev_b32 v{vB_}, 3, v{vB_}")
    a(f"v_add_u32 v{vPW}, v{vA}, v{vB_}"); a(f"s_lshl_b32 s{t0}, s{sWQ}, 13"); a(f"s_add_u32 s{t0}, s{t0}, {PHI_SCR}"); a(f"v_add_u32 v{vPW}, s{t0}, v{vPW}")
    a(f"v_lshrrev_b32 v{vA}, 2, v{vLane}"); a(f"v_lshlrev_b32 v{vA}, 5, v{vA}"); a(f"v_and_b32 v{vB_}, 3, v{vLane}"); a(f"v_lshlrev_b32 v{vB_}, 3, v{vB_}")
    a(f"v_add_u32 v{vPR}, v{vA}, v{vB_}"); a(f"v_add_u32 v{vPR}, s{t0}, v{vPR}")
    PH = 90
    TMP = acc(2, 0)
    for tb in range(4):
        softmax_pm(a, LG + tb*8, PH, TMP, sC)
        for sg in range(2):
            for fb in range(2):
                r = PH + 4*sg + 2*fb
                a(f"ds_write_b64 v{vPW}, v[{r}:{r+1}] offset:{(2*sg+fb)*2048 + tb*512}")
    a("s_waitcnt lgkmcnt(0)")
    PF = acc(0, 0)
    for Pp in range(2):
        for sg in range(2):
            for fb in range(2):
                r = PF + ((Pp*2+sg)*2+fb)*4
                for sec in range(2):
                    a(f"ds_read_b64_tr_b16 v[{r+2*sec}:{r+2*sec+1}], v{vPR} offset:{(2*sg+fb)*2048 + (2*Pp+sec)*512}")
    ONE = 98
    for i in range(4): a(f"v_mov_b32 v{ONE+i}, 0x3f803f80")
    KV = acc(2, 0)
    a("s_waitcnt lgkmcnt(0)")
    for Pp in range(2):
        for sg in range(2):
            for fb in range(2):
                pf = PF + ((Pp*2+sg)*2+fb)*4
                for db in range(3):
                    d = KV + ((sg*2+fb)*3+db)*4
                    b = (VF + (Pp*2+db)*4) if db < 2 else ONE
                    cin = "0" if Pp == 0 else f"v[{d}:{d+3}]"
                    a(f"v_mfma_f32_16x16x32_bf16 v[{d}:{d+3}], v[{pf}:{pf+3}], v[{b}:{b+3}], {cin}")
    a(f"s_mul_i32 s{t0}, s{sWQ}, 12288"); a(f"s_add_u32 s{t0}, s{t0}, {KV_SCR}")
    a(f"v_add_u32 v{vA}, s{t0}, v{vRLd}")
    for b in range(12):
        a(f"ds_write_b128 v{vA}, v[{KV+4*b}:{KV+4*b+3}] offset:{b*1024}")
    a("s_waitcnt lgkmcnt(0)")
    a(f"v_mov_b32 v{vB_}, {MISC}"); a(f"v_mov_b32 v{vC}, 1")
    a(f"s_mov_b64 s[{t2}:{t3}], exec"); a("s_mov_b64 exec, 1")
    a(f"ds_add_u32 v{vB_}, v{vC}")
    a(f"s_mov_b64 exec, s[{t2}:{t3}]")
    a(f"s_mov_b32 s{t1}, 0")
    a.label(f"L_{name}_kvspin")
    a(f"ds_read_b32 v{vC}, v{vB_}")
    a("s_waitcnt lgkmcnt(0)")
    a(f"v_readfirstlane_b32 s{t0}, v{vC}")
    a(f"s_add_u32 s{t1}, s{t1}, 1")
    a(f"s_cmp_ge_u32 s{t1}, {SPIN_MAX}")
    a(f"s_cbranch_scc1 L_{name}_kvgo")
    a(f"s_cmp_lt_u32 s{t0}, 4")
    a(f"s_cbranch_scc1 L_{name}_kvspin")
    a.label(f"L_{name}_kvgo")
    a(f"s_mul_i32 s{t0}, s{sWQ}, 3072"); a(f"s_add_u32 s{t0}, s{t0}, {KV_SCR}")
    a(f"v_add_u32 v{vA}, s{t0}, v{vRLd}")
    R = 32
    for w in range(4):
        for b in range(3):
            r = R + (w*3+b)*4
            a(f"ds_read_b128 v[{r}:{r+3}], v{vA} offset:{w*12288 + b*1024}")
    a("s_waitcnt lgkmcnt(0)")
    for b in range(3):
        for hlf in range(2):
            r = R + b*4 + 2*hlf
            a(f"v_pk_add_f32 v[{r}:{r+1}], v[{r}:{r+1}], v[{r+12}:{r+13}]")
            a(f"v_pk_add_f32 v[{r+24}:{r+25}], v[{r+24}:{r+25}], v[{r+36}:{r+37}]")
            a(f"v_pk_add_f32 v[{r}:{r+1}], v[{r}:{r+1}], v[{r+24}:{r+25}]")
    a(f"s_lshl_b32 s{t0}, s{sMI}, 5"); a(f"s_add_u32 s{t0}, s{t0}, s{sNJ}"); a(f"s_mul_i32 s{t0}, s{t0}, 12288")
    a(f"s_mul_i32 s{t1}, s{sWQ}, 3072"); a(f"s_add_u32 s{t0}, s{t0}, s{t1}"); a(f"s_add_u32 s{t0}, s{t0}, {KVP_OFF}")
    for b in range(3):
        a(f"buffer_store_dwordx4 v[{R+4*b}:{R+4*b+3}], v{vRLd}, s[{SWS}:{SWS+3}], s{t0} offen offset:{b*1024} {st}")

def epilogue_gmlp(a, E):
    g = lambda k: E[k]
    name, st, P = g("name"), g("st"), g("P")
    vLane, vA, vB_, vC, vD = g("vLane"), g("vA"), g("vB_"), g("vC"), g("vD")
    sWQ, sMI, sNJ, t0, t1, t2, t3, SWS, sC, pDBG, ST = g("sWQ"), g("sMI"), g("sNJ"), g("t0"), g("t1"), g("t2"), g("t3"), g("SWS"), g("sC"), g("pDBG"), g("ST")
    ACC = g("ACC_G"); vRLd = g("vRLd"); sIT = g("sIT")
    from s1 import MISC
    acc = lambda i, tb: ACC + (i*4+tb)*4
    c1 = -2.0*0.7978845608028654*LOG2E; c3 = c1*0.044715
    CP = 32
    a(f"v_mov_b32 v{CP}, {f2h(c3)}"); a(f"v_mov_b32 v{CP+1}, {f2h(c1)}")
    TM = 34
    pairs = [ACC + 2*i for i in range(56)]
    for k in range(0, 56, 4):
        ps = pairs[k:k+4]; ts = [TM + 2*i for i in range(4)]
        for p, t in zip(ps, ts): a(f"v_pk_mul_f32 v[{t}:{t+1}], v[{p}:{p+1}], v[{p}:{p+1}]")
        for p, t in zip(ps, ts): a(f"v_pk_fma_f32 v[{t}:{t+1}], v[{t}:{t+1}], v[{CP}:{CP+1}], v[{CP}:{CP+1}] op_sel:[0,0,1] op_sel_hi:[1,0,1]")
        for p, t in zip(ps, ts): a(f"v_pk_mul_f32 v[{t}:{t+1}], v[{t}:{t+1}], v[{p}:{p+1}]")
        for p, t in zip(ps, ts): a(f"v_exp_f32 v{t}, v{t}"); a(f"v_exp_f32 v{t+1}, v{t+1}")
        for p, t in zip(ps, ts): a(f"v_pk_add_f32 v[{t}:{t+1}], v[{t}:{t+1}], s[{sC}:{sC+1}]")
        for p, t in zip(ps, ts): a(f"v_rcp_f32 v{t}, v{t}"); a(f"v_rcp_f32 v{t+1}, v{t+1}")
        for p, t in zip(ps, ts): a(f"v_pk_mul_f32 v[{p}:{p+1}], v[{p}:{p+1}], v[{t}:{t+1}]")
    a(f"s_cmp_lt_u32 s{sNJ}, 16")
    a(f"s_cbranch_scc1 L_{name}_gstore")
    S = 34; Q = 42
    for tb in range(4):
        x = acc(0, tb)
        a(f"v_pk_add_f32 v[{S+2*tb}:{S+2*tb+1}], v[{x}:{x+1}], v[{x+2}:{x+3}]")
        a(f"v_pk_mul_f32 v[{Q+2*tb}:{Q+2*tb+1}], v[{x}:{x+1}], v[{x}:{x+1}]")
    for i in range(7):
        for hlf in range(2):
            if i == 0 and hlf == 0: continue
            for tb in range(4):
                x = acc(i, tb) + 2*hlf
                if not (i == 0): a(f"v_pk_add_f32 v[{S+2*tb}:{S+2*tb+1}], v[{S+2*tb}:{S+2*tb+1}], v[{x}:{x+1}]")
                a(f"v_pk_fma_f32 v[{Q+2*tb}:{Q+2*tb+1}], v[{x}:{x+1}], v[{x}:{x+1}], v[{Q+2*tb}:{Q+2*tb+1}]")
    for tb in range(4):
        a(f"v_add_f32 v{S+2*tb}, v{S+2*tb}, v{S+2*tb+1}"); a(f"v_add_f32 v{Q+2*tb}, v{Q+2*tb}, v{Q+2*tb+1}")
    for B in (S, Q):
        a(f"v_permlane16_swap_b32 v{B}, v{B+2}"); a(f"v_permlane16_swap_b32 v{B+4}, v{B+6}")
        a(f"v_add_f32 v{B}, v{B}, v{B+2}"); a(f"v_add_f32 v{B+4}, v{B+4}, v{B+6}")
        a(f"v_permlane32_swap_b32 v{B}, v{B+4}")
        a(f"v_add_f32 v{B}, v{B}, v{B+4}")
    a(f"v_mov_b32 v{S+1}, v{Q}")
    a(f"s_lshl_b32 s{t0}, s{sMI}, 4"); a(f"s_add_u32 s{t0}, s{t0}, s{sNJ}"); a(f"s_sub_u32 s{t0}, s{t0}, 16"); a(f"s_lshl_b32 s{t0}, s{t0}, 11")
    a(f"s_lshl_b32 s{t1}, s{sWQ}, 9"); a(f"s_add_u32 s{t0}, s{t0}, s{t1}"); a(f"s_add_u32 s{t0}, s{t0}, {STAT_OFF}")
    a(f"v_lshlrev_b32 v{vD}, 3, v{vLane}")
    a(f"buffer_store_dwordx2 v[{S}:{S+1}], v{vD}, s[{SWS}:{SWS+3}], s{t0} offen sc1")
    srd(a, ST, pDBG, 0, 256)
    a("s_waitcnt vmcnt(0)")
    a(f"v_mov_b32 v{vB_}, {MISC+4}"); a(f"v_mov_b32 v{vC}, 1")
    a(f"s_mov_b64 s[{t2}:{t3}], exec"); a("s_mov_b64 exec, 1")
    a(f"ds_add_rtn_u32 v{vA}, v{vB_}, v{vC}")
    a("s_waitcnt lgkmcnt(0)")
    a(f"v_readfirstlane_b32 s{t0}, v{vA}")
    a(f"s_cmp_eq_u32 s{t0}, 3")
    a(f"s_cbranch_scc0 L_{name}_lnwait")
    a(f"s_lshl_b32 s{t1}, s{sMI}, 5")
    a(f"v_mov_b32 v{vA}, 0")
    a(f"buffer_atomic_add v{vC}, v{vA}, s[{ST}:{ST+3}], s{t1} offen sc1")
    a(f"s_mov_b32 s{sIT}, 0")
    a.label(f"L_{name}_lnpoll")
    a(f"buffer_load_dword v{vD}, v{vA}, s[{ST}:{ST+3}], s{t1} offen sc1")
    a("s_waitcnt vmcnt(0)")
    a(f"v_readfirstlane_b32 s{t0}, v{vD}")
    a(f"s_add_u32 s{sIT}, s{sIT}, 1")
    a(f"s_cmp_ge_u32 s{sIT}, {SPIN_MAX}")
    a(f"s_cbranch_scc1 L_{name}_lnok")
    a(f"s_cmp_ge_u32 s{t0}, 16")
    a(f"s_cbranch_scc1 L_{name}_lnok")
    a("s_sleep 2")
    a(f"s_branch L_{name}_lnpoll")
    a.label(f"L_{name}_lnok")
    a(f"v_mov_b32 v{vB_}, {MISC+8}")
    a(f"ds_write_b32 v{vB_}, v{vC}")
    a("s_waitcnt lgkmcnt(0)")
    a.label(f"L_{name}_lnwait")
    a(f"v_mov_b32 v{vB_}, {MISC+8}")
    a(f"s_mov_b32 s{sIT}, 0")
    a.label(f"L_{name}_lnspin")
    a(f"ds_read_b32 v{vA}, v{vB_}")
    a("s_waitcnt lgkmcnt(0)")
    a(f"v_readfirstlane_b32 s{t0}, v{vA}")
    a(f"s_add_u32 s{sIT}, s{sIT}, 1")
    a(f"s_cmp_ge_u32 s{sIT}, {SPIN_MAX}")
    a(f"s_cbranch_scc1 L_{name}_lngo")
    a(f"s_cmp_eq_u32 s{t0}, 1")
    a(f"s_cbranch_scc1 L_{name}_lngo")
    a("s_sleep 1")
    a(f"s_branch L_{name}_lnspin")
    a.label(f"L_{name}_lngo")
    a(f"s_mov_b64 exec, s[{t2}:{t3}]")
    a(f"s_lshl_b32 s{t0}, s{sMI}, 15"); a(f"s_lshl_b32 s{t1}, s{sWQ}, 9"); a(f"s_add_u32 s{t0}, s{t0}, s{t1}"); a(f"s_add_u32 s{t0}, s{t0}, {STAT_OFF}")
    a(f"v_lshlrev_b32 v{vD}, 3, v{vLane}")
    Gt = 34
    for j in range(16):
        a(f"buffer_load_dwordx2 v[{Gt+2*j}:{Gt+2*j+1}], v{vD}, s[{SWS}:{SWS+3}], s{t0} offen sc1")
        a(f"s_add_u32 s{t0}, s{t0}, 2048")
    a("s_waitcnt vmcnt(0)")
    for hlf in (8, 4, 2, 1):
        for j in range(hlf):
            a(f"v_pk_add_f32 v[{Gt+2*j}:{Gt+2*j+1}], v[{Gt+2*j}:{Gt+2*j+1}], v[{Gt+2*(j+hlf)}:{Gt+2*(j+hlf)+1}]")
    M = Gt + 2
    a(f"v_mul_f32 v{Gt}, {f2h(1.0/1792)}, v{Gt}")
    a(f"v_mul_f32 v{Gt+1}, {f2h(1.0/1792)}, v{Gt+1}")
    a(f"v_fma_f32 v{M}, -v{Gt}, v{Gt}, v{Gt+1}")
    a(f"v_max_f32 v{M}, 0, v{M}")
    a(f"v_add_f32 v{M}, {f2h(1e-5)}, v{M}")
    a(f"v_rsq_f32 v{M}, v{M}")
    a(f"v_mul_f32 v{M+1}, v{Gt}, v{M}"); a(f"v_sub_f32 v{M+1}, 0, v{M+1}")
    N = 40
    a(f"v_and_b32 v{vA}, 15, v{vLane}"); a(f"v_lshlrev_b32 v{vA}, 2, v{vA}")
    for tb in range(4):
        a(f"v_add_u32 v{vB_}, {64*tb}, v{vA}")
        a(f"ds_bpermute_b32 v{N+2*tb}, v{vB_}, v{M}"); a(f"ds_bpermute_b32 v{N+2*tb+1}, v{vB_}, v{M+1}")
    a("s_waitcnt lgkmcnt(0)")
    for i in range(7):
        for tb in range(4):
            for hlf in range(2):
                x = acc(i, tb) + 2*hlf
                a(f"v_pk_fma_f32 v[{x}:{x+1}], v[{x}:{x+1}], v[{N+2*tb}:{N+2*tb+1}], v[{N+2*tb}:{N+2*tb+1}] op_sel:[0,0,1] op_sel_hi:[1,0,1]")
    P.stamp(3) if False else None
    a.label(f"L_{name}_gstore")
    a(f"s_lshl_b32 s{t0}, s{sMI}, 3"); a(f"s_lshl_b32 s{t1}, s{sWQ}, 1"); a(f"s_add_u32 s{t0}, s{t0}, s{t1}"); a(f"s_mul_i32 s{t0}, s{t0}, 112")
    a(f"s_and_b32 s{t1}, s{sNJ}, 15"); a(f"s_mul_i32 s{t1}, s{t1}, 7"); a(f"s_add_u32 s{t0}, s{t0}, s{t1}"); a(f"s_lshl_b32 s{t0}, s{t0}, 10")
    a(f"s_cmp_lt_u32 s{sNJ}, 16"); a(f"s_cselect_b32 s{t1}, 0, {Z2_OFF - Z1_OFF}"); a(f"s_add_u32 s{t0}, s{t0}, s{t1}"); a(f"s_add_u32 s{t0}, s{t0}, {Z1_OFF}")
    O = 32
    k = 0
    for Pp in range(2):
        for i in range(7):
            r = O + 4*(k % 8); k += 1
            pack8(a, r, acc(i, 2*Pp), acc(i, 2*Pp+1))
            if i % 4 == 0 and i > 0 or (i == 0 and Pp == 1): pass
            a(f"buffer_store_dwordx4 v[{r}:{r+3}], v{vRLd}, s[{SWS}:{SWS+3}], s{t0} offen offset:{(i % 4)*1024} {st}")
            if i == 3: a(f"s_add_u32 s{t0}, s{t0}, 4096")
            if i == 6: a(f"s_add_u32 s{t0}, s{t0}, {112*1024 - 4096}")
```

```python
from asmlib import *
from common import *
from s1_epi import softmax_pm, pack8, f2h, LOG2E

SLOT = 32768
def gen_s2(name="s2_kernel", prof=False, st="sc1", R=4):
    a = Asm()
    P = Prof(a, prof, base=76, n=4)
    NS = 32
    pPHI, pWSP, pBSP, pWS = 4, 6, 8, 10
    SX, SZ, SWS, SB = 12, 16, 20, 24
    sW, sTH, sFH, sKH, sTB, sFB, sIT = 28, 29, 30, 31, 32, 33, 34
    sKX, sKZ, sMx, sMz = 35, 36, 37, 38
    t0, t1, t2, t3 = 40, 41, 42, 43
    sC = 44
    vLane, vA, vB_, vC, vD = 1, 2, 3, 4, 5
    vXs = [6, 7]; vZs = [8, 9]
    vXr = [10, 11]; vZr = [12, 13]
    vL16 = 14
    vG = [16, 17]; vBs = [18, 19]
    XF, ZF = 32, 64
    ACC = 96
    Z1R = 160
    a("s_cmp_ge_u32 s2, 256")
    a(f"s_cbranch_scc1 L_{name}_end")
    P.stamp(0)
    a(f"s_load_dwordx2 s[{pPHI}:{pPHI+1}], s[0:1], {KA_WPHI}")
    a(f"s_load_dwordx2 s[{pWSP}:{pWSP+1}], s[0:1], {KA_WSP}")
    a(f"s_load_dwordx2 s[{pBSP}:{pBSP+1}], s[0:1], {KA_BSP}")
    a(f"s_load_dwordx2 s[{pWS}:{pWS+1}], s[0:1], {KA_WS}")
    a(f"v_lshrrev_b32 v{vA}, 6, v0")
    a(f"v_and_b32 v{vLane}, 63, v0")
    a(f"v_readfirstlane_b32 s{sW}, v{vA}")
    a(f"v_lshlrev_b32 v{vL16}, 4, v{vLane}")
    a(f"s_and_b32 s{t0}, s2, 7"); a(f"s_lshr_b32 s{t1}, s2, 3")
    a(f"s_mov_b32 s{sC}, 1.0"); a(f"s_mov_b32 s{sC+1}, 1.0")
    a("s_waitcnt lgkmcnt(0)")
    srd(a, SWS, pWS, 0, WS_USED)
    a(f"s_cmp_ge_u32 s{t1}, 28")
    a(f"s_cbranch_scc1 L_{name}_att")
    a(f"s_lshr_b32 s{t2}, s{t0}, 1"); a(f"s_lshl_b32 s{t2}, s{t2}, 2"); a(f"s_and_b32 s{t3}, s{t1}, 3"); a(f"s_add_u32 s{sTB}, s{t2}, s{t3}")
    a(f"s_and_b32 s{t2}, s{t0}, 1"); a(f"s_mul_i32 s{t2}, s{t2}, 7"); a(f"s_lshr_b32 s{t3}, s{t1}, 2"); a(f"s_add_u32 s{sFB}, s{t2}, s{t3}")
    a(f"s_and_b32 s{sTH}, s{sW}, 1"); a(f"s_bfe_u32 s{sFH}, s{sW}, 0x10001"); a(f"s_lshr_b32 s{sKH}, s{sW}, 2")
    srd(a, SX, pWSP, 0, 2048*4096)
    srd(a, SZ, pWS, Z2_OFF, Z2_SZ)
    srd(a, SB, pBSP, 0, 4096)
    def hswz(dst, u, tmp):
        a(f"v_lshrrev_b32 v{tmp}, 1, v{u}"); a(f"v_lshrrev_b32 v{dst}, 2, v{u}"); a(f"v_xor_b32 v{tmp}, v{tmp}, v{dst}"); a(f"v_and_b32 v{tmp}, 1, v{tmp}")
        a(f"v_and_b32 v{dst}, 1, v{u}"); a(f"v_lshl_or_b32 v{tmp}, v{dst}, 1, v{tmp}"); a(f"v_and_b32 v{dst}, 4, v{u}"); a(f"v_or_b32 v{dst}, v{dst}, v{tmp}")
    for e in range(2):
        a(f"v_lshrrev_b32 v{vA}, 4, v{vLane}"); a(f"v_add_u32 v{vA}, {4*e}, v{vA}")
        hswz(vB_, vA, vC)
        a(f"v_and_b32 v{vA}, 7, v{vLane}"); a(f"v_xor_b32 v{vA}, v{vA}, v{vB_}"); a(f"v_lshlrev_b32 v{vA}, 4, v{vA}")
        a(f"v_lshrrev_b32 v{vB_}, 3, v{vLane}")
        a(f"s_lshl_b32 s{t2}, s{sTB}, 7"); a(f"s_lshl_b32 s{t3}, s{sW}, 4"); a(f"s_add_u32 s{t2}, s{t2}, s{t3}"); a(f"s_add_u32 s{t2}, s{t2}, {8*e}")
        a(f"v_add_u32 v{vB_}, s{t2}, v{vB_}"); a(f"v_lshlrev_b32 v{vB_}, 12, v{vB_}"); a(f"v_add_u32 v{vXs[e]}, v{vB_}, v{vA}")
    a(f"v_bfe_u32 v{vA}, v{vLane}, 2, 2"); a(f"v_lshlrev_b32 v{vA}, 8, v{vA}")
    a(f"v_lshrrev_b32 v{vB_}, 4, v{vLane}"); a(f"v_lshlrev_b32 v{vB_}, 6, v{vB_}"); a(f"v_add_u32 v{vA}, v{vA}, v{vB_}")
    a(f"v_and_b32 v{vB_}, 3, v{vLane}"); a(f"v_lshlrev_b32 v{vB_}, 4, v{vB_}"); a(f"v_add_u32 v{vA}, v{vA}, v{vB_}")
    a(f"s_mul_i32 s{t2}, s{sKH}, 112"); a(f"s_lshl_b32 s{t3}, s{sFB}, 3"); a(f"s_add_u32 s{t2}, s{t2}, s{t3}")
    a(f"s_and_b32 s{t3}, s{sW}, 3"); a(f"s_lshl_b32 s{t3}, s{t3}, 1"); a(f"s_add_u32 s{t2}, s{t2}, s{t3}"); a(f"s_lshl_b32 s{t2}, s{t2}, 10")
    a(f"v_add_u32 v{vZs[0]}, s{t2}, v{vA}"); a(f"v_add_u32 v{vZs[1]}, 1024, v{vZs[0]}")
    a(f"s_lshl_b32 s{sMx}, s{sW}, 11"); a(f"s_add_u32 s{sMz}, s{sMx}, 16384")
    a(f"s_mov_b32 s{sKX}, 0"); a(f"s_mov_b32 s{sKZ}, 0")
    vm = VmTracker()
    def dma(tile):
        slot = tile % R; out = []
        for e in range(2):
            vm.issue(("T", tile, e))
            out.append([f"s_add_u32 m0, s{sMx}, {slot*SLOT + e*1024}", f"buffer_load_dwordx4 v{vXs[e]}, s[{SX}:{SX+3}], s{sKX} offen lds"])
        for e in range(2):
            vm.issue(("T", tile, 2+e))
            out.append([f"s_add_u32 m0, s{sMz}, {slot*SLOT + e*1024}", f"buffer_load_dwordx4 v{vZs[e]}, s[{SZ}:{SZ+3}], s{sKZ} offen lds"])
        out[-1] += [f"s_add_u32 s{sKX}, s{sKX}, 128", f"s_add_u32 s{sKZ}, s{sKZ}, {2*112*1024}"]
        return out
    for tile in range(R):
        for g_ in dma(tile):
            for l in g_: a(l)
    a(f"s_lshl_b32 s{t2}, s{sTB}, 7"); a(f"s_lshl_b32 s{t3}, s{sTH}, 6"); a(f"s_add_u32 s{t2}, s{t2}, s{t3}"); a(f"s_lshl_b32 s{t3}, s{sKH}, 5"); a(f"s_add_u32 s{t2}, s{t2}, s{t3}")
    a(f"v_and_b32 v{vA}, 15, v{vLane}"); a(f"v_add_u32 v{vA}, s{t2}, v{vA}")
    a(f"v_lshlrev_b32 v{vB_}, 2, v{vA}"); a(f"v_add_u32 v{vB_}, {GATE_OFF}, v{vB_}"); a(f"v_lshlrev_b32 v{vC}, 1, v{vA}")
    for ii in range(2):
        a(f"buffer_load_dword v{vG[ii]}, v{vB_}, s[{SWS}:{SWS+3}], 0 offen offset:{64*ii}"); vm.issue(("g", ii))
        a(f"buffer_load_ushort v{vBs[ii]}, v{vC}, s[{SB}:{SB+3}], 0 offen offset:{32*ii}"); vm.issue(("b", ii))
    a(f"s_lshl_b32 s{t2}, s{sTB}, 2"); a(f"s_lshl_b32 s{t3}, s{sTH}, 1"); a(f"s_add_u32 s{t2}, s{t2}, s{t3}"); a(f"s_add_u32 s{t2}, s{t2}, s{sKH}"); a(f"s_mul_i32 s{t2}, s{t2}, 112")
    a(f"s_lshl_b32 s{t3}, s{sFB}, 3"); a(f"s_add_u32 s{t2}, s{t2}, s{t3}"); a(f"s_lshl_b32 s{t3}, s{sFH}, 2"); a(f"s_add_u32 s{t2}, s{t2}, s{t3}")
    a(f"s_lshl_b32 s{t2}, s{t2}, 10"); a(f"s_add_u32 s{t2}, s{t2}, {Z1_OFF}")
    for i2 in range(4):
        a(f"buffer_load_dwordx4 v[{Z1R+4*i2}:{Z1R+4*i2+3}], v{vL16}, s[{SWS}:{SWS+3}], s{t2} offen offset:{1024*i2}"); vm.issue(("z1", i2))
    a(f"v_and_b32 v{vA}, 15, v{vLane}"); a(f"v_lshrrev_b32 v{vD}, 1, v{vA}")
    hswz(vB_, vD, vC)
    a(f"v_lshrrev_b32 v{vC}, 4, v{vLane}")
    a(f"v_and_b32 v{vD}, 1, v{vC}"); a(f"v_lshlrev_b32 v{vD}, 1, v{vD}"); a(f"v_lshrrev_b32 v{vC}, 1, v{vC}"); a(f"v_or_b32 v{vC}, v{vC}, v{vD}")
    a(f"s_lshl_b32 s{t2}, s{sKH}, 2"); a(f"v_or_b32 v{vC}, s{t2}, v{vC}"); a(f"v_xor_b32 v{vC}, v{vC}, v{vB_}"); a(f"v_lshlrev_b32 v{vC}, 4, v{vC}")
    a(f"v_lshlrev_b32 v{vA}, 7, v{vA}"); a(f"v_add_u32 v{vA}, v{vA}, v{vC}"); a(f"s_lshl_b32 s{t2}, s{sTH}, 13"); a(f"v_add_u32 v{vXr[0]}, s{t2}, v{vA}")
    a(f"v_add_u32 v{vXr[1]}, 65536, v{vXr[0]}")
    a(f"v_lshrrev_b32 v{vA}, 5, v{vLane}"); a(f"v_lshlrev_b32 v{vA}, 9, v{vA}")
    a(f"v_and_b32 v{vB_}, 3, v{vLane}"); a(f"v_lshlrev_b32 v{vB_}, 6, v{vB_}"); a(f"v_add_u32 v{vA}, v{vA}, v{vB_}")
    a(f"v_bfe_u32 v{vB_}, v{vLane}, 2, 2"); a(f"v_lshlrev_b32 v{vB_}, 4, v{vB_}"); a(f"v_add_u32 v{vA}, v{vA}, v{vB_}")
    a(f"v_bfe_u32 v{vB_}, v{vLane}, 4, 1"); a(f"v_lshlrev_b32 v{vB_}, 3, v{vB_}"); a(f"v_add_u32 v{vA}, v{vA}, v{vB_}")
    a(f"s_lshl_b32 s{t2}, s{sKH}, 13"); a(f"s_lshl_b32 s{t3}, s{sFH}, 12"); a(f"s_add_u32 s{t2}, s{t2}, s{t3}"); a(f"s_add_u32 s{t2}, s{t2}, 16384")
    a(f"v_add_u32 v{vZr[0]}, s{t2}, v{vA}"); a(f"v_add_u32 v{vZr[1]}, 65536, v{vZr[0]}")
    for i in range(64): a(f"v_mov_b32 v{ACC+i}, 0")
    def reads(step):
        slot = step % R; hi = slot >> 1; off = (slot & 1)*SLOT
        xb = XF + (step % 2)*16; zb = ZF + (step % 2)*16
        out = [f"ds_read_b128 v[{xb+4*i}:{xb+4*i+3}], v{vXr[hi]} offset:{off + i*2048}" for i in range(4)]
        for i2 in range(4):
            for sec in range(2):
                r = zb + 4*i2 + 2*sec
                out.append(f"ds_read_b64_tr_b16 v[{r}:{r+1}], v{vZr[hi]} offset:{off + i2*1024 + sec*256}")
        return out
    def mfmas(step):
        xb = XF + (step % 2)*16; zb = ZF + (step % 2)*16; out = []
        for i2 in range(4):
            for i in range(4):
                c = ACC + (i2*4+i)*4
                out.append(f"v_mfma_f32_16x16x32_bf16 v[{c}:{c+3}], v[{zb+4*i2}:{zb+4*i2+3}], v[{xb+4*i}:{xb+4*i+3}], v[{c}:{c+3}]")
        return out
    a(f"s_waitcnt vmcnt({vm.need([('T', 0, e) for e in range(4)] + [('T', 1, e) for e in range(4)])})")
    a("s_barrier")
    P.stamp(1)
    for l in reads(0): a(l)
    a("s_waitcnt lgkmcnt(0)")
    a("s_barrier")
    steps = []
    for s in range(NS):
        m = mfmas(s); nm = len(m)
        rd = reads(s+1) if s + 1 < NS else []
        dm = dma(s + R) if s + R < NS else []
        slots = [[] for _ in range(nm)]
        for k, x in enumerate(rd): slots[min(nm-1, (k*(nm-3))//len(rd))].append(x)
        for k, g_ in enumerate(dm):
            pos = 1 + 3*k
            slots[pos-1].append(g_[0]); slots[pos] = g_[1:] + slots[pos]
        seq = []
        for k in range(nm): seq.append(m[k]); seq += slots[k]
        if s + 1 < NS:
            need = [("T", s+2, e) for e in range(4)] if s + 2 < NS else []
            seq.append(f"s_waitcnt vmcnt({vm.need(need)}) lgkmcnt(0)" if need else "s_waitcnt lgkmcnt(0)")
            seq.append("s_barrier")
        steps.append(seq)
    n_iter = (NS - R)//R
    fold_loop(a, steps, 0, n_iter, R, f"L_{name}_loop", sIT)
    for s in range(n_iter*R, NS):
        for l in steps[s]: a(l)
    P.stamp(2)
    acc = lambda i2, i: ACC + (i2*4+i)*4
    a(f"s_lshl_b32 s{t2}, s{sW}, 13"); a(f"v_add_u32 v{vA}, s{t2}, v{vL16}")
    a(f"s_xor_b32 s{t2}, s{sW}, 4"); a(f"s_lshl_b32 s{t2}, s{t2}, 13"); a(f"v_add_u32 v{vB_}, s{t2}, v{vL16}")
    KEEP = 32
    a(f"s_cmp_eq_u32 s{sKH}, 0")
    a(f"s_cbranch_scc0 L_{name}_k1")
    for kh in range(2):
        if kh == 1: a.label(f"L_{name}_k1")
        for i2 in range(4):
            for ii in range(2):
                r = acc(i2, 2*(1-kh)+ii)
                a(f"ds_write_b128 v{vA}, v[{r}:{r+3}] offset:{(i2*2+ii)*1024}")
        for i2 in range(4):
            for ii in range(2):
                r = acc(i2, 2*kh+ii); d = KEEP + (i2*2+ii)*4
                for q in range(4): a(f"v_mov_b32 v{d+q}, v{r+q}")
        if kh == 0: a(f"s_branch L_{name}_kj")
    a.label(f"L_{name}_kj")
    a("s_waitcnt lgkmcnt(0)")
    a("s_barrier")
    RX = 64
    for b in range(8): a(f"ds_read_b128 v[{RX+4*b}:{RX+4*b+3}], v{vB_} offset:{b*1024}")
    a("s_waitcnt vmcnt(0)")
    SC = 20
    for ii in range(2):
        a(f"v_sub_f32 v{SC+2*ii}, 1.0, v{vG[ii]}"); a(f"v_lshlrev_b32 v{vBs[ii]}, 16, v{vBs[ii]}"); a(f"v_mul_f32 v{SC+2*ii+1}, v{vBs[ii]}, v{SC+2*ii}")
    a("s_waitcnt lgkmcnt(0)")
    for b in range(8):
        for q in (0, 2):
            a(f"v_pk_add_f32 v[{KEEP+4*b+q}:{KEEP+4*b+q+1}], v[{KEEP+4*b+q}:{KEEP+4*b+q+1}], v[{RX+4*b+q}:{RX+4*b+q+1}]")
    TZ = 24
    for i2 in range(4):
        for ii in range(2):
            k = KEEP + (i2*2+ii)*4
            for q in range(2):
                z = Z1R + 4*i2 + 2*ii + q
                a(f"v_pk_fma_f32 v[{k+2*q}:{k+2*q+1}], v[{k+2*q}:{k+2*q+1}], v[{SC+2*ii}:{SC+2*ii+1}], v[{SC+2*ii}:{SC+2*ii+1}] op_sel:[0,0,1] op_sel_hi:[1,0,1]")
                a(f"v_lshlrev_b32 v{TZ+2*q}, 16, v{z}"); a(f"v_and_b32 v{TZ+2*q+1}, 0xffff0000, v{z}")
                a(f"v_pk_mul_f32 v[{k+2*q}:{k+2*q+1}], v[{k+2*q}:{k+2*q+1}], v[{TZ+2*q}:{TZ+2*q+1}]")
    a(f"s_lshl_b32 s{t2}, s{sTB}, 3"); a(f"s_lshl_b32 s{t3}, s{sTH}, 2"); a(f"s_add_u32 s{t2}, s{t2}, s{t3}"); a(f"s_lshl_b32 s{t3}, s{sKH}, 1"); a(f"s_add_u32 s{t2}, s{t2}, s{t3}")
    a(f"s_mul_i32 s{t2}, s{t2}, {NKB}"); a(f"s_lshl_b32 s{t3}, s{sFB}, 2"); a(f"s_add_u32 s{t2}, s{t2}, s{t3}"); a(f"s_lshl_b32 s{t3}, s{sFH}, 1"); a(f"s_add_u32 s{t2}, s{t2}, s{t3}")
    a(f"s_add_u32 s{t2}, s{t2}, 32"); a(f"s_lshl_b32 s{t2}, s{t2}, 10"); a(f"s_add_u32 s{t2}, s{t2}, {ACAT_OFF}")
    O = 64
    for ii in range(2):
        for pr in range(2):
            r = O + (ii*2+pr)*4
            pack8(a, r, KEEP + ((2*pr)*2+ii)*4, KEEP + ((2*pr+1)*2+ii)*4)
            a(f"buffer_store_dwordx4 v[{r}:{r+3}], v{vL16}, s[{SWS}:{SWS+3}], s{t2} offen offset:{pr*1024} {st}")
        if ii == 0: a(f"s_add_u32 s{t2}, s{t2}, {NKB*1024}")
    a(f"s_branch L_{name}_fin")

    a.label(f"L_{name}_att")
    sH = sTB
    a(f"s_lshl_b32 s{t0}, s{t0}, 2"); a(f"s_sub_u32 s{t1}, s{t1}, 28"); a(f"s_add_u32 s{sH}, s{t0}, s{t1}")
    srd(a, SB, pPHI, 0, 65536)
    WPHI, KVS = 0, 2048
    a(f"s_and_b32 s{t0}, s{sW}, 1"); a(f"s_lshl_b32 s{t0}, s{t0}, 10"); a(f"s_lshl_b32 s{t1}, s{sH}, 11"); a(f"s_add_u32 s{t1}, s{t1}, s{t0}")
    a(f"s_add_u32 m0, s{t0}, {WPHI}")
    a(f"buffer_load_dwordx4 v{vL16}, s[{SB}:{SB+3}], s{t1} offen lds")
    QR = 112
    GR = 128
    sQ, sGo, sO = sKX, sKZ, sMx
    a(f"s_lshl_b32 s{sQ}, s{sH}, 7"); a(f"s_lshl_b32 s{t0}, s{sW}, 4"); a(f"s_add_u32 s{sQ}, s{sQ}, s{t0}"); a(f"s_lshl_b32 s{sQ}, s{sQ}, 10"); a(f"s_add_u32 s{sQ}, s{sQ}, {QBUF_OFF}")
    a(f"s_lshl_b32 s{sGo}, s{sW}, 10"); a(f"s_add_u32 s{sGo}, s{sGo}, {GATE_OFF}")
    a(f"v_and_b32 v{vD}, 15, v{vLane}"); a(f"v_lshlrev_b32 v{vD}, 2, v{vD}")
    a(f"s_lshl_b32 s{sO}, s{sW}, 4"); a(f"s_mul_i32 s{sO}, s{sO}, {NKB}"); a(f"s_add_u32 s{sO}, s{sO}, s{sH}"); a(f"s_lshl_b32 s{sO}, s{sO}, 10"); a(f"s_add_u32 s{sO}, s{sO}, {ACAT_OFF}")
    a(f"s_cmp_ge_u32 s{sW}, 6")
    a(f"s_cbranch_scc1 L_{name}_nokv")
    a(f"s_cmp_ge_u32 s{sW}, 3"); a(f"s_cselect_b32 s{t0}, 1, 0"); a(f"s_mul_i32 s{t1}, s{t0}, 3"); a(f"s_sub_u32 s{t1}, s{sW}, s{t1}")
    a(f"s_mul_i32 s{t0}, s{t0}, 6"); a(f"s_add_u32 s{t0}, s{t0}, s{t1}")
    a(f"s_mul_i32 s{t1}, s{sH}, 12"); a(f"s_add_u32 s{t0}, s{t0}, s{t1}"); a(f"s_lshl_b32 s{t0}, s{t0}, 10"); a(f"s_add_u32 s{t0}, s{t0}, {KVP_OFF}")
    KR = 32
    for mi in range(8):
        for fb in range(2):
            r = KR + (mi*2+fb)*4
            a(f"buffer_load_dwordx4 v[{r}:{r+3}], v{vL16}, s[{SWS}:{SWS+3}], s{t0} offen offset:{fb*3072}")
        a(f"s_add_u32 s{t0}, s{t0}, {32*12*1024}")
    a("s_waitcnt vmcnt(0)")
    for hlf in (4, 2, 1):
        for mi in range(hlf):
            for q in range(0, 8, 2):
                r = KR + mi*8 + q
                a(f"v_pk_add_f32 v[{r}:{r+1}], v[{r}:{r+1}], v[{r+8*hlf}:{r+8*hlf+1}]")
    pack8(a, KR+8, KR, KR+4)
    a(f"s_lshl_b32 s{t0}, s{sW}, 10"); a(f"s_add_u32 s{t0}, s{t0}, {KVS}"); a(f"v_add_u32 v{vA}, s{t0}, v{vL16}")
    a(f"ds_write_b128 v{vA}, v[{KR+8}:{KR+11}]")
    a.label(f"L_{name}_nokv")
    vq = VmTracker()
    def qload(n):
        vq.issue(("q", n)); vq.issue(("g", n))
        return [f"buffer_load_dwordx4 v[{QR+4*(n%4)}:{QR+4*(n%4)+3}], v{vL16}, s[{SWS}:{SWS+3}], s{sQ} offen",
                f"buffer_load_dword v{GR+(n%4)}, v{vD}, s[{SWS}:{SWS+3}], s{sGo} offen",
                f"s_add_u32 s{sQ}, s{sQ}, 1024", f"s_add_u32 s{sGo}, s{sGo}, 64"]
    a("s_waitcnt vmcnt(0) lgkmcnt(0)")
    for n in range(3):
        for l in qload(n): a(l)
    a("s_barrier")
    P.stamp(1)
    WP = 32; KV = 40
    a(f"v_lshrrev_b32 v{vA}, 2, v{vLane}"); a(f"v_lshlrev_b32 v{vA}, 6, v{vA}"); a(f"v_and_b32 v{vB_}, 3, v{vLane}"); a(f"v_lshlrev_b32 v{vB_}, 3, v{vB_}"); a(f"v_add_u32 v{vA}, v{vA}, v{vB_}")
    for fb in range(2):
        for sec in range(2):
            r = WP + 4*fb + 2*sec
            a(f"ds_read_b64_tr_b16 v[{r}:{r+1}], v{vA} offset:{WPHI + sec*1024 + fb*32}")
    for b in range(6): a(f"ds_read_b128 v[{KV+4*b}:{KV+4*b+3}], v{vL16} offset:{KVS + b*1024}")
    a("s_waitcnt lgkmcnt(0)")
    LG, PH, TMP, NUM, OUT = 64, 72, 80, 132, 144
    blocks = []
    for n in range(16):
        seq = Asm()
        if n + 3 < 16:
            for l in qload(n + 3): seq(l)
        seq(f"s_waitcnt vmcnt({vq.need([('q', n), ('g', n)])})")
        q = QR + 4*(n % 4)
        for fb in range(2):
            seq(f"v_mfma_f32_16x16x32_bf16 v[{LG+4*fb}:{LG+4*fb+3}], v[{WP+4*fb}:{WP+4*fb+3}], v[{q}:{q+3}], 0")
        softmax_pm(seq, LG, PH, TMP, sC)
        for db in range(3):
            d = NUM + 4*db
            seq(f"v_mfma_f32_16x16x32_bf16 v[{d}:{d+3}], v[{KV+4*db}:{KV+4*db+3}], v[{PH}:{PH+3}], 0")
        for db in range(3):
            d = NUM + 4*db
            seq(f"v_mfma_f32_16x16x32_bf16 v[{d}:{d+3}], v[{KV+12+4*db}:{KV+12+4*db+3}], v[{PH+4}:{PH+7}], v[{d}:{d+3}]")
        seq(f"v_add_f32 v{NUM+8}, {f2h(1e-6)}, v{NUM+8}")
        seq(f"v_rcp_f32 v{NUM+8}, v{NUM+8}")
        seq(f"v_mul_f32 v{NUM+8}, v{NUM+8}, v{GR+(n%4)}")
        for qq in range(0, 8, 2):
            seq(f"v_pk_mul_f32 v[{NUM+qq}:{NUM+qq+1}], v[{NUM+qq}:{NUM+qq+1}], v[{NUM+8}:{NUM+9}] op_sel:[0,0] op_sel_hi:[1,0]")
        o = OUT + 4*(n % 2)
        pack8(seq, o, NUM, NUM+4)
        vq.issue(("o", n))
        seq(f"buffer_store_dwordx4 v[{o}:{o+3}], v{vL16}, s[{SWS}:{SWS+3}], s{sO} offen {st}")
        seq(f"s_add_u32 s{sO}, s{sO}, {NKB*1024}")
        blocks.append([l.strip() for l in seq.lines])
    fold_loop(a, blocks, 0, 3, 4, f"L_{name}_aloop", sIT)
    for n in range(12, 16):
        for l in blocks[n]: a(l)
    P.stamp(2)
    a.label(f"L_{name}_fin")
    a("s_waitcnt vmcnt(0)")
    P.stamp(3)
    P.dump(vLane, sW)
    a.label(f"L_{name}_end")
    a("s_endpgm")
    return kernel_text(name, a, nv=176, ns=(102 if prof else 48), ao=176), R*SLOT
```

```python
from asmlib import *
from common import *

def gen_s3(name="s3_kernel", R=8, D=8, U=8, prof=False, mapB=False, tiled=False):
    a = Asm()
    P = Prof(a, prof)
    NS = NKB // 2
    sWO, sWOUT, sOUT, sWS = 4, 6, 28, 30
    SA, SW, SO = 8, 12, 16
    sW, sTQ, sKH, sIT, sAoff, sWoff, sM0, sTB, sNB = 20, 21, 22, 23, 24, 25, 27, 32, 33
    vLane, vT0, vT1, vT2 = 1, 2, 3, 4
    vA0, vA1, vWs = 5, 6, 7
    vB = [8, 9, 10, 11]
    ACC = 16
    WF = 48
    AR = 80
    assert AR + 8*D <= 256
    a(f"s_cmp_ge_u32 s2, 256")
    a(f"s_cbranch_scc1 L_{name}_end")
    P.stamp()
    a(f"s_load_dwordx2 s[{sWO}:{sWO+1}], s[0:1], {KA_WO}")
    a(f"s_load_dwordx2 s[{sWOUT}:{sWOUT+1}], s[0:1], {KA_WOUT}")
    a(f"s_load_dwordx4 s[{sOUT}:{sOUT+3}], s[0:1], {KA_OUT}")
    a(f"s_load_dwordx2 s[{sWS}:{sWS+1}], s[0:1], {KA_WS}") if False else None
    a(f"s_load_dwordx2 s[34:35], s[0:1], {KA_WS}")
    a(f"v_lshrrev_b32 v{vT0}, 6, v0")
    a(f"v_and_b32 v{vLane}, 63, v0")
    a(f"v_readfirstlane_b32 s{sW}, v{vT0}")
    a(f"s_and_b32 s3, s2, 7")
    a(f"s_lshr_b32 s36, s2, 3")
    a(f"s_lshr_b32 s37, s3, 1")
    a(f"s_lshl_b32 s37, s37, 2")
    a(f"s_and_b32 s38, s36, 3" if not mapB else "s_lshr_b32 s38, s36, 3")
    a(f"s_add_u32 s{sTB}, s37, s38")
    a(f"s_and_b32 s37, s3, 1")
    a(f"s_lshl_b32 s37, s37, 3")
    a(f"s_lshr_b32 s38, s36, 2" if not mapB else "s_and_b32 s38, s36, 7")
    a(f"s_add_u32 s{sNB}, s37, s38")
    a(f"s_and_b32 s{sTQ}, s{sW}, 3")
    a(f"s_lshr_b32 s{sKH}, s{sW}, 2")
    a(f"s_lshl_b32 s36, s{sTB}, 3")
    a(f"s_lshl_b32 s37, s{sTQ}, 1")
    a(f"s_add_u32 s36, s36, s37")
    a(f"s_mul_i32 s36, s36, {NKB}")
    a(f"s_add_u32 s36, s36, s{sKH}")
    a(f"s_lshl_b32 s36, s36, 10")
    a(f"v_lshlrev_b32 v{vT0}, 4, v{vLane}")
    a(f"v_add_u32 v{vA0}, s36, v{vT0}")
    a(f"v_add_u32 v{vA1}, {NKB*1024}, v{vA0}")
    a(f"v_lshrrev_b32 v{vT0}, 3, v{vLane}")
    a(f"v_lshrrev_b32 v{vT1}, 1, v{vT0}")
    a(f"v_bfe_u32 v{vT2}, v{vLane}, 1, 2")
    a(f"v_xor_b32 v{vT2}, v{vT2}, v{vT1}")
    a(f"v_lshlrev_b32 v{vT2}, 5, v{vT2}")
    a(f"v_and_b32 v{vT1}, 1, v{vLane}")
    a(f"v_lshlrev_b32 v{vT1}, 4, v{vT1}")
    a(f"v_add_u32 v{vT2}, v{vT2}, v{vT1}")
    a(f"v_lshlrev_b32 v{vT0}, 11, v{vT0}")
    a(f"v_add_u32 v{vT2}, v{vT2}, v{vT0}")
    a(f"s_lshl_b32 s36, s{sW}, 14")
    a(f"s_lshl_b32 s37, s{sNB}, 7")
    a(f"s_add_u32 s36, s36, s37")
    a(f"v_add_u32 v{vWs}, s36, v{vT2}")
    if tiled:
        a(f"s_mul_i32 s36, s{sNB}, {44*8192}")
        a(f"s_lshl_b32 s37, s{sW}, 10")
        a(f"s_add_u32 s36, s36, s37")
        a(f"v_lshlrev_b32 v{vT0}, 4, v{vLane}")
        a(f"v_add_u32 v{vWs}, s36, v{vT0}")
    a(f"v_lshrrev_b32 v{vT0}, 2, v{vLane}")
    a(f"v_bfe_u32 v{vT1}, v{vLane}, 3, 2")
    a(f"v_lshlrev_b32 v{vT0}, 7, v{vT0}")
    a(f"v_and_b32 v{vT2}, 3, v{vLane}")
    a(f"v_lshlrev_b32 v{vT2}, 3, v{vT2}")
    a(f"v_add_u32 v{vT0}, v{vT0}, v{vT2}")
    a(f"s_lshl_b32 s36, s{sKH}, 12")
    a(f"v_add_u32 v{vT0}, s36, v{vT0}")
    for j in range(4):
        a(f"v_xor_b32 v{vT2}, {j}, v{vT1}")
        a(f"v_lshlrev_b32 v{vT2}, 5, v{vT2}")
        a(f"v_add_u32 v{vB[j]}, v{vT0}, v{vT2}")
    for i in range(32): a(f"v_mov_b32 v{ACC+i}, 0")
    a(f"s_lshl_b32 s{sM0}, s{sW}, 10")
    a("s_waitcnt lgkmcnt(0)")
    srd(a, SA, 34, ACAT_OFF, ACAT_SZ)
    if tiled: srd(a, SW, 34, WT_OFF, WT_SZ)
    else: srd(a, SW, sWO, 0, 1024*2048)
    srd(a, SO, sOUT, 0, 2048*2048)
    a(f"s_mov_b32 s{sAoff}, 0")
    a(f"s_mov_b32 s{sWoff}, 0")
    vm = VmTracker()
    def dma(tile):
        vm.issue(("W", tile))
        return [f"s_add_u32 m0, s{sM0}, {(tile % R)*8192}",
                f"@NOPM0@buffer_load_dwordx4 v{vWs}, s[{SW}:{SW+3}], s{sWoff} offen lds",
                f"s_add_u32 s{sWoff}, s{sWoff}, {8192 if tiled else 64*2048}"]
    def aload(step):
        r = AR + (step % D)*8
        vm.issue(("A", step, 0)); vm.issue(("A", step, 1))
        return [f"buffer_load_dwordx4 v[{r}:{r+3}], v{vA0}, s[{SA}:{SA+3}], s{sAoff} offen",
                f"buffer_load_dwordx4 v[{r+4}:{r+7}], v{vA1}, s[{SA}:{SA+3}], s{sAoff} offen",
                f"s_add_u32 s{sAoff}, s{sAoff}, 2048"]
    def wreads(tile):
        base = WF + (tile % 2)*16
        out = []
        for j in range(4):
            for sec in range(2):
                r = base + 4*j + 2*sec
                out.append(f"ds_read_b64_tr_b16 v[{r}:{r+1}], v{vB[j]} offset:{(tile % R)*8192 + sec*2048}")
        return out
    def mfmas(step):
        wb = WF + (step % 2)*16; ab = AR + (step % D)*8
        out = []
        for T in range(2):
            for j in range(4):
                c = ACC + (T*4+j)*4
                out.append(f"v_mfma_f32_16x16x32_bf16 v[{c}:{c+3}], v[{wb+4*j}:{wb+4*j+3}], v[{ab+4*T}:{ab+4*T+3}], v[{c}:{c+3}]")
        return out
    assert R == D
    for i in range(R):
        for l in dma(i): a(l.replace("@NOPM0@", ""))
        for l in aload(i): a(l)
    n = vm.need([("W", 0), ("W", 1), ("A", 0, 0), ("A", 0, 1)])
    a(f"s_waitcnt vmcnt({n})")
    a("s_barrier")
    for l in wreads(0): a(l)
    a("s_waitcnt lgkmcnt(0)")
    a("s_barrier")
    P.stamp()
    steps = []
    for s in range(NS):
        st = []
        m = mfmas(s)
        fill = []
        pre = []
        if s + R < NS:
            if (s + R) % 8 == 0 and (s % U) == 0:
                pre = [f"s_cmp_eq_u32 @TILE@",]
            d = dma(s + R)
            fill.append([d[0]])
            fill.append([d[1].replace("@NOPM0@", ""), d[2]])
        rd = wreads(s + 1) if s + 1 < NS else []
        seq = []
        seq.append(m[0])
        if fill: seq += fill[0]
        seq += rd[0:2]
        seq.append(m[1])
        if fill: seq += fill[1]
        seq += rd[2:4]
        seq.append(m[2]); seq += rd[4:6]
        seq.append(m[3]); seq += rd[6:8]
        seq += m[4:8]
        if s + D < NS: seq += aload(s + D)
        need = []
        if s + 2 < NS: need.append(("W", s + 2))
        if s + 1 < NS: need += [("A", s + 1, 0), ("A", s + 1, 1)]
        if need:
            seq.append(f"s_waitcnt vmcnt({vm.need(need)}) lgkmcnt(0)")
            seq.append("s_barrier")
        steps.append(seq)
    sw = 16 - R
    hdr = [f"s_cmp_eq_u32 @IT@, {sw // U}",
           f"s_cselect_b32 s{SW}, s{sWOUT}, s{SW}",
           f"s_cselect_b32 s{SW+1}, s{sWOUT+1}, s{SW+1}",
           f"s_cselect_b32 s{SW+2}, {1792*2048}, s{SW+2}",
           f"s_cselect_b32 s{sWoff}, 0, s{sWoff}"]
    assert sw % U == 0 and sw // U >= 0
    n_iter = (NS - R) // U
    if not tiled:
        for it in range(n_iter): steps[it*U] = hdr + steps[it*U]
    fold_loop(a, steps, 0, n_iter, U, f"L_{name}_loop", sIT)
    for s in range(n_iter*U, NS):
        for l in steps[s]: a(l)
    P.stamp()
    a("s_barrier")
    RS = 272
    a(f"v_and_b32 v{vT0}, 15, v{vLane}")
    a(f"s_lshl_b32 s36, s{sTQ}, 5")
    a(f"s_lshl_b32 s37, s{sKH}, 7")
    a(f"s_add_u32 s36, s36, s37")
    a(f"v_add_u32 v{vT0}, s36, v{vT0}")
    a(f"v_mul_u32_u24 v{vT0}, {RS}, v{vT0}")
    a(f"v_lshrrev_b32 v{vT1}, 4, v{vLane}")
    a(f"v_lshlrev_b32 v{vT1}, 4, v{vT1}")
    a(f"v_add_u32 v{vT0}, v{vT0}, v{vT1}")
    for T in range(2):
        for j in range(4):
            c = ACC + (T*4+j)*4
            a(f"ds_write_b128 v{vT0}, v[{c}:{c+3}] offset:{T*16*RS + 64*j}")
    a(f"v_lshrrev_b32 v{vT1}, 3, v{vLane}")
    a(f"s_lshl_b32 s36, s{sW}, 4")
    a(f"v_add_u32 v{vT1}, s36, v{vT1}")
    a(f"v_mul_u32_u24 v{vT2}, {RS}, v{vT1}")
    a(f"v_and_b32 v{vT0}, 7, v{vLane}")
    a(f"v_lshlrev_b32 v{vA0}, 5, v{vT0}")
    a(f"v_add_u32 v{vT2}, v{vT2}, v{vA0}")
    a(f"s_lshl_b32 s36, s{sTB}, 7")
    a(f"v_add_u32 v{vT1}, s36, v{vT1}")
    a(f"v_lshlrev_b32 v{vT1}, 11, v{vT1}")
    a(f"v_lshlrev_b32 v{vT0}, 4, v{vT0}")
    a(f"v_add_u32 v{vT1}, v{vT1}, v{vT0}")
    a(f"s_lshl_b32 s36, s{sNB}, 7")
    a(f"v_add_u32 v{vT1}, s36, v{vT1}")
    a("s_waitcnt lgkmcnt(0)")
    a("s_barrier")
    X = 48
    for p in range(2):
        for h in range(2):
            for q in range(2):
                r = X + p*16 + h*8 + q*4
                a(f"ds_read_b128 v[{r}:{r+3}], v{vT2} offset:{p*8*RS + h*128*RS + q*16}")
    for p in range(2):
        a(f"s_waitcnt lgkmcnt({4 if p == 0 else 0})")
        b = X + p*16
        for i in range(0, 8, 2):
            a(f"v_pk_add_f32 v[{b+i}:{b+i+1}], v[{b+i}:{b+i+1}], v[{b+8+i}:{b+9+i}]")
        for i in range(4):
            a(f"v_cvt_pk_bf16_f32 v{b+8+i}, v{b+2*i}, v{b+2*i+1}")
        a(f"buffer_store_dwordx4 v[{b+8}:{b+11}], v{vT1}, s[{SO}:{SO+3}], 0 offen")
        if p == 0: a(f"v_add_u32 v{vT1}, {8*2048}, v{vT1}")
    a("s_waitcnt vmcnt(0)")
    P.stamp()
    P.dump(vLane, sW)
    a.label(f"L_{name}_end")
    a("s_endpgm")
    lds = max(R*8192, 2*128*RS)
    return kernel_text(name, a, nv=AR + 8*D if AR + 8*D > 128 else 128, ns=(102 if prof else 48), ao=(AR + 8*D + 3)//4*4 if AR + 8*D > 128 else 128), lds

if __name__ == "__main__":
    t, lds = gen_s3()
    print(t[:3000]); print(lds)
```

```python
KA_X, KA_WQKV, KA_WPHI, KA_WO, KA_BX, KA_WIN, KA_WSP, KA_BSP, KA_WOUT, KA_GATE, KA_OUT, KA_DBG, KA_WS = [8*i for i in range(13)]
NKB = 88
ACAT_OFF = 0
ACAT_SZ  = 128 * NKB * 1024
QBUF_OFF = ACAT_OFF + ACAT_SZ
QBUF_SZ  = 32 * 128 * 1024
Z1_OFF   = QBUF_OFF + QBUF_SZ
Z1_SZ    = 64 * 112 * 1024
Z2_OFF   = Z1_OFF + Z1_SZ
Z2_SZ    = 64 * 112 * 1024
KVP_OFF  = Z2_OFF + Z2_SZ
KVP_SZ   = 8 * 32 * 12 * 1024
STAT_OFF = KVP_OFF + KVP_SZ
STAT_SZ  = 8 * 16 * 256 * 8
GATE_OFF = STAT_OFF + STAT_SZ
GATE_SZ  = 2048 * 4
WT_OFF   = GATE_OFF + GATE_SZ
WT_SZ    = 16 * 44 * 8192
WS_USED  = WT_OFF + WT_SZ
SRD3 = 0x00020000

def srd(a, base, ptr, off, size):
    if off:
        a(f"s_add_u32 s{base}, s{ptr}, {off}")
        a(f"s_addc_u32 s{base+1}, s{ptr+1}, 0")
    else:
        a(f"s_mov_b32 s{base}, s{ptr}")
        a(f"s_mov_b32 s{base+1}, s{ptr+1}")
    a(f"s_mov_b32 s{base+2}, {size}")
    a(f"s_mov_b32 s{base+3}, {hex(SRD3)}")

class VmTracker:
    def __init__(self): self.ops = []
    def issue(self, tag): self.ops.append(tag)
    def need(self, tags):
        last = -1
        for i, t in enumerate(self.ops):
            if t in tags: last = i
        missing = [t for t in tags if t not in self.ops]
        assert not missing, missing
        return min(63, len(self.ops) - 1 - last)

def fold_loop(a, steps, start, n_iter, U, label, counter):
    import re
    def norm(l): return re.sub(r"vmcnt\(\d+\)", "vmcnt(#)", l)
    body = [list(st) for st in steps[start:start+U]]
    for it in range(1, n_iter):
        other = steps[start+it*U:start+(it+1)*U]
        for u in range(U):
            assert [norm(l) for l in other[u]] == [norm(l) for l in body[u]], f"loop not periodic at iter {it} step {u}"
            for k, l in enumerate(other[u]):
                m = re.search(r"vmcnt\((\d+)\)", l)
                if m:
                    m0 = re.search(r"vmcnt\((\d+)\)", body[u][k])
                    if int(m.group(1)) < int(m0.group(1)): body[u][k] = l
    for it in range(0):
        other = steps[start+it*U:start+(it+1)*U]
        assert other == body, f"loop not periodic at iter {it}"
    a(f"s_mov_b32 s{counter}, 0")
    a(".p2align 6")
    a.label(label)
    for st in body:
        for l in st: a(l.replace("@IT@", f"s{counter}"))
    a(f"s_add_u32 s{counter}, s{counter}, 1")
    a(f"s_cmp_lt_u32 s{counter}, {n_iter}")
    a(f"s_cbranch_scc1 {label}")

class Prof:
    def __init__(self, a, on, base=76, n=6):
        self.a, self.on, self.base, self.k, self.n = a, on, base, 0, n
    def stamp(self, idx=None, mode=None):
        if not self.on: return
        if idx in (3, 4) and (mode or "epi") != getattr(self, "mode", "epi"): return
        if idx is None: idx = self.k
        assert idx < self.n
        a = self.a; b = self.base + 2*idx
        a(f"s_memrealtime s[{b}:{b+1}]")
        if idx in (1, 2): a(f"s_memtime s[{88 + 2*(idx-1)}:{89 + 2*(idx-1)}]")
        self.k = max(self.k, idx + 1)
    def dump(self, vlane, wave_sgpr, waves=8):
        if not self.on: return
        a = self.a
        a("s_waitcnt lgkmcnt(0) vmcnt(0)")
        a(f"s_load_dwordx2 s[96:97], s[0:1], {KA_BX}")
        a("s_waitcnt lgkmcnt(0)")
        a("s_mov_b32 s92, s96"); a("s_mov_b32 s93, s97"); a("s_mov_b32 s94, 0x400000"); a("s_mov_b32 s95, 0x20000")
        a(f"s_lshl_b32 s98, s2, 3"); a(f"s_add_u32 s98, s98, s{wave_sgpr}"); a("s_lshl_b32 s98, s98, 6")
        a("v_mov_b32 v2, 0")
        for k in range(self.n):
            a(f"v_writelane_b32 v2, s{self.base + 2*k}, {k}")
        a(f"v_writelane_b32 v2, s88, 8"); a(f"v_writelane_b32 v2, s90, 9")
        a(f"v_lshlrev_b32 v3, 2, v{vlane}")
        a("v_add_u32 v3, s98, v3")
        a(f"v_cmp_gt_u32 vcc, 16, v{vlane}")
        a("s_and_saveexec_b64 s[96:97], vcc")
        a("buffer_store_dword v2, v3, s[92:95], 0 offen")
        a("s_mov_b64 exec, s[96:97]")

def prof_line(d, T0, ks, sel=None):
    import numpy as np
    x = d if sel is None else sel
    s = ""
    for k in ks:
        v = (x[..., k] - T0)/100
        s += f" t{k} {v.min():.2f}/{np.median(v):.2f}/{v.max():.2f}"
    c = (x[..., 9] - x[..., 8]) & 0xffffffff; rt = x[..., 2] - x[..., 1]
    s += f" | loop {np.median(c):.0f} cyc @{np.median(c)/max(np.median(rt),1)*100:.0f}MHz"
    return s

def show_prof(raw, nstamps, tag=""):
    import numpy as np
    d = raw.reshape(-1, 8, 16)[:256].astype(np.int64)
    rt = d[:, :, 0:2*nstamps:2]; cy = d[:, :, 1:2*nstamps:2]
    t0 = rt[:, :, 0].min()
    s = tag
    for k in range(nstamps):
        s += f" | t{k}: {(rt[:,:,k].min()-t0)/100:.2f}/{np.median(rt[:,:,k]-t0)/100:.2f}/{(rt[:,:,k].max()-t0)/100:.2f}"
    s += " || cyc:"
    for k in range(1, nstamps):
        dc = (cy[:,:,k] - cy[:,:,k-1]) & 0xffffffff; dr = (rt[:,:,k]-rt[:,:,k-1])
        s += f" {np.median(dc):.0f}@{np.median(dc)/max(np.median(dr),1)*100:.0f}MHz"
    print(s)
```

```python
from asmlib import *
from common import *
import struct
LOG2E = 1.4426950408889634
def f2h(x): return hex(struct.unpack("<I", struct.pack("<f", x))[0])

A_SLOT = 32768; NA = 3
W_BASE = NA*A_SLOT; W_SLOT = 14336
WPHI   = W_BASE + 4*W_SLOT
DUMMY  = WPHI + 2048
MISC   = DUMMY + 1024
S1_LDS = MISC + 256
PHI_SCR = 0
KV_SCR  = 32768
OOB = 0x40000000

def gen_s1(name="s1_kernel", prof=False, st="sc1", touch=True, relayout=True, wsp=False, wsp_epi=False, wsp_tail=29, PT=4, prio=True, pmode="epi", dedupe=True, burst=False, tfl="", dfl="", rfl="", norm="pair", NW=3, bmode=6, first_gather=True, codewarm=1, wsplit=False):
    a = Asm()
    P = Prof(a, prof); P.mode = pmode
    NS = 32
    U = 12 if NW == 4 else 6
    pX, pQKV, pPHI, pWO = 4, 6, 8, 10
    pWIN, pWSP = 12, 14
    pWOUT, pGATE = 16, 18
    pDBG, pWS = 20, 22
    SX, SD, SD3, SWS = 24, 28, 32, 36
    ST, SRL = 40, 44
    sW, sWQ, sMI, sNJ, sODD = 48, 49, 50, 51, 52
    sKA, sKD, sKD3, sIncD = 53, 54, 55, 56
    sM0, sM0d = 57, 58
    sMs = [59, 60, 61, 62]
    sTo, sTinc = 63, 64
    sRLs, sRLd = 65, 66
    sIT = 67
    t0, t1, t2, t3 = 68, 69, 70, 71
    sC = 72
    sH, sHq = 74, 75
    sSt = 3
    vLane, vA, vB_, vC, vD = 1, 2, 3, 4, 5
    vX = [[6, 7], [8, 9]]
    vDs = [10, 11, 12, 13, 14, 15, 16, 17]
    vW1 = [18, 19]; vW2 = [18, 19]
    vT, vRL, vRLd, vDum = 20, 21, 22, 23
    vRLb = 24
    XF = 32; WF = 64
    ACC_A = 112; ACC_G = 120
    GV = 232

    a("s_cmp_ge_u32 s2, 256")
    a(f"s_cbranch_scc1 L_{name}_end")
    P.stamp(0)
    a(f"s_load_dwordx8 s[4:11], s[0:1], 0")
    a(f"s_load_dwordx4 s[12:15], s[0:1], {KA_WIN}")
    a(f"s_load_dwordx4 s[16:19], s[0:1], {KA_WOUT}")
    a(f"s_load_dwordx4 s[20:23], s[0:1], {KA_DBG}")
    a(f"v_lshrrev_b32 v{vA}, 6, v0")
    a(f"v_and_b32 v{vLane}, 63, v0")
    a(f"v_readfirstlane_b32 s{sW}, v{vA}")
    a(f"s_and_b32 s{t0}, s2, 7")
    a(f"s_lshr_b32 s{t1}, s2, 3")
    a(f"s_and_b32 s{t2}, s{t0}, 1"); a(f"s_lshl_b32 s{t2}, s{t2}, 2"); a(f"s_and_b32 s{t3}, s{t1}, 3")
    a(f"s_add_u32 s{sMI}, s{t2}, s{t3}")
    a(f"s_lshr_b32 s{t1}, s{t1}, 2")
    a(f"s_lshr_b32 s{t0}, s{t0}, 1"); a(f"s_lshl_b32 s{t0}, s{t0}, 2")
    a(f"s_and_b32 s{t2}, s{t1}, 3"); a(f"s_add_u32 s{t0}, s{t0}, s{t2}")
    a(f"s_lshr_b32 s{t2}, s{t1}, 2"); a(f"s_lshl_b32 s{t2}, s{t2}, 4"); a(f"s_add_u32 s{sNJ}, s{t0}, s{t2}")
    a(f"s_and_b32 s{sODD}, s{sNJ}, 1")
    a(f"s_lshr_b32 s{t2}, s{sNJ}, 2"); a(f"s_xor_b32 s{sH}, s{sNJ}, 24")
    a(f"s_cmp_eq_u32 s{t2}, 3"); a(f"s_cselect_b32 s{t3}, s{sH}, s{sNJ}")
    a(f"s_cmp_eq_u32 s{t2}, 5"); a(f"s_cselect_b32 s{sH}, s{sH}, s{t3}")
    a(f"s_xor_b32 s{sHq}, s{sH}, 2"); a(f"s_cmp_lt_u32 s{sNJ}, 16"); a(f"s_cselect_b32 s{sHq}, s{sHq}, s{sH}")
    a(f"s_and_b32 s{sWQ}, s{sW}, 3")
    a(f"v_lshlrev_b32 v{vRLd}, 4, v{vLane}")
    vmA = VmTracker(); vmG = VmTracker()
    a(f"s_cmp_ge_u32 s{sW}, 4")
    a(f"s_cbranch_scc1 L_{name}_gsetup")

    def common_late():
        a(f"s_mov_b32 s{sC}, 1.0"); a(f"s_mov_b32 s{sC+1}, 1.0")
        srd(a, SWS, pWS, 0, WS_USED)
        a(f"v_and_b32 v{vA}, 15, v{vLane}")
        a(f"v_lshrrev_b32 v{vB_}, 1, v{vA}")
        a(f"v_lshrrev_b32 v{vC}, 4, v{vLane}")
        a(f"v_xor_b32 v{vB_}, v{vB_}, v{vC}")
        a(f"v_lshlrev_b32 v{vA}, 7, v{vA}")
        a(f"s_lshl_b32 s{t0}, s{sWQ}, 13")
        a(f"v_add_u32 v{vA}, s{t0}, v{vA}")
        a(f"v_lshlrev_b32 v{vC}, 4, v{vB_}")
        a(f"v_add_u32 v{vX[0][0]}, v{vA}, v{vC}")
        a(f"v_xor_b32 v{vX[0][1]}, 64, v{vX[0][0]}")
        a(f"v_add_u32 v{vX[1][0]}, 65536, v{vX[0][0]}")
        a(f"v_add_u32 v{vX[1][1]}, 65536, v{vX[0][1]}")

    a("s_waitcnt lgkmcnt(0)")
    P.stamp(3, "pro")
    a(f"s_lshr_b32 s{t1}, s2, 3"); a(f"s_and_b32 s{t2}, s{t1}, 3"); a(f"s_lshr_b32 s{t1}, s{t1}, 2")
    a(f"s_cmp_eq_u32 s{sWQ}, 0")
    a(f"s_cbranch_scc0 L_{name}_t1")
    srd(a, ST, pX, 0, 2048*2048)
    a(f"s_lshl_b32 s{t0}, s{sMI}, 8"); a(f"s_lshl_b32 s{t3}, s{t1}, 5"); a(f"s_add_u32 s{t0}, s{t0}, s{t3}")
    a(f"v_add_u32 v{vT}, s{t0}, v{vLane}"); a(f"v_lshlrev_b32 v{vT}, 11, v{vT}")
    a(f"v_cmp_gt_u32 vcc, 32, v{vLane}"); a(f"v_mov_b32 v{vA}, {hex(OOB)}"); a(f"v_cndmask_b32 v{vT}, v{vA}, v{vT}, vcc")
    a(f"s_mov_b32 s{sTinc}, 128")
    a(f"s_branch L_{name}_tdone")
    a.label(f"L_{name}_t1")
    a(f"v_mul_u32_u24 v{vA}, 43, v{vLane}"); a(f"v_lshrrev_b32 v{vA}, 7, v{vA}")
    a(f"v_mul_u32_u24 v{vB_}, 3, v{vA}"); a(f"v_sub_u32 v{vB_}, v{vLane}, v{vB_}")
    a(f"s_lshl_b32 s{t0}, s{t2}, 4"); a(f"v_add_u32 v{vA}, s{t0}, v{vA}")
    a(f"s_cmp_eq_u32 s{sWQ}, 1")
    a(f"s_cbranch_scc0 L_{name}_t2")
    srd(a, ST, pQKV, 0, 1024*6144)
    if dedupe:
        a(f"s_and_b32 s{t0}, s{sH}, 1"); a(f"s_lshl_b32 s{t0}, s{t0}, 3"); a(f"v_add_u32 v{vA}, s{t0}, v{vA}")
    a(f"v_cmp_eq_u32 vcc, 0, v{vB_}")
    a(f"v_mul_u32_u24 v{vT}, 6144, v{vA}"); a(f"v_lshlrev_b32 v{vB_}, 11, v{vB_}"); a(f"v_add_u32 v{vT}, v{vT}, v{vB_}")
    a(f"s_lshl_b32 s{t0}, s{sH}, 6"); a(f"s_lshl_b32 s{t3}, s{sHq}, 6"); a(f"v_mov_b32 v{vA}, s{t0}"); a(f"v_mov_b32 v{vB_}, s{t3}"); a(f"v_cndmask_b32 v{vA}, v{vA}, v{vB_}, vcc")
    a(f"v_add_u32 v{vT}, v{vA}, v{vT}")
    a(f"v_cmp_gt_u32 vcc, {24 if dedupe else 48}, v{vLane}"); a(f"v_mov_b32 v{vA}, {hex(OOB)}"); a(f"v_cndmask_b32 v{vT}, v{vA}, v{vT}, vcc")
    a(f"s_mov_b32 s{sTinc}, {64*6144}")
    a(f"s_branch L_{name}_tdone")
    a.label(f"L_{name}_t2")
    a(f"s_cmp_eq_u32 s{sWQ}, 2")
    a(f"s_cbranch_scc0 L_{name}_t3")
    srd(a, ST, pWIN, 0, 1024*7168)
    a(f"v_mul_u32_u24 v{vT}, 7168, v{vA}"); a(f"v_lshlrev_b32 v{vB_}, 7, v{vB_}"); a(f"v_min_u32 v{vB_}, 252, v{vB_}"); a(f"v_add_u32 v{vT}, v{vT}, v{vB_}")
    a(f"s_mul_i32 s{t0}, s{sNJ}, 224"); a(f"s_lshl_b32 s{t3}, s{sODD}, 5"); a(f"s_sub_u32 s{t0}, s{t0}, s{t3}"); a(f"v_add_u32 v{vT}, s{t0}, v{vT}")
    a(f"v_cmp_gt_u32 vcc, 48, v{vLane}"); a(f"v_mov_b32 v{vA}, {hex(OOB)}"); a(f"v_cndmask_b32 v{vT}, v{vA}, v{vT}, vcc")
    a(f"s_mov_b32 s{sTinc}, {64*7168}")
    a(f"s_branch L_{name}_tdone")
    a.label(f"L_{name}_t3")
    srd(a, ST, pWSP, 0, 2048*4096)
    if wsplit:
        a(f"v_lshrrev_b32 v{vT}, 4, v{vLane}"); a(f"v_lshlrev_b32 v{vT}, 12, v{vT}"); a(f"v_and_b32 v{vA}, 15, v{vLane}"); a(f"v_lshlrev_b32 v{vA}, 7, v{vA}")
        a(f"v_add_u32 v{vT}, v{vT}, v{vA}"); a(f"s_lshl_b32 s{t0}, s2, 15"); a(f"v_add_u32 v{vT}, s{t0}, v{vT}")
        a(f"s_mov_b32 s{sTinc}, 16384")
        a(f"s_add_u32 s{ST+2}, s{t0}, 32768")
    else:
        a(f"v_lshlrev_b32 v{vT}, 7, v{vLane}"); a(f"s_lshl_b32 s{t0}, s2, 15"); a(f"v_add_u32 v{vT}, s{t0}, v{vT}")
        a(f"s_mov_b32 s{sTinc}, 8192")
        a(f"s_add_u32 s{ST+2}, s{t0}, 32768") if wsp else a(f"s_mov_b32 s{ST+2}, 0")
    a.label(f"L_{name}_tdone")
    a(f"s_mov_b32 s{sTo}, 0")
    def touch_ops(vm, tag):
        vm.issue(tag)
        return [f"buffer_load_dword v{vDum}, v{vT}, s[{ST}:{ST+3}], s{sTo} offen {tfl}", f"s_add_u32 s{sTo}, s{sTo}, s{sTinc}"]
    a(f"s_cmp_eq_u32 s{sWQ}, 3")
    a(f"s_cbranch_scc1 L_{name}_notouch0")
    if touch:
        for q in range(2):
            for l in touch_ops(vmA, ("T", q)): a(l)
    a.label(f"L_{name}_notouch0")
    a(f"v_lshrrev_b32 v{vA}, 3, v{vLane}")
    a(f"s_lshl_b32 s{t0}, s{sMI}, 8"); a(f"s_lshl_b32 s{t1}, s{sWQ}, 6"); a(f"s_add_u32 s{t0}, s{t0}, s{t1}")
    a(f"v_add_u32 v{vA}, s{t0}, v{vA}"); a(f"v_lshlrev_b32 v{vA}, 11, v{vA}")
    a(f"v_and_b32 v{vB_}, 7, v{vLane}"); a(f"v_lshrrev_b32 v{vC}, 4, v{vLane}"); a(f"v_xor_b32 v{vB_}, v{vB_}, v{vC}")
    a(f"v_lshlrev_b32 v{vC}, 4, v{vB_}"); a(f"v_add_u32 v{vDs[0]}, v{vA}, v{vC}")
    a(f"v_xor_b32 v{vC}, 64, v{vC}"); a(f"v_add_u32 v{vDs[1]}, v{vA}, v{vC}"); a(f"v_add_u32 v{vDs[1]}, {8*2048}, v{vDs[1]}")
    for e in range(2, 8): a(f"v_add_u32 v{vDs[e]}, {16*2048}, v{vDs[e-2]}")
    a(f"s_lshl_b32 s{sM0}, s{sWQ}, 13")
    a(f"s_mov_b32 s{sKA}, 0")
    srd(a, SX, pX, 0, 2048*2048)
    def dmaA(tile, half):
        out = []
        for e in range(4*half, 4*half+4):
            vmA.issue(("A", tile, e))
            out.append([f"s_add_u32 m0, s{sM0}, {(tile % NA)*A_SLOT + e*1024}",
                        f"buffer_load_dwordx4 v{vDs[e]}, s[{SX}:{SX+3}], s{sKA} offen {dfl} lds"])
        if half == 1: out[-1].append(f"s_add_u32 s{sKA}, s{sKA}, 128")
        return out
    a("s_barrier")
    for half in range(2):
        for grp in dmaA(0, half):
            for l in grp: a(l)
    P.stamp(4, "pro")
    common_late()
    a(f"v_mov_b32 v{vA}, 0"); a(f"v_lshlrev_b32 v{vB_}, 2, v{vLane}"); a(f"v_add_u32 v{vB_}, {MISC}, v{vB_}"); a(f"ds_write_b32 v{vB_}, v{vA}")
    a(f"v_lshrrev_b32 v{vA}, 4, v{vLane}"); a(f"v_mul_u32_u24 v{vB_}, 1536, v{vA}")
    a(f"v_bfe_u32 v{vC}, v{vLane}, 2, 2"); a(f"v_lshlrev_b32 v{vC}, 6, v{vC}"); a(f"v_add_u32 v{vB_}, v{vB_}, v{vC}")
    a(f"v_and_b32 v{vC}, 3, v{vLane}"); a(f"v_lshlrev_b32 v{vC}, 3, v{vC}"); a(f"v_add_u32 v{vB_}, v{vB_}, v{vC}")
    a(f"v_and_b32 v{vA}, 1, v{vA}"); a(f"v_lshlrev_b32 v{vA}, 5, v{vA}"); a(f"v_add_u32 v{vB_}, {W_BASE}, v{vB_}")
    a(f"v_add_u32 v{vW1[0]}, v{vB_}, v{vA}"); a(f"v_xor_b32 v{vA}, 32, v{vA}"); a(f"v_add_u32 v{vW1[1]}, v{vB_}, v{vA}")
    if relayout:
        a(f"s_lshl_b32 s{t0}, s{sWQ}, 8"); a(f"s_add_u32 s{t0}, s{t0}, s2")
        a(f"s_lshr_b32 s{t1}, s{t0}, 1")
        a(f"s_and_b32 s{t2}, s{t0}, 1")
        a(f"s_cmp_lt_u32 s{t1}, 128")
        a(f"s_cselect_b32 s{SRL}, s{pWO}, s{pWOUT}")
        a(f"s_cselect_b32 s{SRL+1}, s{pWO+1}, s{pWOUT+1}")
        a(f"s_mov_b32 s{t3}, {1792*2048}")
        a(f"s_cselect_b32 s{SRL+2}, {1024*2048}, s{t3}")
        a(f"s_mov_b32 s{SRL+3}, {hex(SRD3)}")
        a(f"s_cselect_b32 s{t3}, 0, 128")
        a(f"s_sub_u32 s{t3}, s{t1}, s{t3}")
        a(f"s_lshl_b32 s{t3}, s{t3}, 14")
        a(f"s_lshl_b32 s{sRLs}, s{t2}, 10"); a(f"s_add_u32 s{sRLs}, s{sRLs}, s{t3}")
        a(f"s_mul_i32 s{sRLd}, s{t2}, {8*44*8192}"); a(f"s_lshl_b32 s{t3}, s{t1}, 10"); a(f"s_add_u32 s{sRLd}, s{sRLd}, s{t3}")
        a(f"s_add_u32 s{sRLd}, s{sRLd}, {WT_OFF}")
        a(f"s_cmp_lt_u32 s{t0}, 704")
        a(f"s_cselect_b32 s{sRLs}, s{sRLs}, {hex(OOB)}")
        a(f"s_cselect_b32 s{sRLd}, s{sRLd}, {hex(OOB)}")
        a(f"v_lshrrev_b32 v{vA}, 3, v{vLane}"); a(f"v_lshrrev_b32 v{vB_}, 1, v{vA}")
        a(f"v_bfe_u32 v{vC}, v{vLane}, 1, 2"); a(f"v_xor_b32 v{vC}, v{vC}, v{vB_}"); a(f"v_lshlrev_b32 v{vC}, 5, v{vC}")
        a(f"v_and_b32 v{vB_}, 1, v{vLane}"); a(f"v_lshlrev_b32 v{vB_}, 4, v{vB_}"); a(f"v_add_u32 v{vC}, v{vC}, v{vB_}")
        a(f"v_lshlrev_b32 v{vA}, 11, v{vA}"); a(f"v_add_u32 v{vRL}, v{vA}, v{vC}")
    def att_second():
        for half in range(2):
            for grp in dmaA(1, half):
                for l in grp: a(l)
    def wphi_ops():
        vmA.issue("wphi")
        return [f"s_mov_b32 s{SD}, s{pPHI}", f"s_mov_b32 s{SD+1}, s{pPHI+1}", f"s_mov_b32 s{SD+2}, 65536", f"s_mov_b32 s{SD+3}, {hex(SRD3)}",
                f"s_and_b32 s{t0}, s{sWQ}, 1", f"s_lshl_b32 s{t0}, s{t0}, 10", f"s_lshl_b32 s{t1}, s{sH}, 11", f"s_add_u32 s{t1}, s{t1}, s{t0}",
                f"s_add_u32 m0, s{t0}, {WPHI}", "s_nop 0", f"buffer_load_dwordx4 v{vRLd}, s[{SD}:{SD+3}], s{t1} offen lds"]
    a(f"s_branch L_{name}_amain")

    a.label(f"L_{name}_gsetup")
    a(f"v_lshrrev_b32 v{vA}, 2, v{vLane}")
    a(f"v_and_b32 v{vB_}, 3, v{vA}")
    a(f"v_lshrrev_b32 v{vC}, 2, v{vA}")
    a(f"v_and_b32 v{vD}, 3, v{vLane}")
    a(f"s_mul_i32 s{t3}, s{sNJ}, 224"); a(f"s_lshl_b32 s{t2}, s{sODD}, 5"); a(f"s_sub_u32 s{t3}, s{t3}, s{t2}")
    def w2src(dst, kq_s):
        a(f"s_lshl_b32 s{t0}, s{kq_s}, 2")
        a(f"v_add_u32 v{dst}, s{t0}, v{vB_}"); a(f"v_mul_u32_u24 v{dst}, 7168, v{dst}")
        a(f"s_and_b32 s{t0}, s{kq_s}, 2")
        a(f"v_xor_b32 v{vDum}, s{t0}, v{vD}"); a(f"v_lshlrev_b32 v{vDum}, 4, v{vDum}"); a(f"v_add_u32 v{dst}, v{dst}, v{vDum}")
        a(f"v_lshlrev_b32 v{vDum}, 6, v{vC}"); a(f"v_add_u32 v{dst}, v{dst}, v{vDum}")
        a(f"v_add_u32 v{dst}, s{t3}, v{dst}")
    a(f"s_cmp_ge_u32 s{sWQ}, 2")
    a(f"s_cbranch_scc1 L_{name}_g23")
    a(f"s_mov_b32 s{sIncD}, {32*6144}")
    for j in range(3):
        a(f"s_mul_i32 s{t0}, s{sWQ}, 12"); a(f"s_add_u32 s{t0}, s{t0}, {4*j}")
        a(f"v_add_u32 v{vDs[j]}, s{t0}, v{vC}")
        a(f"v_mul_u32_u24 v{vDum}, 11, v{vDs[j]}"); a(f"v_lshrrev_b32 v{vDum}, 5, v{vDum}")
        a(f"v_mul_u32_u24 v{vT}, 3, v{vDum}"); a(f"v_sub_u32 v{vT}, v{vDs[j]}, v{vT}")
        a(f"v_cmp_eq_u32 vcc, 0, v{vT}")
        a(f"v_lshlrev_b32 v{vT}, 11, v{vT}")
        a(f"v_and_b32 v{vDs[j]}, 2, v{vDum}"); a(f"v_xor_b32 v{vDs[j]}, v{vDs[j]}, v{vD}"); a(f"v_lshlrev_b32 v{vDs[j]}, 4, v{vDs[j]}")
        a(f"v_add_u32 v{vT}, v{vT}, v{vDs[j]}")
        a(f"v_lshlrev_b32 v{vDum}, 2, v{vDum}"); a(f"v_add_u32 v{vDum}, v{vDum}, v{vB_}"); a(f"v_mul_u32_u24 v{vDum}, 6144, v{vDum}")
        a(f"v_add_u32 v{vT}, v{vT}, v{vDum}")
        a(f"s_lshl_b32 s{t0}, s{sH}, 6"); a(f"s_lshl_b32 s{t1}, s{sHq}, 6"); a(f"v_mov_b32 v{vDum}, s{t0}"); a(f"v_mov_b32 v{vDs[j]}, s{t1}")
        a(f"v_cndmask_b32 v{vDum}, v{vDum}, v{vDs[j]}, vcc"); a(f"v_add_u32 v{vDs[j]}, v{vDum}, v{vT}")
        a(f"s_mul_i32 s{t0}, s{sWQ}, 3072"); a(f"s_add_u32 s{sMs[j]}, s{t0}, {W_BASE + j*1024}")
    a(f"s_mov_b32 s{t1}, s{sWQ}"); w2src(vDs[3], t1)
    a(f"s_lshl_b32 s{t0}, s{sWQ}, 10"); a(f"s_add_u32 s{sMs[3]}, s{t0}, {W_BASE + 6144}")
    a("s_waitcnt lgkmcnt(0)")
    srd(a, SD, pQKV, 0, 1024*6144)
    a(f"s_branch L_{name}_g23done")
    a.label(f"L_{name}_g23")
    a(f"s_mov_b32 s{sIncD}, {32*7168}")
    for j in range(3):
        a(f"s_mul_i32 s{t1}, s{sWQ}, 3"); a(f"s_add_u32 s{t1}, s{t1}, {j}"); a(f"s_sub_u32 s{t1}, s{t1}, 4")
        w2src(vDs[j], t1)
        a(f"s_lshl_b32 s{t0}, s{t1}, 10"); a(f"s_add_u32 s{sMs[j]}, s{t0}, {W_BASE + 6144}")
    a(f"v_mov_b32 v{vDs[3]}, {hex(OOB)}")
    a(f"s_mov_b32 s{sMs[3]}, {DUMMY}")
    a("s_waitcnt lgkmcnt(0)")
    srd(a, SD, pWIN, 0, 1024*7168)
    a.label(f"L_{name}_g23done")
    P.stamp(3, "pro")
    srd(a, SD3, pWIN, 0, 1024*7168)
    a(f"s_cmp_ge_u32 s{sWQ}, 2"); a(f"s_cselect_b32 s{sM0d}, 0, {W_SLOT}")
    a(f"s_mov_b32 s{sKD}, 0"); a(f"s_mov_b32 s{sKD3}, 0")
    def dmaW(tile):
        out = []
        for j in range(4):
            vmG.issue(("W", tile, j))
            slot = tile % NW
            if j < 3:
                out.append([f"s_add_u32 m0, s{sMs[j]}, {slot*W_SLOT}",
                            f"buffer_load_dwordx4 v{vDs[j]}, s[{SD}:{SD+3}], s{sKD} offen {dfl} lds"])
            else:
                out.append([f"s_mul_i32 s{t0}, s{sM0d}, {slot}", f"s_add_u32 m0, s{sMs[3]}, s{t0}",
                            f"buffer_load_dwordx4 v{vDs[3]}, s[{SD3}:{SD3+3}], s{sKD3} offen {dfl} lds",
                            f"s_add_u32 s{sKD}, s{sKD}, s{sIncD}", f"s_add_u32 s{sKD3}, s{sKD3}, {32*7168}"])
        return out
    srd(a, SWS, pWS, 0, WS_USED)
    a(f"s_lshl_b32 s{t0}, s{sMI}, 4"); a(f"s_add_u32 s{t0}, s{t0}, s{sNJ}"); a(f"s_sub_u32 s{t0}, s{t0}, 16"); a(f"s_lshl_b32 s{t0}, s{t0}, 11")
    a(f"s_lshl_b32 s{t1}, s{sWQ}, 9"); a(f"s_add_u32 s{t0}, s{t0}, s{t1}"); a(f"s_add_u32 s{sSt}, s{t0}, {STAT_OFF}")
    a(f"s_cmp_lt_u32 s{sNJ}, 16"); a(f"s_cselect_b32 s{sSt}, {hex(OOB)}, s{sSt}")
    a(f"v_mov_b32 v{GV}, 0"); a(f"v_mov_b32 v{GV+1}, -1.0"); a(f"v_lshlrev_b32 v{GV+2}, 3, v{vLane}")
    a(f"buffer_store_dwordx2 v[{GV}:{GV+1}], v{GV+2}, s[{SWS}:{SWS+3}], s{sSt} offen sc1")
    vmG.issue("mark")
    if codewarm:
        a(f"s_cmp_eq_u32 s{sW}, 7")
        a(f"s_cbranch_scc0 L_{name}_nocw")
        a(f"s_getpc_b64 s[{t2}:{t3}]")
        a.label(f"L_{name}_pc")
        a(f"s_lshr_b32 s{t0}, s2, 3"); a(f"s_lshl_b32 s{t0}, s{t0}, 4")
        a(f"v_and_b32 v{GV+4}, 15, v{vLane}"); a(f"v_add_u32 v{GV+4}, s{t0}, v{GV+4}"); a(f"v_lshlrev_b32 v{GV+4}, 7, v{GV+4}")
        a(f"v_mov_b32 v{GV+7}, s{t3}"); a(f"v_add_co_u32 v{GV+6}, vcc, s{t2}, v{GV+4}"); a(f"v_addc_co_u32 v{GV+7}, vcc, 0, v{GV+7}, vcc")
        a(f"s_mov_b32 s{t0}, L_text_end-L_{name}_pc")
        a(f"v_cmp_gt_u32 vcc, s{t0}, v{GV+4}")
        a(f"s_and_saveexec_b64 s[{t2}:{t3}], vcc")
        a(f"s_cbranch_execz L_{name}_cwx")
        a(f"global_load_dword v{GV+5}, v[{GV+6}:{GV+7}], off")
        a.label(f"L_{name}_cwx")
        a(f"s_mov_b64 exec, s[{t2}:{t3}]")
        a.label(f"L_{name}_nocw")
    a("s_barrier")
    for grp in dmaW(0):
        for l in grp: a(l)
    P.stamp(4, "pro")
    gm_w1 = True
    common_late()
    srd(a, SX, pX, 0, 2048*2048)
    a(f"v_lshrrev_b32 v{vA}, 4, v{vLane}"); a(f"v_lshlrev_b32 v{vB_}, 11, v{vA}")
    a(f"v_bfe_u32 v{vC}, v{vLane}, 2, 2"); a(f"v_lshlrev_b32 v{vC}, 6, v{vC}"); a(f"v_add_u32 v{vB_}, v{vB_}, v{vC}")
    a(f"v_and_b32 v{vC}, 3, v{vLane}"); a(f"v_lshlrev_b32 v{vC}, 3, v{vC}"); a(f"v_add_u32 v{vB_}, v{vB_}, v{vC}")
    a(f"v_add_u32 v{vB_}, {W_BASE + 6144}, v{vB_}")
    a(f"v_and_b32 v{vA}, 1, v{vA}"); a(f"v_xor_b32 v{vA}, s{sODD}, v{vA}"); a(f"v_lshlrev_b32 v{vA}, 5, v{vA}")
    a(f"v_add_u32 v{vW2[0]}, v{vB_}, v{vA}"); a(f"v_xor_b32 v{vA}, 32, v{vA}"); a(f"v_add_u32 v{vW2[1]}, v{vB_}, v{vA}")
    a(f"s_lshl_b32 s{t0}, s{sODD}, 8"); a(f"v_add_u32 v{vW2[1]}, s{t0}, v{vW2[1]}")
    a(f"s_branch L_{name}_gmain")

    def gate_loads(vm):
        ops = [f"s_lshl_b32 s{t0}, s{sMI}, 8", f"s_lshl_b32 s{t1}, s{sNJ}, 3", f"s_add_u32 s{t0}, s{t0}, s{t1}", f"s_add_u32 s{t0}, s{t0}, s{sW}",
               f"s_lshl_b32 s{sTo}, s{t0}, 2", f"s_add_u32 s{sTo}, s{sTo}, {GATE_OFF}", f"s_lshl_b32 s{t0}, s{t0}, 11",
               f"s_mov_b32 s{ST}, s{pGATE}", f"s_mov_b32 s{ST+1}, s{pGATE+1}", f"s_mov_b32 s{ST+2}, 2048", f"s_mov_b32 s{ST+3}, {hex(SRD3)}"]
        ld = [f"buffer_load_dwordx4 v[{GV}:{GV+3}], v{vRLd}, s[{SX}:{SX+3}], s{t0} offen",
              f"buffer_load_dwordx4 v[{GV+4}:{GV+7}], v{vRLd}, s[{SX}:{SX+3}], s{t0} offen offset:1024",
              f"buffer_load_dwordx4 v[{GV+8}:{GV+11}], v{vRLd}, s[{ST}:{ST+3}], 0 offen",
              f"buffer_load_dwordx4 v[{GV+12}:{GV+15}], v{vRLd}, s[{ST}:{ST+3}], 0 offen offset:1024"]
        for q in range(4): vm.issue(("gate", q))
        return ops + ld
    def gate_compute():
        T = GV + 16
        o = [f"v_mov_b32 v{T+2}, 0", f"v_mov_b32 v{T+3}, 0"]
        for q in range(8):
            xr, gr = GV + q, GV + 8 + q
            o += [f"v_lshlrev_b32 v{T}, 16, v{xr}", f"v_and_b32 v{T+1}, 0xffff0000, v{xr}",
                  f"v_lshlrev_b32 v{T+4}, 16, v{gr}", f"v_and_b32 v{T+5}, 0xffff0000, v{gr}",
                  f"v_fma_f32 v{T+2}, v{T}, v{T+4}, v{T+2}", f"v_fma_f32 v{T+3}, v{T+1}, v{T+5}, v{T+3}"]
        o.append(f"v_add_f32 v{T}, v{T+2}, v{T+3}")
        for sh in (8, 4, 2, 1):
            o.append(f"v_add_f32_dpp v{T}, v{T}, v{T} row_ror:{sh} row_mask:0xf bank_mask:0xf")
        o += [f"v_mov_b32 v{T+1}, v{T}", f"v_permlane16_swap_b32 v{T}, v{T+1}", f"v_add_f32 v{T}, v{T}, v{T+1}",
              f"v_mov_b32 v{T+1}, v{T}", f"v_permlane32_swap_b32 v{T}, v{T+1}", f"v_add_f32 v{T}, v{T}, v{T+1}",
              f"v_mul_f32 v{T}, {f2h(-LOG2E)}, v{T}", f"v_exp_f32 v{T}, v{T}", f"v_add_f32 v{T}, 1.0, v{T}", f"v_rcp_f32 v{T}, v{T}",
              f"v_lshlrev_b32 v{T+1}, 2, v{vLane}", f"v_cmp_eq_u32 vcc, 0, v{vLane}", f"v_mov_b32 v{T+2}, {hex(OOB)}", f"v_cndmask_b32 v{T+1}, v{T+2}, v{T+1}, vcc"]
        return o, f"buffer_store_dword v{T}, v{T+1}, s[{SWS}:{SWS+3}], s{sTo} offen"

    def xreads(step):
        tile = step >> 1; kh = step & 1; slot = tile % NA
        base = XF + (step % 2)*16
        hi = 1 if slot == 2 else 0; off = 0 if slot == 2 else slot*A_SLOT
        return [f"ds_read_b128 v[{base+4*tb}:{base+4*tb+3}], v{vX[hi][kh]} offset:{off + tb*2048}" for tb in range(4)]
    def main_loop(role):
        att = role == "A"
        vm = vmA if att else vmG
        nb = 6 if att else 7
        ACC = ACC_A if att else ACC_G
        WSET = 4*nb
        def wreads(step):
            base = WF + (step % 2)*WSET; slot = step % NW; out = []
            for i in range(nb):
                for sec in range(2):
                    r = base + 4*i + 2*sec
                    if att: out.append(f"ds_read_b64_tr_b16 v[{r}:{r+1}], v{vW1[i & 1]} offset:{slot*W_SLOT + sec*768 + (i >> 1)*256}")
                    else:   out.append(f"ds_read_b64_tr_b16 v[{r}:{r+1}], v{vW2[i & 1]} offset:{slot*W_SLOT + sec*1024 + (i >> 1)*256}")
            return out
        def mfmas(step):
            xb = XF + (step % 2)*16; wb = WF + (step % 2)*WSET; out = []
            for i in range(nb):
                for tb in range(4):
                    c = ACC + (i*4+tb)*4
                    w_, x_ = f"v[{wb+4*i}:{wb+4*i+3}]", f"v[{xb+4*tb}:{xb+4*tb+3}]"
                    if att and i >= 4: w_, x_ = x_, w_
                    out.append(f"v_mfma_f32_16x16x32_bf16 v[{c}:{c+3}], {w_}, {x_}, v[{c}:{c+3}]")
            return out
        for i in range(nb*16): a(f"v_mov_b32 v{ACC+i}, 0")
        if not att:
            for grp in dmaW(1):
                for l in grp: a(l)
        need = [("A", 0, e) for e in range(8)] if att else [("W", 0, j) for j in range(4)]
        a(f"s_waitcnt vmcnt({vm.need(need)}) lgkmcnt(0)")
        a("s_barrier")
        for l in xreads(0) + wreads(0): a(l)
        if att:
            att_second()
            a("s_waitcnt lgkmcnt(0)")
        else:
            for grp in dmaW(2):
                for l in grp: a(l)
            a(f"s_cmp_eq_u32 s{sWQ}, 0"); a(f"s_cselect_b32 s{t0}, s{sNJ}, 0"); a(f"s_cmp_ge_u32 s{t0}, 16")
            a(f"s_cbranch_scc0 L_{name}_noc1")
            srd(a, ST, pDBG, 0, 256)
            a(f"s_lshl_b32 s{t1}, s{sMI}, 5")
            a(f"v_mov_b32 v{vA}, 0"); a(f"v_mov_b32 v{vB_}, 1")
            a(f"s_mov_b64 s[{t2}:{t3}], exec"); a("s_mov_b64 exec, 1")
            a(f"buffer_atomic_add v{vB_}, v{vA}, s[{ST}:{ST+3}], s{t1} offen sc1")
            a(f"s_mov_b64 exec, s[{t2}:{t3}]")
            a.label(f"L_{name}_noc1")
            a(f"s_waitcnt vmcnt({max(vm.need([('W', 1, j) for j in range(4)]), 0)}) lgkmcnt(0)")
        a("s_barrier")
        P.stamp(1)
        steps = []; pend_rl = []
        gcomp, gstore = gate_compute()
        GL, GS0, GS1 = 26, 28, 31
        L0 = 2
        for s in range(NS):
            m = mfmas(s); nm = len(m)
            rd = (xreads(s+1) + wreads(s+1)) if s + 1 < NS else []
            dm = []
            if s == GS0: gate_wait = vm.need([("gate", 3)])
            if att:
                t2_ = ((s + 1) >> 1) + 2; half = (s + 1) & 1
                if s == 0: dm += dmaA(2, 0)
                if t2_ < NS // 2: dm += dmaA(t2_, half)
                if s == 1: dm.append(wphi_ops())
                cold = []
                if burst and bmode == 4:
                    inloop = L0 <= s < L0 + 24
                    r = (s - L0) % 12
                    if touch and s == 0: cold += sum([touch_ops(vm, ("T", q)) for q in (2, 3, 4)], [])
                    if inloop and r % 4 == 0:
                        bidx = r // 4
                        if touch: cold += sum([touch_ops(vm, ("T", s, q)) for q in range(2)], [])
                        if relayout:
                            cur = []
                            for bi in range(2 if bidx == 0 else 1):
                                b = vRLb + 4*bi; tag = ("RL", s, bi); vm.issue(tag); cur.append((tag, b))
                                cold += [f"buffer_load_dwordx4 v[{b}:{b+3}], v{vRL}, s[{SRL}:{SRL+3}], s{sRLs} offen {rfl}", f"s_add_u32 s{sRLs}, s{sRLs}, 128"]
                            pend_rl.append(cur)
                    if relayout and inloop and r % 4 == 3:
                        prev = pend_rl.pop(0)
                        n = vm.need([prev[-1][0]])
                        cold.append(f"s_waitcnt vmcnt({n})")
                        for tag, b in prev:
                            vm.issue(("RS", tag))
                            cold += [f"buffer_store_dwordx4 v[{b}:{b+3}], v{vRLd}, s[{SWS}:{SWS+3}], s{sRLd} offen {st}", f"s_add_u32 s{sRLd}, s{sRLd}, {44*8192}"]
                elif burst:
                    if touch and s == 0: cold += sum([touch_ops(vm, ("T", q)) for q in (2, 3, 4)], [])
                    if touch and L0 <= s < L0 + 24 and (s - L0) % U == 1: cold += sum([touch_ops(vm, ("T", s, q)) for q in range(3)], [])
                    if relayout and L0 <= s < L0 + 24:
                        r6 = (s - L0) % U
                        if r6 == 1:
                            for bi in range(2):
                                b = vRLb + 4*bi
                                vm.issue(("RL", s, bi))
                                cold += [f"buffer_load_dwordx4 v[{b}:{b+3}], v{vRL}, s[{SRL}:{SRL+3}], s{sRLs} offen", f"s_add_u32 s{sRLs}, s{sRLs}, 128"]
                        if r6 == 5:
                            n = vm.need([("RL", s - 4, 1)])
                            cold.append(f"s_waitcnt vmcnt({n})")
                            for bi in range(2):
                                b = vRLb + 4*bi
                                vm.issue(("RS", s, bi))
                                cold += [f"buffer_store_dwordx4 v[{b}:{b+3}], v{vRLd}, s[{SWS}:{SWS+3}], s{sRLd} offen {st}", f"s_add_u32 s{sRLd}, s{sRLd}, {44*8192}"]
                    pass
                if burst:
                    if cold: dm.append(cold)
                else:
                    if touch and s < 2:
                        for q in range(2 + s*((PT-1)//2), min(PT, 2 + (s+1)*((PT-1)//2)) if s == 0 else PT): dm.append(touch_ops(vm, ("T", q)))
                    if touch and s % 2 == 0 and s < L0 + 24: dm.append(touch_ops(vm, ("T", s // 2 + PT)))
                    if relayout and L0 <= s < L0 + 24:
                        r6 = (s - L0) % 6
                        if r6 in (0, 2):
                            b = vRLb + 2*r6
                            vm.issue(("RL", s))
                            dm.append([f"buffer_load_dwordx4 v[{b}:{b+3}], v{vRL}, s[{SRL}:{SRL+3}], s{sRLs} offen {rfl}", f"s_add_u32 s{sRLs}, s{sRLs}, 128"])
                        if r6 in (4, 5):
                            src = s - 4 if r6 == 4 else s - 3
                            b = vRLb + (0 if r6 == 4 else 4)
                            n = vm.need([("RL", src)])
                            vm.issue(("RS", s))
                            dm.append([f"s_waitcnt vmcnt({n})", f"buffer_store_dwordx4 v[{b}:{b+3}], v{vRLd}, s[{SWS}:{SWS+3}], s{sRLd} offen {st}", f"s_add_u32 s{sRLd}, s{sRLd}, {44*8192}"])
            else:
                if NW == 4 and s == 0: dm += dmaW(3)
                if s + NW < NS: dm += dmaW(s + NW)
            if att and wsp_tail and s == wsp_tail:
                vm.issue("wsp")
                if wsplit:
                    dm.append([f"s_mov_b32 s{SRL}, s{pWSP}", f"s_mov_b32 s{SRL+1}, s{pWSP+1}", f"s_mov_b32 s{SRL+2}, {2048*4096}", f"s_mov_b32 s{SRL+3}, {hex(SRD3)}",
                               f"s_lshl_b32 s{t0}, s2, 15", f"s_lshl_b32 s{t1}, s{sWQ}, 13", f"s_add_u32 s{t0}, s{t0}, s{t1}", f"s_add_u32 s{t0}, s{t0}, 2048",
                               f"v_lshrrev_b32 v{vRL}, 4, v{vLane}", f"v_lshlrev_b32 v{vRL}, 12, v{vRL}", f"v_and_b32 v{vDum}, 15, v{vLane}", f"v_lshlrev_b32 v{vDum}, 7, v{vDum}",
                               f"v_add_u32 v{vRL}, v{vRL}, v{vDum}", f"v_cmp_gt_u32 vcc, 32, v{vLane}", f"v_mov_b32 v{vDum}, {hex(OOB)}", f"v_cndmask_b32 v{vRL}, v{vDum}, v{vRL}, vcc",
                               f"buffer_load_dword v{vDum}, v{vRL}, s[{SRL}:{SRL+3}], s{t0} offen"])
                else:
                    dm.append([f"s_mov_b32 s{SRL}, s{pWSP}", f"s_mov_b32 s{SRL+1}, s{pWSP+1}", f"s_mov_b32 s{SRL+2}, {2048*4096}", f"s_mov_b32 s{SRL+3}, {hex(SRD3)}",
                               f"s_lshl_b32 s{t0}, s2, 15", f"s_lshl_b32 s{t1}, s{sWQ}, 13", f"s_add_u32 s{t0}, s{t0}, s{t1}",
                               f"v_lshlrev_b32 v{vRL}, 7, v{vLane}", f"buffer_load_dword v{vDum}, v{vRL}, s[{SRL}:{SRL+3}], s{t0} offen"])
            if s == GL: dm.append(gate_loads(vm))
            slots = [[] for _ in range(nm)]
            for k, x in enumerate(rd): slots[min(nm-1, (k*(nm-5))//len(rd))].append(x)
            last_pos = -9
            for k, g in enumerate(dm):
                pos = min(nm-1, 1 + (k*(nm-3))//max(len(dm), 1))
                assert pos - last_pos >= 2, (role, s, k, len(dm)); last_pos = pos
                if g[0].startswith("s_add_u32 m0") or g[0].startswith("s_mul_i32"):
                    n0 = 2 if g[0].startswith("s_mul_i32") else 1
                    slots[pos-1].extend(g[:n0]); slots[pos] = g[n0:] + slots[pos]
                else: slots[pos].extend(g)
            if GS0 <= s < GS1:
                per = -(-len(gcomp)//(GS1 - GS0)); part = gcomp[(s-GS0)*per:(s-GS0+1)*per]
                if s == GS0: slots[0].append(f"s_waitcnt vmcnt({gate_wait})")
                for k, x in enumerate(part): slots[min(nm-1, 1 + (k*(nm-2))//len(part))].append(x)
            if s == GS1:
                vm.issue("gst"); slots[2].append(gstore)
            seq = []
            for k in range(nm):
                seq.append(m[k]); seq += slots[k]
            need = []
            if s + 2 < NS:
                if att: need = [("A", (s+2) >> 1, e) for e in range(8)]
                else: need = [("W", s+2, j) for j in range(4)]
            if s + 1 < NS:
                w = f"s_waitcnt lgkmcnt(0)" if not need else f"s_waitcnt vmcnt({vm.need(need)}) lgkmcnt(0)"
                seq.append(w); seq.append("s_barrier")
            steps.append(seq)
        n_iter = 24 // U
        for s in range(L0):
            for l in steps[s]: a(l)
        fold_loop(a, steps, L0, n_iter, U, f"L_{name}_loop{role}", sIT)
        for s in range(L0 + n_iter*U, NS):
            for l in steps[s]: a(l)
    a.label(f"L_{name}_amain")
    main_loop("A")
    P.stamp(2)
    epilogue_att(a, locals())
    a(f"s_branch L_{name}_fin")
    a.label(f"L_{name}_gmain")
    main_loop("G")
    P.stamp(2)
    epilogue_gmlp(a, locals())
    a.label(f"L_{name}_fin")
    if prof: a("s_waitcnt vmcnt(0)")
    P.stamp(5)
    P.dump(vLane, sW)
    if wsp_epi:
        srd(a, ST, pWSP, 0, 2048*4096)
        a(f"s_lshl_b32 s{t0}, s{sMI}, 4"); a(f"s_add_u32 s{t0}, s{t0}, s{sNJ}"); a(f"s_lshl_b32 s{t0}, s{t0}, 16")
        a(f"s_lshl_b32 s{t1}, s{sW}, 13"); a(f"s_add_u32 s{t0}, s{t0}, s{t1}")
        a(f"s_cmp_lt_u32 s{sNJ}, 16"); a(f"s_cselect_b32 s{t0}, s{t0}, {hex(OOB)}")
        a(f"v_lshlrev_b32 v{vA}, 7, v{vLane}")
        a(f"buffer_load_dword v{vDum}, v{vA}, s[{ST}:{ST+3}], s{t0} offen")
    a.label(f"L_{name}_end")
    a("s_endpgm")
    return kernel_text(name, a, nv=256, ns=102, ao=256), S1_LDS

from s1_epi import epilogue_att, epilogue_gmlp
```

```python
from asmlib import *
from common import *
import struct
LOG2E = 1.4426950408889634
SPIN_MAX = 400000
def f2h(x): return hex(struct.unpack("<I", struct.pack("<f", x))[0])

def allreduce4(a, op, vals, tmp):
    for v, t in zip(vals, tmp): a(f"v_mov_b32 v{t}, v{v}")
    for v, t in zip(vals, tmp): a(f"v_permlane16_swap_b32 v{v}, v{t}")
    for v, t in zip(vals, tmp): a(f"{op} v{v}, v{v}, v{t}")
    for v, t in zip(vals, tmp): a(f"v_mov_b32 v{t}, v{v}")
    for v, t in zip(vals, tmp): a(f"v_permlane32_swap_b32 v{v}, v{t}")
    for v, t in zip(vals, tmp): a(f"{op} v{v}, v{v}, v{t}")

def softmax_pm(a, L, E, tmp, sC):
    mx, mn, t0, t1 = tmp, tmp+1, tmp+2, tmp+3
    a(f"v_max3_f32 v{mx}, v{L}, v{L+1}, v{L+2}"); a(f"v_min3_f32 v{mn}, v{L}, v{L+1}, v{L+2}")
    a(f"v_max3_f32 v{mx}, v{mx}, v{L+3}, v{L+4}"); a(f"v_min3_f32 v{mn}, v{mn}, v{L+3}, v{L+4}")
    a(f"v_max3_f32 v{mx}, v{mx}, v{L+5}, v{L+6}"); a(f"v_min3_f32 v{mn}, v{mn}, v{L+5}, v{L+6}")
    a(f"v_max_f32 v{mx}, v{mx}, v{L+7}"); a(f"v_min_f32 v{mn}, v{mn}, v{L+7}")
    a(f"v_sub_f32 v{mn}, 0, v{mn}")
    allreduce4(a, "v_max_f32", [mx, mn], [t0, t1])
    Bp, Bm, Cp, Cm = tmp + 4, tmp + 6, tmp + 8, tmp + 10
    a(f"v_mul_f32 v{Bp}, {f2h(-LOG2E)}, v{mx}"); a(f"v_mul_f32 v{Bp+1}, {f2h(-LOG2E)}, v{mx}")
    a(f"v_mul_f32 v{Bm}, {f2h(-LOG2E)}, v{mn}"); a(f"v_mul_f32 v{Bm+1}, {f2h(-LOG2E)}, v{mn}")
    a(f"v_mov_b32 v{Cp}, {f2h(LOG2E)}"); a(f"v_mov_b32 v{Cp+1}, {f2h(LOG2E)}"); a(f"v_mov_b32 v{Cm}, {f2h(-LOG2E)}"); a(f"v_mov_b32 v{Cm+1}, {f2h(-LOG2E)}")
    Pp = tmp + 12
    Pm = tmp + 20
    for i in range(0, 8, 2):
        a(f"v_pk_fma_f32 v[{Pp+i}:{Pp+i+1}], v[{L+i}:{L+i+1}], v[{Cp}:{Cp+1}], v[{Bp}:{Bp+1}]")
        a(f"v_pk_fma_f32 v[{Pm+i}:{Pm+i+1}], v[{L+i}:{L+i+1}], v[{Cm}:{Cm+1}], v[{Bm}:{Bm+1}]")
    for i in range(8):
        a(f"v_exp_f32 v{Pp+i}, v{Pp+i}"); a(f"v_exp_f32 v{Pm+i}, v{Pm+i}")
    a(f"v_pk_add_f32 v[{L}:{L+1}], v[{Pp}:{Pp+1}], v[{Pp+2}:{Pp+3}]"); a(f"v_pk_add_f32 v[{L+2}:{L+3}], v[{Pm}:{Pm+1}], v[{Pm+2}:{Pm+3}]")
    a(f"v_pk_add_f32 v[{L+4}:{L+5}], v[{Pp+4}:{Pp+5}], v[{Pp+6}:{Pp+7}]"); a(f"v_pk_add_f32 v[{L+6}:{L+7}], v[{Pm+4}:{Pm+5}], v[{Pm+6}:{Pm+7}]")
    a(f"v_pk_add_f32 v[{L}:{L+1}], v[{L}:{L+1}], v[{L+4}:{L+5}]"); a(f"v_pk_add_f32 v[{L+2}:{L+3}], v[{L+2}:{L+3}], v[{L+6}:{L+7}]")
    a(f"v_add_f32 v{mx}, v{L}, v{L+1}"); a(f"v_add_f32 v{mn}, v{L+2}, v{L+3}")
    allreduce4(a, "v_add_f32", [mx, mn], [t0, t1])
    a(f"v_rcp_f32 v{Bp}, v{mx}"); a(f"v_rcp_f32 v{Bm}, v{mn}")
    a(f"v_mov_b32 v{Bp+1}, v{Bp}"); a(f"v_mov_b32 v{Bm+1}, v{Bm}")
    for i in range(0, 8, 2):
        a(f"v_pk_mul_f32 v[{Pp+i}:{Pp+i+1}], v[{Pp+i}:{Pp+i+1}], v[{Bp}:{Bp+1}]")
        a(f"v_pk_mul_f32 v[{Pm+i}:{Pm+i+1}], v[{Pm+i}:{Pm+i+1}], v[{Bm}:{Bm+1}]")
    for i in range(4):
        a(f"v_cvt_pk_bf16_f32 v{E+i}, v{Pp+2*i}, v{Pp+2*i+1}")
        a(f"v_cvt_pk_bf16_f32 v{E+4+i}, v{Pm+2*i}, v{Pm+2*i+1}")

def softmax_exp(a, L, E, tmp):
    mx, mn, t0, t1 = tmp, tmp+1, tmp+2, tmp+3
    a(f"v_max3_f32 v{mx}, v{L}, v{L+1}, v{L+2}"); a(f"v_min3_f32 v{mn}, v{L}, v{L+1}, v{L+2}")
    a(f"v_max3_f32 v{mx}, v{mx}, v{L+3}, v{L+4}"); a(f"v_min3_f32 v{mn}, v{mn}, v{L+3}, v{L+4}")
    a(f"v_max3_f32 v{mx}, v{mx}, v{L+5}, v{L+6}"); a(f"v_min3_f32 v{mn}, v{mn}, v{L+5}, v{L+6}")
    a(f"v_max_f32 v{mx}, v{mx}, v{L+7}"); a(f"v_min_f32 v{mn}, v{mn}, v{L+7}")
    a(f"v_sub_f32 v{mn}, 0, v{mn}")
    allreduce4(a, "v_max_f32", [mx, mn], [t0, t1])
    Bp, Bm, Cp, Cm = tmp + 4, tmp + 6, tmp + 8, tmp + 10
    a(f"v_mul_f32 v{Bp}, {f2h(-LOG2E)}, v{mx}"); a(f"v_mul_f32 v{Bp+1}, {f2h(-LOG2E)}, v{mx}")
    a(f"v_mul_f32 v{Bm}, {f2h(-LOG2E)}, v{mn}"); a(f"v_mul_f32 v{Bm+1}, {f2h(-LOG2E)}, v{mn}")
    a(f"v_mov_b32 v{Cp}, {f2h(LOG2E)}"); a(f"v_mov_b32 v{Cp+1}, {f2h(LOG2E)}"); a(f"v_mov_b32 v{Cm}, {f2h(-LOG2E)}"); a(f"v_mov_b32 v{Cm+1}, {f2h(-LOG2E)}")
    Pp, Pm = tmp + 12, tmp + 20
    for i in range(0, 8, 2):
        a(f"v_pk_fma_f32 v[{Pp+i}:{Pp+i+1}], v[{L+i}:{L+i+1}], v[{Cp}:{Cp+1}], v[{Bp}:{Bp+1}]")
        a(f"v_pk_fma_f32 v[{Pm+i}:{Pm+i+1}], v[{L+i}:{L+i+1}], v[{Cm}:{Cm+1}], v[{Bm}:{Bm+1}]")
    for i in range(8):
        a(f"v_exp_f32 v{Pp+i}, v{Pp+i}"); a(f"v_exp_f32 v{Pm+i}, v{Pm+i}")
    for i in range(4):
        a(f"v_cvt_pk_bf16_f32 v{E+i}, v{Pp+2*i}, v{Pp+2*i+1}")
        a(f"v_cvt_pk_bf16_f32 v{E+4+i}, v{Pm+2*i}, v{Pm+2*i+1}")

def pack8(a, dst, lo, hi):
    a(f"v_cvt_pk_bf16_f32 v{dst}, v{lo}, v{lo+1}"); a(f"v_cvt_pk_bf16_f32 v{dst+1}, v{lo+2}, v{lo+3}")
    a(f"v_cvt_pk_bf16_f32 v{dst+2}, v{hi}, v{hi+1}"); a(f"v_cvt_pk_bf16_f32 v{dst+3}, v{hi+2}, v{hi+3}")

def epilogue_att(a, E):
    g = lambda k: E[k]
    g("P").stamp(3); g("P").stamp(4)
    name, st = g("name"), g("st")
    vLane, vA, vB_, vC, vD = g("vLane"), g("vA"), g("vB_"), g("vC"), g("vD")
    sWQ, sMI, sNJ, t0, t1, t2, t3, SWS, sC = g("sWQ"), g("sMI"), g("sNJ"), g("t0"), g("t1"), g("t2"), g("t3"), g("SWS"), g("sC")
    ACC = g("ACC_A"); vRLd = g("vRLd"); sH = g("sH")
    from s1 import WPHI, PHI_SCR, KV_SCR, MISC
    acc = lambda i, tb: ACC + (i*4+tb)*4
    WP = 32
    a(f"v_lshrrev_b32 v{vA}, 2, v{vLane}"); a(f"v_lshlrev_b32 v{vA}, 6, v{vA}")
    a(f"v_and_b32 v{vB_}, 3, v{vLane}"); a(f"v_lshlrev_b32 v{vB_}, 3, v{vB_}"); a(f"v_add_u32 v{vA}, v{vA}, v{vB_}")
    a(f"v_add_u32 v{vA}, {WPHI}, v{vA}")
    for fb in range(2):
        for sec in range(2):
            r = WP + 4*fb + 2*sec
            a(f"ds_read_b64_tr_b16 v[{r}:{r+1}], v{vA} offset:{sec*1024 + fb*32}")
    a(f"s_lshl_b32 s{t0}, s{g('sHq')}, 7"); a(f"s_lshl_b32 s{t1}, s{sMI}, 4"); a(f"s_add_u32 s{t0}, s{t0}, s{t1}")
    a(f"s_lshl_b32 s{t1}, s{sWQ}, 2"); a(f"s_add_u32 s{t0}, s{t0}, s{t1}"); a(f"s_lshl_b32 s{t0}, s{t0}, 10"); a(f"s_add_u32 s{t0}, s{t0}, {QBUF_OFF}")
    QF = 40
    for tb in range(4):
        pack8(a, QF+4*tb, acc(0, tb), acc(1, tb))
        a(f"buffer_store_dwordx4 v[{QF+4*tb}:{QF+4*tb+3}], v{vRLd}, s[{SWS}:{SWS+3}], s{t0} offen offset:{tb*1024} {st}")
    KF = 56
    for tb in range(4): pack8(a, KF+4*tb, acc(2, tb), acc(3, tb))
    a("s_waitcnt lgkmcnt(0)")
    LG = acc(0, 0)
    for tb in range(4):
        for fb in range(2):
            d = LG + tb*8 + fb*4
            a(f"v_mfma_f32_16x16x32_bf16 v[{d}:{d+3}], v[{WP+4*fb}:{WP+4*fb+3}], v[{KF+4*tb}:{KF+4*tb+3}], 0")
    VF = 72
    for Pp in range(2):
        for db in range(2):
            pack8(a, VF + (Pp*2+db)*4, acc(4+db, 2*Pp), acc(4+db, 2*Pp+1))
    vPW, vPR = 88, 89
    a(f"v_and_b32 v{vA}, 15, v{vLane}"); a(f"v_lshlrev_b32 v{vA}, 5, v{vA}"); a(f"v_lshrrev_b32 v{vB_}, 4, v{vLane}"); a(f"v_lshlrev_b32 v{vB_}, 3, v{vB_}")
    a(f"v_add_u32 v{vPW}, v{vA}, v{vB_}"); a(f"s_lshl_b32 s{t0}, s{sWQ}, 13"); a(f"s_add_u32 s{t0}, s{t0}, {PHI_SCR}"); a(f"v_add_u32 v{vPW}, s{t0}, v{vPW}")
    a(f"v_lshrrev_b32 v{vA}, 2, v{vLane}"); a(f"v_lshlrev_b32 v{vA}, 5, v{vA}"); a(f"v_and_b32 v{vB_}, 3, v{vLane}"); a(f"v_lshlrev_b32 v{vB_}, 3, v{vB_}")
    a(f"v_add_u32 v{vPR}, v{vA}, v{vB_}"); a(f"v_add_u32 v{vPR}, s{t0}, v{vPR}")
    PH = 90
    TMP = acc(2, 0)
    for tb in range(4):
        softmax_pm(a, LG + tb*8, PH, TMP, sC)
        for sg in range(2):
            for fb in range(2):
                r = PH + 4*sg + 2*fb
                a(f"ds_write_b64 v{vPW}, v[{r}:{r+1}] offset:{(2*sg+fb)*2048 + tb*512}")
    a("s_waitcnt lgkmcnt(0)")
    PF = acc(0, 0)
    for Pp in range(2):
        for sg in range(2):
            for fb in range(2):
                r = PF + ((Pp*2+sg)*2+fb)*4
                for sec in range(2):
                    a(f"ds_read_b64_tr_b16 v[{r+2*sec}:{r+2*sec+1}], v{vPR} offset:{(2*sg+fb)*2048 + (2*Pp+sec)*512}")
    ONE = 98
    for i in range(4): a(f"v_mov_b32 v{ONE+i}, 0x3f803f80")
    KV = acc(2, 0)
    a("s_waitcnt lgkmcnt(0)")
    for Pp in range(2):
        for sg in range(2):
            for fb in range(2):
                pf = PF + ((Pp*2+sg)*2+fb)*4
                for db in range(3):
                    d = KV + ((sg*2+fb)*3+db)*4
                    b = (VF + (Pp*2+db)*4) if db < 2 else ONE
                    cin = "0" if Pp == 0 else f"v[{d}:{d+3}]"
                    a(f"v_mfma_f32_16x16x32_bf16 v[{d}:{d+3}], v[{pf}:{pf+3}], v[{b}:{b+3}], {cin}")
    a(f"s_mul_i32 s{t0}, s{sWQ}, 12288"); a(f"s_add_u32 s{t0}, s{t0}, {KV_SCR}")
    a(f"v_add_u32 v{vA}, s{t0}, v{vRLd}")
    for b in range(12):
        a(f"ds_write_b128 v{vA}, v[{KV+4*b}:{KV+4*b+3}] offset:{b*1024}")
    a("s_waitcnt lgkmcnt(0)")
    a(f"v_mov_b32 v{vB_}, {MISC}"); a(f"v_mov_b32 v{vC}, 1")
    a(f"s_mov_b64 s[{t2}:{t3}], exec"); a("s_mov_b64 exec, 1")
    a(f"ds_add_u32 v{vB_}, v{vC}")
    a(f"s_mov_b64 exec, s[{t2}:{t3}]")
    a(f"s_mov_b32 s{t1}, 0")
    a.label(f"L_{name}_kvspin")
    a(f"ds_read_b32 v{vC}, v{vB_}")
    a("s_waitcnt lgkmcnt(0)")
    a(f"v_readfirstlane_b32 s{t0}, v{vC}")
    a(f"s_add_u32 s{t1}, s{t1}, 1")
    a(f"s_cmp_ge_u32 s{t1}, {SPIN_MAX}")
    a(f"s_cbranch_scc1 L_{name}_kvgo")
    a(f"s_cmp_lt_u32 s{t0}, 4")
    a(f"s_cbranch_scc1 L_{name}_kvspin")
    a.label(f"L_{name}_kvgo")
    a(f"s_mul_i32 s{t0}, s{sWQ}, 3072"); a(f"s_add_u32 s{t0}, s{t0}, {KV_SCR}")
    a(f"v_add_u32 v{vA}, s{t0}, v{vRLd}")
    R = 32
    for w in range(4):
        for b in range(3):
            r = R + (w*3+b)*4
            a(f"ds_read_b128 v[{r}:{r+3}], v{vA} offset:{w*12288 + b*1024}")
    a("s_waitcnt lgkmcnt(0)")
    for b in range(3):
        for hlf in range(2):
            r = R + b*4 + 2*hlf
            a(f"v_pk_add_f32 v[{r}:{r+1}], v[{r}:{r+1}], v[{r+12}:{r+13}]")
            a(f"v_pk_add_f32 v[{r+24}:{r+25}], v[{r+24}:{r+25}], v[{r+36}:{r+37}]")
            a(f"v_pk_add_f32 v[{r}:{r+1}], v[{r}:{r+1}], v[{r+24}:{r+25}]")
    a(f"s_lshl_b32 s{t0}, s{sMI}, 5"); a(f"s_add_u32 s{t0}, s{t0}, s{sH}"); a(f"s_mul_i32 s{t0}, s{t0}, 12288")
    a(f"s_mul_i32 s{t1}, s{sWQ}, 3072"); a(f"s_add_u32 s{t0}, s{t0}, s{t1}"); a(f"s_add_u32 s{t0}, s{t0}, {KVP_OFF}")
    for b in range(3):
        a(f"buffer_store_dwordx4 v[{R+4*b}:{R+4*b+3}], v{vRLd}, s[{SWS}:{SWS+3}], s{t0} offen offset:{b*1024} {st}")

def epilogue_gmlp(a, E):
    g = lambda k: E[k]
    name, st, P = g("name"), g("st"), g("P")
    vLane, vA, vB_, vC, vD = g("vLane"), g("vA"), g("vB_"), g("vC"), g("vD")
    sWQ, sMI, sNJ, t0, t1, t2, t3, SWS, sC, pDBG, ST = g("sWQ"), g("sMI"), g("sNJ"), g("t0"), g("t1"), g("t2"), g("t3"), g("SWS"), g("sC"), g("pDBG"), g("ST")
    ACC = g("ACC_G"); vRLd = g("vRLd"); sIT = g("sIT")
    from s1 import MISC
    acc = lambda i, tb: ACC + (i*4+tb)*4
    a("s_setprio 2") if g("prio") else None
    vZ, vC1 = 24, 28
    srd(a, ST, pDBG, 0, 256)
    a(f"v_mov_b32 v{vZ}, 0"); a(f"s_lshl_b32 s{t1}, s{sMI}, 5")
    a(f"buffer_load_dword v{vC1}, v{vZ}, s[{ST}:{ST+3}], s{t1} offen sc1")
    c1 = -2.0*0.7978845608028654*LOG2E; c3 = c1*0.044715
    CP = 44
    a(f"v_mov_b32 v{CP}, {f2h(c3)}"); a(f"v_mov_b32 v{CP+1}, {f2h(c3)}"); a(f"v_mov_b32 v{CP+2}, {f2h(c1)}"); a(f"v_mov_b32 v{CP+3}, {f2h(c1)}")
    TM = 34
    pairs = [ACC + 2*i for i in range(56)]
    for k in range(0, 56, 4):
        ps = pairs[k:k+4]; ts = [TM + 2*i for i in range(4)]
        for p, t in zip(ps, ts): a(f"v_pk_mul_f32 v[{t}:{t+1}], v[{p}:{p+1}], v[{p}:{p+1}]")
        for p, t in zip(ps, ts): a(f"v_pk_fma_f32 v[{t}:{t+1}], v[{t}:{t+1}], v[{CP}:{CP+1}], v[{CP+2}:{CP+3}]")
        for p, t in zip(ps, ts): a(f"v_pk_mul_f32 v[{t}:{t+1}], v[{t}:{t+1}], v[{p}:{p+1}]")
        for p, t in zip(ps, ts): a(f"v_exp_f32 v{t}, v{t}"); a(f"v_exp_f32 v{t+1}, v{t+1}")
        for p, t in zip(ps, ts): a(f"v_pk_add_f32 v[{t}:{t+1}], v[{t}:{t+1}], s[{sC}:{sC+1}]")
        for p, t in zip(ps, ts): a(f"v_rcp_f32 v{t}, v{t}"); a(f"v_rcp_f32 v{t+1}, v{t+1}")
        for p, t in zip(ps, ts): a(f"v_pk_mul_f32 v[{p}:{p+1}], v[{p}:{p+1}], v[{t}:{t+1}]")
    P.stamp(3); P.stamp(4)
    a(f"s_cmp_lt_u32 s{sNJ}, 16")
    a(f"s_cbranch_scc1 L_{name}_gstore")
    S = 34; Q = 42
    for tb in range(4):
        x = acc(0, tb)
        a(f"v_pk_add_f32 v[{S+2*tb}:{S+2*tb+1}], v[{x}:{x+1}], v[{x+2}:{x+3}]")
        a(f"v_pk_mul_f32 v[{Q+2*tb}:{Q+2*tb+1}], v[{x}:{x+1}], v[{x}:{x+1}]")
    for i in range(7):
        for hlf in range(2):
            if i == 0 and hlf == 0: continue
            for tb in range(4):
                x = acc(i, tb) + 2*hlf
                if not (i == 0): a(f"v_pk_add_f32 v[{S+2*tb}:{S+2*tb+1}], v[{S+2*tb}:{S+2*tb+1}], v[{x}:{x+1}]")
                a(f"v_pk_fma_f32 v[{Q+2*tb}:{Q+2*tb+1}], v[{x}:{x+1}], v[{x}:{x+1}], v[{Q+2*tb}:{Q+2*tb+1}]")
    for tb in range(4):
        a(f"v_add_f32 v{S+2*tb}, v{S+2*tb}, v{S+2*tb+1}"); a(f"v_add_f32 v{Q+2*tb}, v{Q+2*tb}, v{Q+2*tb+1}")
    for B in (S, Q):
        a(f"v_permlane16_swap_b32 v{B}, v{B+2}"); a(f"v_permlane16_swap_b32 v{B+4}, v{B+6}")
        a(f"v_add_f32 v{B}, v{B}, v{B+2}"); a(f"v_add_f32 v{B+4}, v{B+4}, v{B+6}")
        a(f"v_permlane32_swap_b32 v{B}, v{B+4}")
        a(f"v_add_f32 v{B}, v{B}, v{B+4}")
    a(f"v_mov_b32 v{S+1}, v{Q}")
    sSt = g("sSt")
    a(f"v_lshlrev_b32 v{vD}, 3, v{vLane}")
    a(f"buffer_store_dwordx2 v[{S}:{S+1}], v{vD}, s[{SWS}:{SWS+3}], s{sSt} offen sc1")
    a("s_setprio 0") if g("prio") else None
    P.stamp(3)
    a("s_waitcnt vmcnt(1)")
    a(f"s_mov_b32 s{sIT}, 0")
    a(f"s_lshl_b32 s{t1}, s{sMI}, 5")
    a.label(f"L_{name}_c1chk")
    a(f"v_readfirstlane_b32 s{t0}, v{vC1}")
    a(f"s_add_u32 s{sIT}, s{sIT}, 1")
    a(f"s_cmp_ge_u32 s{sIT}, {SPIN_MAX}")
    a(f"s_cbranch_scc1 L_{name}_c1ok")
    a(f"s_cmp_ge_u32 s{t0}, 16")
    a(f"s_cbranch_scc1 L_{name}_c1ok")
    a("s_sleep 2")
    a(f"buffer_load_dword v{vC1}, v{vZ}, s[{ST}:{ST+3}], s{t1} offen sc1")
    a("s_waitcnt vmcnt(0)")
    a(f"s_branch L_{name}_c1chk")
    a.label(f"L_{name}_c1ok")
    a(f"s_lshl_b32 s{t0}, s{sMI}, 15"); a(f"s_lshl_b32 s{t1}, s{sWQ}, 9"); a(f"s_add_u32 s{t0}, s{t0}, s{t1}"); a(f"s_add_u32 s{t1}, s{t0}, {STAT_OFF}")
    a(f"v_and_b32 v{vZ+1}, 15, v{vLane}"); a(f"v_lshlrev_b32 v{vZ+1}, 11, v{vZ+1}")
    a(f"s_mov_b32 s{sIT}, 0")
    if g("first_gather"): a(f"s_branch L_{name}_lnok")
    a.label(f"L_{name}_lnpoll")
    a(f"buffer_load_dwordx2 v[{vZ+2}:{vZ+3}], v{vZ+1}, s[{SWS}:{SWS+3}], s{t1} offen sc1")
    a("s_waitcnt vmcnt(0)")
    a(f"v_cmp_gt_f32 vcc, 0, v{vZ+3}")
    a(f"s_add_u32 s{sIT}, s{sIT}, 1")
    a(f"s_cmp_ge_u32 s{sIT}, {SPIN_MAX}")
    a(f"s_cbranch_scc1 L_{name}_lnok")
    a(f"s_cmp_eq_u64 vcc, 0")
    a(f"s_cbranch_scc1 L_{name}_lnok")
    a("s_sleep 1")
    a(f"s_branch L_{name}_lnpoll")
    a.label(f"L_{name}_lnok")
    a("s_setprio 2") if g("prio") else None
    P.stamp(4)
    Gt = 34
    a(f"v_lshlrev_b32 v{vD}, 3, v{vLane}")
    a.label(f"L_{name}_lngather")
    a(f"s_mov_b32 s{t0}, s{t1}")
    for j in range(16):
        a(f"buffer_load_dwordx2 v[{Gt+2*j}:{Gt+2*j+1}], v{vD}, s[{SWS}:{SWS+3}], s{t0} offen sc1")
        a(f"s_add_u32 s{t0}, s{t0}, 2048")
    a("s_waitcnt vmcnt(0)")
    q = lambda j: Gt + 2*j + 1
    a(f"v_min3_f32 v{vA}, v{q(0)}, v{q(1)}, v{q(2)}")
    for j in range(3, 15, 2): a(f"v_min3_f32 v{vA}, v{vA}, v{q(j)}, v{q(j+1)}")
    a(f"v_min_f32 v{vA}, v{vA}, v{q(15)}")
    a(f"v_cmp_gt_f32 vcc, 0, v{vA}")
    a(f"s_add_u32 s{sIT}, s{sIT}, 1")
    a(f"s_cmp_ge_u32 s{sIT}, {SPIN_MAX}")
    a(f"s_cbranch_scc1 L_{name}_lngo")
    a(f"s_cmp_eq_u64 vcc, 0")
    a(f"s_cbranch_scc0 L_{name}_lnpoll")
    a.label(f"L_{name}_lngo")
    for hlf in (8, 4, 2, 1):
        for j in range(hlf):
            a(f"v_pk_add_f32 v[{Gt+2*j}:{Gt+2*j+1}], v[{Gt+2*j}:{Gt+2*j+1}], v[{Gt+2*(j+hlf)}:{Gt+2*(j+hlf)+1}]")
    M = Gt + 2
    a(f"v_mul_f32 v{Gt}, {f2h(1.0/1792)}, v{Gt}")
    a(f"v_mul_f32 v{Gt+1}, {f2h(1.0/1792)}, v{Gt+1}")
    a(f"v_fma_f32 v{M}, -v{Gt}, v{Gt}, v{Gt+1}")
    a(f"v_max_f32 v{M}, 0, v{M}")
    a(f"v_add_f32 v{M}, {f2h(1e-5)}, v{M}")
    a(f"v_rsq_f32 v{M}, v{M}")
    a(f"v_mul_f32 v{M+1}, v{Gt}, v{M}"); a(f"v_sub_f32 v{M+1}, 0, v{M+1}")
    N = 40
    norm = g("norm")
    a(f"v_and_b32 v{vA}, 15, v{vLane}"); a(f"v_lshlrev_b32 v{vA}, 2, v{vA}")
    for tb in range(4):
        a(f"v_add_u32 v{vB_}, {64*tb}, v{vA}")
        a(f"ds_bpermute_b32 v{N+2*tb}, v{vB_}, v{M}"); a(f"ds_bpermute_b32 v{N+2*tb+1}, v{vB_}, v{M+1}")
    a("s_waitcnt lgkmcnt(0)")
    if norm == "pair":
        N2 = 48
        for tb in range(4):
            a(f"v_mov_b32 v{N2+4*tb}, v{N+2*tb}"); a(f"v_mov_b32 v{N2+4*tb+1}, v{N+2*tb}")
            a(f"v_mov_b32 v{N2+4*tb+2}, v{N+2*tb+1}"); a(f"v_mov_b32 v{N2+4*tb+3}, v{N+2*tb+1}")
    for i in range(7):
        for tb in range(4):
            for hlf in range(2):
                x = acc(i, tb) + 2*hlf
                if norm == "opsel":
                    a(f"v_pk_fma_f32 v[{x}:{x+1}], v[{x}:{x+1}], v[{N+2*tb}:{N+2*tb+1}], v[{N+2*tb}:{N+2*tb+1}] op_sel:[0,0,1] op_sel_hi:[1,0,1]")
                elif norm == "pair":
                    a(f"v_pk_fma_f32 v[{x}:{x+1}], v[{x}:{x+1}], v[{N2+4*tb}:{N2+4*tb+1}], v[{N2+4*tb+2}:{N2+4*tb+3}]")
                else:
                    a(f"v_fma_f32 v{x}, v{x}, v{N+2*tb}, v{N+2*tb+1}"); a(f"v_fma_f32 v{x+1}, v{x+1}, v{N+2*tb}, v{N+2*tb+1}")
    P.stamp(3) if False else None
    a.label(f"L_{name}_gstore")
    a(f"s_lshl_b32 s{t0}, s{sMI}, 3"); a(f"s_lshl_b32 s{t1}, s{sWQ}, 1"); a(f"s_add_u32 s{t0}, s{t0}, s{t1}"); a(f"s_mul_i32 s{t0}, s{t0}, 112")
    a(f"s_and_b32 s{t1}, s{sNJ}, 15"); a(f"s_mul_i32 s{t1}, s{t1}, 7"); a(f"s_add_u32 s{t0}, s{t0}, s{t1}"); a(f"s_lshl_b32 s{t0}, s{t0}, 10")
    a(f"s_cmp_lt_u32 s{sNJ}, 16"); a(f"s_cselect_b32 s{t1}, 0, {Z2_OFF - Z1_OFF}"); a(f"s_add_u32 s{t0}, s{t0}, s{t1}"); a(f"s_add_u32 s{t0}, s{t0}, {Z1_OFF}")
    O = 32
    k = 0
    for Pp in range(2):
        for i in range(7):
            r = O + 4*(k % 8); k += 1
            pack8(a, r, acc(i, 2*Pp), acc(i, 2*Pp+1))
            if i % 4 == 0 and i > 0 or (i == 0 and Pp == 1): pass
            a(f"buffer_store_dwordx4 v[{r}:{r+3}], v{vRLd}, s[{SWS}:{SWS+3}], s{t0} offen offset:{(i % 4)*1024} {st}")
            if i == 3: a(f"s_add_u32 s{t0}, s{t0}, 4096")
            if i == 6: a(f"s_add_u32 s{t0}, s{t0}, {112*1024 - 4096}")
```

```python
from asmlib import *
from common import *
from s1_epi import softmax_pm, softmax_exp, pack8, f2h, LOG2E

SLOT = 32768
def gen_s2(name="s2_kernel", prof=False, st="sc1", R=4, pmode="epi", relayout=False, place="early", stag=False, rl_tail=False, w_touch=False, mfsum=True, qall=False):
    a = Asm()
    P = Prof(a, prof); P.mode = pmode
    NS = 32
    pPHI, pWSP, pBSP, pWS = 4, 6, 8, 10
    SX, SZ, SWS, SB = 12, 16, 20, 24
    sW, sTH, sFH, sKH, sTB, sFB, sIT = 28, 29, 30, 31, 32, 33, 34
    sKX, sKZ, sMx, sMz = 35, 36, 37, 38
    t0, t1, t2, t3 = 40, 41, 42, 43
    sC = 44
    pWO, pWOUT, SRL = 46, 48, 52
    sRg, sRn, sRs, sRd, sRi = 50, 51, 56, 57, 58
    vLane, vA, vB_, vC, vD = 1, 2, 3, 4, 5
    vXs = [6, 7]; vZs = [8, 9]
    vXr = [10, 11]; vZr = [12, 13]
    vL16 = 14
    vG = [16, 17]; vBs = [18, 19]
    XF, ZF = 32, 64
    ACC = 96
    Z1R = 160
    a("s_cmp_ge_u32 s2, 256")
    a(f"s_cbranch_scc1 L_{name}_end")
    P.stamp(0)
    a(f"s_load_dwordx2 s[{pPHI}:{pPHI+1}], s[0:1], {KA_WPHI}")
    a(f"s_load_dwordx2 s[{pWSP}:{pWSP+1}], s[0:1], {KA_WSP}")
    a(f"s_load_dwordx2 s[{pBSP}:{pBSP+1}], s[0:1], {KA_BSP}")
    a(f"s_load_dwordx2 s[{pWS}:{pWS+1}], s[0:1], {KA_WS}")
    a(f"s_load_dwordx2 s[{pWO}:{pWO+1}], s[0:1], {KA_WO}")
    a(f"s_load_dwordx2 s[{pWOUT}:{pWOUT+1}], s[0:1], {KA_WOUT}")
    a(f"v_lshrrev_b32 v{vA}, 6, v0")
    a(f"v_and_b32 v{vLane}, 63, v0")
    a(f"v_readfirstlane_b32 s{sW}, v{vA}")
    a(f"v_lshlrev_b32 v{vL16}, 4, v{vLane}")
    a(f"s_and_b32 s{t0}, s2, 7"); a(f"s_lshr_b32 s{t1}, s2, 3")
    a(f"s_mov_b32 s{sC}, 1.0"); a(f"s_mov_b32 s{sC+1}, 1.0")
    a("s_waitcnt lgkmcnt(0)")
    P.stamp(3, "pro")
    srd(a, SWS, pWS, 0, WS_USED)
    a(f"s_cmp_ge_u32 s{t1}, 28")
    a(f"s_cbranch_scc1 L_{name}_att")
    a(f"s_lshr_b32 s{t2}, s{t0}, 1"); a(f"s_lshl_b32 s{t2}, s{t2}, 2"); a(f"s_and_b32 s{t3}, s{t1}, 3"); a(f"s_add_u32 s{sTB}, s{t2}, s{t3}")
    a(f"s_and_b32 s{t2}, s{t0}, 1"); a(f"s_mul_i32 s{t2}, s{t2}, 7"); a(f"s_lshr_b32 s{t3}, s{t1}, 2"); a(f"s_add_u32 s{sFB}, s{t2}, s{t3}")
    a(f"s_and_b32 s{sTH}, s{sW}, 1"); a(f"s_bfe_u32 s{sFH}, s{sW}, 0x10001"); a(f"s_lshr_b32 s{sKH}, s{sW}, 2")
    srd(a, SX, pWSP, 0, 2048*4096)
    srd(a, SZ, pWS, Z2_OFF, Z2_SZ)
    srd(a, SB, pBSP, 0, 4096)
    def hswz(dst, u, tmp):
        a(f"v_lshrrev_b32 v{tmp}, 1, v{u}"); a(f"v_lshrrev_b32 v{dst}, 2, v{u}"); a(f"v_xor_b32 v{tmp}, v{tmp}, v{dst}"); a(f"v_and_b32 v{tmp}, 1, v{tmp}")
        a(f"v_and_b32 v{dst}, 1, v{u}"); a(f"v_lshl_or_b32 v{tmp}, v{dst}, 1, v{tmp}"); a(f"v_and_b32 v{dst}, 4, v{u}"); a(f"v_or_b32 v{dst}, v{dst}, v{tmp}")
    for e in range(2):
        a(f"v_lshrrev_b32 v{vA}, 4, v{vLane}"); a(f"v_add_u32 v{vA}, {4*e}, v{vA}")
        hswz(vB_, vA, vC)
        a(f"v_and_b32 v{vA}, 7, v{vLane}"); a(f"v_xor_b32 v{vA}, v{vA}, v{vB_}"); a(f"v_lshlrev_b32 v{vA}, 4, v{vA}")
        a(f"v_lshrrev_b32 v{vB_}, 3, v{vLane}")
        a(f"s_lshl_b32 s{t2}, s{sTB}, 7"); a(f"s_lshl_b32 s{t3}, s{sW}, 4"); a(f"s_add_u32 s{t2}, s{t2}, s{t3}"); a(f"s_add_u32 s{t2}, s{t2}, {8*e}")
        a(f"v_add_u32 v{vB_}, s{t2}, v{vB_}"); a(f"v_lshlrev_b32 v{vB_}, 12, v{vB_}"); a(f"v_add_u32 v{vXs[e]}, v{vB_}, v{vA}")
    a(f"v_bfe_u32 v{vA}, v{vLane}, 2, 2"); a(f"v_lshlrev_b32 v{vA}, 8, v{vA}")
    a(f"v_lshrrev_b32 v{vB_}, 4, v{vLane}"); a(f"v_lshlrev_b32 v{vB_}, 6, v{vB_}"); a(f"v_add_u32 v{vA}, v{vA}, v{vB_}")
    a(f"v_and_b32 v{vB_}, 3, v{vLane}"); a(f"v_lshlrev_b32 v{vB_}, 4, v{vB_}"); a(f"v_add_u32 v{vA}, v{vA}, v{vB_}")
    a(f"s_mul_i32 s{t2}, s{sKH}, 112"); a(f"s_lshl_b32 s{t3}, s{sFB}, 3"); a(f"s_add_u32 s{t2}, s{t2}, s{t3}")
    a(f"s_and_b32 s{t3}, s{sW}, 3"); a(f"s_lshl_b32 s{t3}, s{t3}, 1"); a(f"s_add_u32 s{t2}, s{t2}, s{t3}"); a(f"s_lshl_b32 s{t2}, s{t2}, 10")
    a(f"v_add_u32 v{vZs[0]}, s{t2}, v{vA}"); a(f"v_add_u32 v{vZs[1]}, 1024, v{vZs[0]}")
    a(f"s_lshl_b32 s{sMx}, s{sW}, 11"); a(f"s_add_u32 s{sMz}, s{sMx}, 16384")
    a(f"s_mov_b32 s{sKX}, 0"); a(f"s_mov_b32 s{sKZ}, 0")
    vm = VmTracker()
    def dma(tile):
        slot = tile % R; out = []
        for e in range(2):
            vm.issue(("T", tile, e))
            out.append([f"s_add_u32 m0, s{sMx}, {slot*SLOT + e*1024}", f"buffer_load_dwordx4 v{vXs[e]}, s[{SX}:{SX+3}], s{sKX} offen lds"])
        for e in range(2):
            vm.issue(("T", tile, 2+e))
            out.append([f"s_add_u32 m0, s{sMz}, {slot*SLOT + e*1024}", f"buffer_load_dwordx4 v{vZs[e]}, s[{SZ}:{SZ+3}], s{sKZ} offen lds"])
        out[-1] += [f"s_add_u32 s{sKX}, s{sKX}, 128", f"s_add_u32 s{sKZ}, s{sKZ}, {2*112*1024}"]
        return out
    for g_ in dma(0):
        for l in g_: a(l)
    P.stamp(4, "pro")
    def epi_loads():
        o = []
        o += [f"s_lshl_b32 s{t2}, s{sTB}, 7", f"s_lshl_b32 s{t3}, s{sTH}, 6", f"s_add_u32 s{t2}, s{t2}, s{t3}", f"s_lshl_b32 s{t3}, s{sKH}, 5", f"s_add_u32 s{t2}, s{t2}, s{t3}",
              f"v_and_b32 v{vA}, 15, v{vLane}", f"v_add_u32 v{vA}, s{t2}, v{vA}",
              f"v_lshlrev_b32 v{vB_}, 2, v{vA}", f"v_add_u32 v{vB_}, {GATE_OFF}, v{vB_}", f"v_lshlrev_b32 v{vC}, 1, v{vA}"]
        g1 = list(o); o = []
        for ii in range(2):
            o.append(f"buffer_load_dword v{vG[ii]}, v{vB_}, s[{SWS}:{SWS+3}], 0 offen offset:{64*ii}"); vm.issue(("g", ii))
            o.append(f"buffer_load_ushort v{vBs[ii]}, v{vC}, s[{SB}:{SB+3}], 0 offen offset:{32*ii}"); vm.issue(("b", ii))
        g2 = list(o)
        o = [f"s_lshl_b32 s{t2}, s{sTB}, 2", f"s_lshl_b32 s{t3}, s{sTH}, 1", f"s_add_u32 s{t2}, s{t2}, s{t3}", f"s_add_u32 s{t2}, s{t2}, s{sKH}", f"s_mul_i32 s{t2}, s{t2}, 112",
             f"s_lshl_b32 s{t3}, s{sFB}, 3", f"s_add_u32 s{t2}, s{t2}, s{t3}", f"s_lshl_b32 s{t3}, s{sFH}, 2", f"s_add_u32 s{t2}, s{t2}, s{t3}",
             f"s_lshl_b32 s{t2}, s{t2}, 10", f"s_add_u32 s{t2}, s{t2}, {Z1_OFF}"]
        g3 = list(o); o = []
        for i2 in range(4):
            o.append(f"buffer_load_dwordx4 v[{Z1R+4*i2}:{Z1R+4*i2+3}], v{vL16}, s[{SWS}:{SWS+3}], s{t2} offen offset:{1024*i2}"); vm.issue(("z1", i2))
        return [g1, g2, g3, o]
    RLT, vRLt = 176, 15
    def rl_loads():
        o = [f"s_and_b32 s{t0}, s2, 7", f"s_mul_i32 s{t0}, s{t0}, 28", f"s_lshr_b32 s{t1}, s2, 3", f"s_add_u32 s{t0}, s{t0}, s{t1}",
             f"s_lshl_b32 s{t0}, s{t0}, 3", f"s_add_u32 s{t0}, s{t0}, s{sW}",
             f"s_lshr_b32 s{t1}, s{t0}, 2", f"s_and_b32 s{t2}, s{t0}, 3",
             f"s_cmp_lt_u32 s{t1}, 128",
             f"s_cselect_b32 s{SRL}, s{pWO}, s{pWOUT}", f"s_cselect_b32 s{SRL+1}, s{pWO+1}, s{pWOUT+1}",
             f"s_mov_b32 s{t3}, {1792*2048}", f"s_cselect_b32 s{SRL+2}, {1024*2048}, s{t3}", f"s_mov_b32 s{SRL+3}, {hex(SRD3)}",
             f"s_cselect_b32 s{t3}, 0, 128", f"s_sub_u32 s{t3}, s{t1}, s{t3}", f"s_lshl_b32 s{t3}, s{t3}, 14",
             f"s_lshl_b32 s{sRs}, s{t2}, 9", f"s_add_u32 s{sRs}, s{sRs}, s{t3}",
             f"s_mul_i32 s{sRd}, s{t2}, {4*44*8192}", f"s_lshl_b32 s{t3}, s{t1}, 10", f"s_add_u32 s{sRd}, s{sRd}, s{t3}", f"s_add_u32 s{sRd}, s{sRd}, {WT_OFF}",
             f"s_cmp_lt_u32 s{t0}, 1408", f"s_cselect_b32 s{sRs}, s{sRs}, 0x40000000", f"s_cselect_b32 s{sRd}, s{sRd}, 0x40000000"]
        v = [f"v_lshrrev_b32 v{vA}, 3, v{vLane}", f"v_lshrrev_b32 v{vB_}, 1, v{vA}", f"v_bfe_u32 v{vC}, v{vLane}, 1, 2", f"v_xor_b32 v{vC}, v{vC}, v{vB_}",
             f"v_lshlrev_b32 v{vC}, 5, v{vC}", f"v_and_b32 v{vB_}, 1, v{vLane}", f"v_lshlrev_b32 v{vB_}, 4, v{vB_}", f"v_add_u32 v{vC}, v{vC}, v{vB_}",
             f"v_lshlrev_b32 v{vA}, 11, v{vA}", f"v_add_u32 v{vRLt}, v{vA}, v{vC}"]
        ld = []
        for i in range(4):
            vm.issue(("RL", i))
            ld.append(f"buffer_load_dwordx4 v[{RLT+4*i}:{RLT+4*i+3}], v{vRLt}, s[{SRL}:{SRL+3}], s{sRs} offen offset:{128*i}")
        return [o, v, ld]
    a(f"v_and_b32 v{vA}, 15, v{vLane}"); a(f"v_lshrrev_b32 v{vD}, 1, v{vA}")
    hswz(vB_, vD, vC)
    a(f"v_lshrrev_b32 v{vC}, 4, v{vLane}")
    a(f"v_and_b32 v{vD}, 1, v{vC}"); a(f"v_lshlrev_b32 v{vD}, 1, v{vD}"); a(f"v_lshrrev_b32 v{vC}, 1, v{vC}"); a(f"v_or_b32 v{vC}, v{vC}, v{vD}")
    a(f"s_lshl_b32 s{t2}, s{sKH}, 2"); a(f"v_or_b32 v{vC}, s{t2}, v{vC}"); a(f"v_xor_b32 v{vC}, v{vC}, v{vB_}"); a(f"v_lshlrev_b32 v{vC}, 4, v{vC}")
    a(f"v_lshlrev_b32 v{vA}, 7, v{vA}"); a(f"v_add_u32 v{vA}, v{vA}, v{vC}"); a(f"s_lshl_b32 s{t2}, s{sTH}, 13"); a(f"v_add_u32 v{vXr[0]}, s{t2}, v{vA}")
    a(f"v_add_u32 v{vXr[1]}, 65536, v{vXr[0]}")
    a(f"v_lshrrev_b32 v{vA}, 5, v{vLane}"); a(f"v_lshlrev_b32 v{vA}, 9, v{vA}")
    a(f"v_and_b32 v{vB_}, 3, v{vLane}"); a(f"v_lshlrev_b32 v{vB_}, 6, v{vB_}"); a(f"v_add_u32 v{vA}, v{vA}, v{vB_}")
    a(f"v_bfe_u32 v{vB_}, v{vLane}, 2, 2"); a(f"v_lshlrev_b32 v{vB_}, 4, v{vB_}"); a(f"v_add_u32 v{vA}, v{vA}, v{vB_}")
    a(f"v_bfe_u32 v{vB_}, v{vLane}, 4, 1"); a(f"v_lshlrev_b32 v{vB_}, 3, v{vB_}"); a(f"v_add_u32 v{vA}, v{vA}, v{vB_}")
    a(f"s_lshl_b32 s{t2}, s{sKH}, 13"); a(f"s_lshl_b32 s{t3}, s{sFH}, 12"); a(f"s_add_u32 s{t2}, s{t2}, s{t3}"); a(f"s_add_u32 s{t2}, s{t2}, 16384")
    a(f"v_add_u32 v{vZr[0]}, s{t2}, v{vA}"); a(f"v_add_u32 v{vZr[1]}, 65536, v{vZr[0]}")
    for i in range(64): a(f"v_mov_b32 v{ACC+i}, 0")
    def reads(step):
        slot = step % R; hi = slot >> 1; off = (slot & 1)*SLOT
        xb = XF + (step % 2)*16; zb = ZF + (step % 2)*16
        out = [f"ds_read_b128 v[{xb+4*i}:{xb+4*i+3}], v{vXr[hi]} offset:{off + i*2048}" for i in range(4)]
        for i2 in range(4):
            for sec in range(2):
                r = zb + 4*i2 + 2*sec
                out.append(f"ds_read_b64_tr_b16 v[{r}:{r+1}], v{vZr[hi]} offset:{off + i2*1024 + sec*256}")
        return out
    def mfmas(step):
        xb = XF + (step % 2)*16; zb = ZF + (step % 2)*16; out = []
        for i2 in range(4):
            for i in (range(4) if i2 % 2 == 0 else range(3, -1, -1)):
                c = ACC + (i2*4+i)*4
                out.append(f"v_mfma_f32_16x16x32_bf16 v[{c}:{c+3}], v[{zb+4*i2}:{zb+4*i2+3}], v[{xb+4*i}:{xb+4*i+3}], v[{c}:{c+3}]")
        return out
    for g_ in dma(1):
        for l in g_: a(l)
    a(f"s_waitcnt vmcnt({vm.need([('T', 0, e) for e in range(4)])})")
    a("s_barrier")
    for l in reads(0): a(l)
    a(f"s_waitcnt vmcnt({vm.need([('T', 1, e) for e in range(4)])}) lgkmcnt(0)")
    a("s_barrier")
    P.stamp(1)
    steps = []; nxt = 2; EL = NS - R
    for s in range(NS):
        m = mfmas(s); nm = len(m)
        rd = reads(s+1) if s + 1 < NS else []
        dm = []
        cnt = 0
        while nxt < NS and nxt <= s + R and cnt < 2:
            dm += dma(nxt); nxt += 1; cnt += 1
        slots = [[] for _ in range(nm)]
        for k, x in enumerate(rd): slots[min(nm-1, (k*(nm-3))//len(rd))].append(x)
        sp = 3 if len(dm) <= 5 else 2
        if place == "end" and len(dm) <= 5:
            for k, g_ in enumerate(dm): slots[nm-1] += [g_[0], "s_nop 0"] + g_[1:]
        else:
            p0 = 1 if (place == "early" or len(dm) > 5) else 8
            if p0 == 8: sp = 2
            for k, g_ in enumerate(dm):
                pos = p0 + sp*k
                slots[pos-1].append(g_[0]); slots[pos] = g_[1:] + slots[pos]
        if s == EL:
            for k, g_ in enumerate(epi_loads()): slots[1 + 3*k] += g_
        if rl_tail and s == EL + 1:
            for k, g_ in enumerate(rl_loads()): slots[1 + 4*k] += g_
        seq = []
        for k in range(nm): seq.append(m[k]); seq += slots[k]
        if s + 1 < NS:
            need = [("T", s+2, e) for e in range(4)] if s + 2 < NS else []
            seq.append(f"s_waitcnt vmcnt({vm.need(need)}) lgkmcnt(0)" if need else "s_waitcnt lgkmcnt(0)")
            seq.append("s_barrier")
        steps.append(seq)
    L0 = 2
    n_iter = (NS - R - L0)//R
    for s in range(L0):
        for l in steps[s]: a(l)
    fold_loop(a, steps, L0, n_iter, R, f"L_{name}_loop", sIT)
    for s in range(L0 + n_iter*R, NS):
        for l in steps[s]: a(l)
    P.stamp(2)
    acc = lambda i2, i: ACC + (i2*4+i)*4
    a(f"s_lshl_b32 s{t2}, s{sW}, 13"); a(f"v_add_u32 v{vA}, s{t2}, v{vL16}")
    a(f"s_xor_b32 s{t2}, s{sW}, 4"); a(f"s_lshl_b32 s{t2}, s{t2}, 13"); a(f"v_add_u32 v{vB_}, s{t2}, v{vL16}")
    KEEP = 32
    a(f"s_cmp_eq_u32 s{sKH}, 0")
    a(f"s_cbranch_scc0 L_{name}_k1")
    for kh in range(2):
        if kh == 1: a.label(f"L_{name}_k1")
        for i2 in range(4):
            for ii in range(2):
                r = acc(i2, 2*(1-kh)+ii)
                a(f"ds_write_b128 v{vA}, v[{r}:{r+3}] offset:{(i2*2+ii)*1024}")
        for i2 in range(4):
            for ii in range(2):
                r = acc(i2, 2*kh+ii); d = KEEP + (i2*2+ii)*4
                for q in range(4): a(f"v_mov_b32 v{d+q}, v{r+q}")
        if kh == 0: a(f"s_branch L_{name}_kj")
    a.label(f"L_{name}_kj")
    a("s_waitcnt lgkmcnt(0)")
    a("s_barrier")
    RX = 64
    for b in range(8): a(f"ds_read_b128 v[{RX+4*b}:{RX+4*b+3}], v{vB_} offset:{b*1024}")
    a(f"s_waitcnt vmcnt({vm.need([('z1', 3), ('g', 1), ('b', 1)])})")
    SS, SB2 = 20, 24
    for ii in range(2):
        a(f"v_sub_f32 v{SS+2*ii}, 1.0, v{vG[ii]}"); a(f"v_lshlrev_b32 v{vBs[ii]}, 16, v{vBs[ii]}"); a(f"v_mov_b32 v{SS+2*ii+1}, v{SS+2*ii}")
        a(f"v_mul_f32 v{SB2+2*ii}, v{vBs[ii]}, v{SS+2*ii}"); a(f"v_mov_b32 v{SB2+2*ii+1}, v{SB2+2*ii}")
    a("s_waitcnt lgkmcnt(0)")
    for b in range(8):
        for q in (0, 2):
            a(f"v_pk_add_f32 v[{KEEP+4*b+q}:{KEEP+4*b+q+1}], v[{KEEP+4*b+q}:{KEEP+4*b+q+1}], v[{RX+4*b+q}:{RX+4*b+q+1}]")
    TZ = 28
    for i2 in range(4):
        for ii in range(2):
            k = KEEP + (i2*2+ii)*4
            for q in range(2):
                z = Z1R + 4*i2 + 2*ii + q
                a(f"v_pk_fma_f32 v[{k+2*q}:{k+2*q+1}], v[{k+2*q}:{k+2*q+1}], v[{SS+2*ii}:{SS+2*ii+1}], v[{SB2+2*ii}:{SB2+2*ii+1}]")
                a(f"v_lshlrev_b32 v{TZ+2*q}, 16, v{z}"); a(f"v_and_b32 v{TZ+2*q+1}, 0xffff0000, v{z}")
                a(f"v_pk_mul_f32 v[{k+2*q}:{k+2*q+1}], v[{k+2*q}:{k+2*q+1}], v[{TZ+2*q}:{TZ+2*q+1}]")
    a(f"s_lshl_b32 s{t2}, s{sTB}, 3"); a(f"s_lshl_b32 s{t3}, s{sTH}, 2"); a(f"s_add_u32 s{t2}, s{t2}, s{t3}"); a(f"s_lshl_b32 s{t3}, s{sKH}, 1"); a(f"s_add_u32 s{t2}, s{t2}, s{t3}")
    a(f"s_mul_i32 s{t2}, s{t2}, {NKB}"); a(f"s_lshl_b32 s{t3}, s{sFB}, 2"); a(f"s_add_u32 s{t2}, s{t2}, s{t3}"); a(f"s_lshl_b32 s{t3}, s{sFH}, 1"); a(f"s_add_u32 s{t2}, s{t2}, s{t3}")
    a(f"s_add_u32 s{t2}, s{t2}, 32"); a(f"s_lshl_b32 s{t2}, s{t2}, 10"); a(f"s_add_u32 s{t2}, s{t2}, {ACAT_OFF}")
    O = 64
    for ii in range(2):
        for pr in range(2):
            r = O + (ii*2+pr)*4
            pack8(a, r, KEEP + ((2*pr)*2+ii)*4, KEEP + ((2*pr+1)*2+ii)*4)
            a(f"buffer_store_dwordx4 v[{r}:{r+3}], v{vL16}, s[{SWS}:{SWS+3}], s{t2} offen offset:{pr*1024} {st}")
        if ii == 0: a(f"s_add_u32 s{t2}, s{t2}, {NKB*1024}")
    if rl_tail:
        a("s_waitcnt vmcnt(4)")
        for i in range(4):
            a(f"buffer_store_dwordx4 v[{RLT+4*i}:{RLT+4*i+3}], v{vL16}, s[{SWS}:{SWS+3}], s{sRd} offen {st}")
            a(f"s_add_u32 s{sRd}, s{sRd}, {44*8192}")
    a(f"s_branch L_{name}_fin")

    a.label(f"L_{name}_att")
    sH = sTB
    a(f"s_lshl_b32 s{t0}, s{t0}, 2"); a(f"s_sub_u32 s{t1}, s{t1}, 28"); a(f"s_add_u32 s{sH}, s{t0}, s{t1}")
    srd(a, SB, pPHI, 0, 65536)
    WPHI, KVS = 0, 2048
    a(f"s_and_b32 s{t0}, s{sW}, 1"); a(f"s_lshl_b32 s{t0}, s{t0}, 10"); a(f"s_lshl_b32 s{t1}, s{sH}, 11"); a(f"s_add_u32 s{t1}, s{t1}, s{t0}")
    a(f"s_add_u32 m0, s{t0}, {WPHI}")
    a(f"buffer_load_dwordx4 v{vL16}, s[{SB}:{SB+3}], s{t1} offen lds")
    QN = 2 if qall else 4
    QR = 112
    GR = 128
    QL, GL_ = 8192, 8192 + 131072
    vQa, vGa = 23, 29
    sQ, sGo, sO = sKX, sKZ, sMx
    a(f"s_lshl_b32 s{sQ}, s{sH}, 7"); a(f"s_lshl_b32 s{t0}, s{sW}, 4"); a(f"s_add_u32 s{sQ}, s{sQ}, s{t0}"); a(f"s_lshl_b32 s{sQ}, s{sQ}, 10"); a(f"s_add_u32 s{sQ}, s{sQ}, {QBUF_OFF}")
    a(f"s_lshl_b32 s{sGo}, s{sW}, 10"); a(f"s_add_u32 s{sGo}, s{sGo}, {GATE_OFF}")
    a(f"v_and_b32 v{vD}, 15, v{vLane}"); a(f"v_lshlrev_b32 v{vD}, 2, v{vD}")
    a(f"s_lshl_b32 s{sO}, s{sW}, 4"); a(f"s_mul_i32 s{sO}, s{sO}, {NKB}"); a(f"s_add_u32 s{sO}, s{sO}, s{sH}"); a(f"s_lshl_b32 s{sO}, s{sO}, 10"); a(f"s_add_u32 s{sO}, s{sO}, {ACAT_OFF}")
    a(f"s_cmp_ge_u32 s{sW}, 6")
    a(f"s_cbranch_scc1 L_{name}_nokv")
    a(f"s_cmp_ge_u32 s{sW}, 3"); a(f"s_cselect_b32 s{t0}, 1, 0"); a(f"s_mul_i32 s{t1}, s{t0}, 3"); a(f"s_sub_u32 s{t1}, s{sW}, s{t1}")
    a(f"s_mul_i32 s{t0}, s{t0}, 6"); a(f"s_add_u32 s{t0}, s{t0}, s{t1}")
    a(f"s_mul_i32 s{t1}, s{sH}, 12"); a(f"s_add_u32 s{t0}, s{t0}, s{t1}"); a(f"s_lshl_b32 s{t0}, s{t0}, 10"); a(f"s_add_u32 s{t0}, s{t0}, {KVP_OFF}")
    KR = 32
    for mi in range(8):
        for fb in range(2):
            r = KR + (mi*2+fb)*4
            a(f"buffer_load_dwordx4 v[{r}:{r+3}], v{vL16}, s[{SWS}:{SWS+3}], s{t0} offen offset:{fb*3072}")
        a(f"s_add_u32 s{t0}, s{t0}, {32*12*1024}")
    a("s_waitcnt vmcnt(0)")
    for hlf in (4, 2, 1):
        for mi in range(hlf):
            for q in range(0, 8, 2):
                r = KR + mi*8 + q
                a(f"v_pk_add_f32 v[{r}:{r+1}], v[{r}:{r+1}], v[{r+8*hlf}:{r+8*hlf+1}]")
    pack8(a, KR+8, KR, KR+4)
    a(f"s_lshl_b32 s{t0}, s{sW}, 10"); a(f"s_add_u32 s{t0}, s{t0}, {KVS}"); a(f"v_add_u32 v{vA}, s{t0}, v{vL16}")
    a(f"ds_write_b128 v{vA}, v[{KR+8}:{KR+11}]")
    a.label(f"L_{name}_nokv")
    vq = VmTracker()
    RLB, vRL = 152, 20
    if relayout:
        a(f"s_lshl_b32 s{t0}, s{sH}, 3"); a(f"s_add_u32 s{t0}, s{t0}, s{sW}")
        a(f"s_and_b32 s{sRn}, s{t0}, 15"); a(f"s_lshr_b32 s{t0}, s{t0}, 4"); a(f"s_mul_i32 s{sRg}, s{t0}, 22")
        a(f"s_mul_i32 s{sRd}, s{sRn}, {44*8192}"); a(f"s_lshl_b32 s{t0}, s{sRg}, 10"); a(f"s_add_u32 s{sRd}, s{sRd}, s{t0}"); a(f"s_add_u32 s{sRd}, s{sRd}, {WT_OFF}")
        a(f"s_lshl_b32 s{sRn}, s{sRn}, 7"); a(f"s_mov_b32 s{sRi}, 0"); a(f"s_mov_b32 s{SRL+3}, {hex(SRD3)}")
        a(f"v_lshrrev_b32 v{vA}, 3, v{vLane}"); a(f"v_lshrrev_b32 v{vB_}, 1, v{vA}")
        a(f"v_bfe_u32 v{vC}, v{vLane}, 1, 2"); a(f"v_xor_b32 v{vC}, v{vC}, v{vB_}"); a(f"v_lshlrev_b32 v{vC}, 5, v{vC}")
        a(f"v_and_b32 v{vB_}, 1, v{vLane}"); a(f"v_lshlrev_b32 v{vB_}, 4, v{vB_}"); a(f"v_add_u32 v{vC}, v{vC}, v{vB_}")
        a(f"v_lshlrev_b32 v{vA}, 11, v{vA}"); a(f"v_add_u32 v{vRL}, v{vA}, v{vC}")
    def rl_load(n):
        o = []
        for bi in range(2):
            b = RLB + 8*(n % 2) + 4*bi
            vq.issue(("RL", n, bi))
            o += [f"s_cmp_lt_u32 s{sRg}, 128",
                  f"s_cselect_b32 s{SRL}, s{pWO}, s{pWOUT}", f"s_cselect_b32 s{SRL+1}, s{pWO+1}, s{pWOUT+1}",
                  f"s_cselect_b32 s{t0}, 0, 128", f"s_mov_b32 s{t1}, {1792*2048}", f"s_cselect_b32 s{SRL+2}, {1024*2048}, s{t1}",
                  f"s_sub_u32 s{t0}, s{sRg}, s{t0}", f"s_lshl_b32 s{t0}, s{t0}, 14", f"s_add_u32 s{t0}, s{t0}, s{sRn}",
                  f"s_cmp_lt_u32 s{sRi}, 22", f"s_cselect_b32 s{t0}, s{t0}, 0x40000000",
                  f"buffer_load_dwordx4 v[{b}:{b+3}], v{vRL}, s[{SRL}:{SRL+3}], s{t0} offen",
                  f"s_add_u32 s{sRg}, s{sRg}, 1", f"s_add_u32 s{sRi}, s{sRi}, 1"]
        return o
    def rl_store(n):
        o = [f"s_waitcnt vmcnt({vq.need([('RL', n, 1)])})"]
        for bi in range(2):
            b = RLB + 8*(n % 2) + 4*bi
            vq.issue(("RS", n, bi))
            if 2*n + bi < 22 or True:
                o += [f"s_cmp_lt_u32 s{sRs}, 22", f"s_cselect_b32 s{t0}, s{sRd}, 0x40000000",
                      f"buffer_store_dwordx4 v[{b}:{b+3}], v{vL16}, s[{SWS}:{SWS+3}], s{t0} offen {st}",
                      f"s_add_u32 s{sRd}, s{sRd}, 1024", f"s_add_u32 s{sRs}, s{sRs}, 1"]
        return o
    def qstage():
        o = [f"s_lshl_b32 s{t2}, s{sW}, 14", f"s_add_u32 s{t2}, s{t2}, {QL}"]
        for n in range(16):
            vq.issue(("q", n))
            o += [f"s_add_u32 m0, s{t2}, {n*1024}", "s_nop 0", f"buffer_load_dwordx4 v{vL16}, s[{SWS}:{SWS+3}], s{sQ} offen lds", f"s_add_u32 s{sQ}, s{sQ}, 1024"]
            if n == 0:
                vq.issue("gall")
                o += [f"s_lshl_b32 s{t3}, s{sW}, 10", f"s_add_u32 m0, s{t3}, {GL_}", "s_nop 0", f"buffer_load_dwordx4 v{vL16}, s[{SWS}:{SWS+3}], s{sGo} offen lds"]
        o += [f"v_add_u32 v{vQa}, s{t2}, v{vL16}", f"s_lshl_b32 s{t3}, s{sW}, 10", f"s_add_u32 s{t3}, s{t3}, {GL_}", f"v_add_u32 v{vGa}, s{t3}, v{vD}"]
        return o
    def qread(n):
        return [f"ds_read_b128 v[{QR+4*(n%QN)}:{QR+4*(n%QN)+3}], v{vQa}", f"ds_read_b32 v{GR+(n%QN)}, v{vGa}",
                f"v_add_u32 v{vQa}, 1024, v{vQa}", f"v_add_u32 v{vGa}, 64, v{vGa}"]
    def qload(n):
        vq.issue(("q", n)); vq.issue(("g", n))
        return [f"buffer_load_dwordx4 v[{QR+4*(n%QN)}:{QR+4*(n%QN)+3}], v{vL16}, s[{SWS}:{SWS+3}], s{sQ} offen",
                f"buffer_load_dword v{GR+(n%QN)}, v{vD}, s[{SWS}:{SWS+3}], s{sGo} offen",
                f"s_add_u32 s{sQ}, s{sQ}, 1024", f"s_add_u32 s{sGo}, s{sGo}, 64"]
    a("s_waitcnt vmcnt(0) lgkmcnt(0)")
    if relayout: a(f"s_mov_b32 s{sRs}, 0")
    if qall:
        for l in qstage(): a(l)
    else:
        for n in range(3):
            for l in qload(n): a(l)
    if w_touch:
        a(f"s_lshl_b32 s{t0}, s{sH}, 3"); a(f"s_add_u32 s{t0}, s{t0}, s{sW}"); a(f"s_lshl_b32 s{t0}, s{t0}, 13")
        a(f"v_lshlrev_b32 v22, 7, v{vLane}")
        srd(a, SRL, pWO, 0, 1024*2048)
        a(f"buffer_load_dword v21, v22, s[{SRL}:{SRL+3}], s{t0} offen")
        vq.issue("wt0")
        srd(a, SRL, pWOUT, 0, 1792*2048)
        a(f"buffer_load_dword v21, v22, s[{SRL}:{SRL+3}], s{t0} offen"); vq.issue("wt1")
        a(f"s_add_u32 s{t0}, s{t0}, {256*8192}")
        a(f"buffer_load_dword v21, v22, s[{SRL}:{SRL+3}], s{t0} offen"); vq.issue("wt2")
    a("s_barrier")
    P.stamp(1)
    WP = 32; KV = 40
    a(f"v_lshrrev_b32 v{vA}, 2, v{vLane}"); a(f"v_lshlrev_b32 v{vA}, 6, v{vA}"); a(f"v_and_b32 v{vB_}, 3, v{vLane}"); a(f"v_lshlrev_b32 v{vB_}, 3, v{vB_}"); a(f"v_add_u32 v{vA}, v{vA}, v{vB_}")
    for fb in range(2):
        for sec in range(2):
            r = WP + 4*fb + 2*sec
            a(f"ds_read_b64_tr_b16 v[{r}:{r+1}], v{vA} offset:{WPHI + sec*1024 + fb*32}")
    for b in range(6): a(f"ds_read_b128 v[{KV+4*b}:{KV+4*b+3}], v{vL16} offset:{KVS + b*1024}")
    a("s_waitcnt lgkmcnt(0)")
    if qall:
        a(f"s_waitcnt vmcnt({vq.need([('q', 0), 'gall'])})")
        for l in qread(0): a(l)
    LG, PH, TMP, NUM, OUT = 64, 72, 80, 132, 144
    ONES, EPS, CPM = 24, 28, 16
    if mfsum:
        for i in range(4): a(f"v_mov_b32 v{ONES+i}, 0x3f803f80")
        a(f"v_mov_b32 v{EPS}, {f2h(1e-6)}")
    blocks = []
    for n in range(16):
        seq = Asm()
        if relayout and 2 <= n < 14:
            for l in rl_store(n - 2): seq(l)
        if n + 3 < 16 and not qall:
            for l in qload(n + 3): seq(l)
        if relayout and n < 12:
            for l in rl_load(n): seq(l)
        if qall:
            if n + 1 < 16:
                seq(f"s_waitcnt vmcnt({vq.need([('q', n+1), 'gall'])})")
                for l in qread(n + 1)[:2]: seq(l)
                for l in qread(n + 1)[2:]: seq(l)
                seq("s_waitcnt lgkmcnt(2)")
            else: seq("s_waitcnt lgkmcnt(0)")
        else:
            seq(f"s_waitcnt vmcnt({vq.need([('q', n), ('g', n)])})")
        q = QR + 4*(n % QN)
        for fb in range(2):
            seq(f"v_mfma_f32_16x16x32_bf16 v[{LG+4*fb}:{LG+4*fb+3}], v[{WP+4*fb}:{WP+4*fb+3}], v[{q}:{q+3}], 0")
        if not mfsum:
            softmax_pm(seq, LG, PH, TMP, sC)
            for db in range(3):
                d = NUM + 4*db
                seq(f"v_mfma_f32_16x16x32_bf16 v[{d}:{d+3}], v[{KV+4*db}:{KV+4*db+3}], v[{PH}:{PH+3}], 0")
            for db in range(3):
                d = NUM + 4*db
                seq(f"v_mfma_f32_16x16x32_bf16 v[{d}:{d+3}], v[{KV+12+4*db}:{KV+12+4*db+3}], v[{PH+4}:{PH+7}], v[{d}:{d+3}]")
            seq(f"v_add_f32 v{NUM+8}, {f2h(1e-6)}, v{NUM+8}")
            seq(f"v_rcp_f32 v{NUM+8}, v{NUM+8}")
            seq(f"v_mul_f32 v{NUM+8}, v{NUM+8}, v{GR+(n%QN)}")
            seq(f"v_mov_b32 v{NUM+9}, v{NUM+8}")
            for qq in range(0, 8, 2):
                seq(f"v_pk_mul_f32 v[{NUM+qq}:{NUM+qq+1}], v[{NUM+qq}:{NUM+qq+1}], v[{NUM+8}:{NUM+9}]")
        else:
            softmax_exp(seq, LG, PH, TMP)
            NP, NM = TMP, TMP + 16
            for db in range(4):
                av = (KV + 4*db) if db < 3 else ONES
                seq(f"v_mfma_f32_16x16x32_bf16 v[{NP+4*db}:{NP+4*db+3}], v[{av}:{av+3}], v[{PH}:{PH+3}], 0")
            for db in range(4):
                av = (KV + 12 + 4*db) if db < 3 else ONES
                seq(f"v_mfma_f32_16x16x32_bf16 v[{NM+4*db}:{NM+4*db+3}], v[{av}:{av+3}], v[{PH+4}:{PH+7}], 0")
            rp, rm, dn = NP+12, NM+12, NP+8
            seq(f"v_rcp_f32 v{rp}, v{rp}"); seq(f"v_rcp_f32 v{rm}, v{rm}")
            seq(f"v_fma_f32 v{dn}, v{dn}, v{rp}, v{EPS}")
            seq(f"v_fma_f32 v{dn}, v{NM+8}, v{rm}, v{dn}")
            seq(f"v_rcp_f32 v{dn}, v{dn}")
            seq(f"v_mul_f32 v{dn}, v{dn}, v{GR+(n%QN)}")
            seq(f"v_mul_f32 v{rp}, v{rp}, v{dn}"); seq(f"v_mul_f32 v{rp+1}, v{rp}, 1.0"); seq(f"v_mul_f32 v{rm}, v{rm}, v{dn}"); seq(f"v_mul_f32 v{rm+1}, v{rm}, 1.0")
            for qq in range(0, 8, 2):
                seq(f"v_pk_mul_f32 v[{NUM+qq}:{NUM+qq+1}], v[{NP+qq}:{NP+qq+1}], v[{rp}:{rp+1}]")
            for qq in range(0, 8, 2):
                seq(f"v_pk_fma_f32 v[{NUM+qq}:{NUM+qq+1}], v[{NM+qq}:{NM+qq+1}], v[{rm}:{rm+1}], v[{NUM+qq}:{NUM+qq+1}]")
        o = OUT + 4*(n % 2)
        pack8(seq, o, NUM, NUM+4)
        vq.issue(("o", n))
        seq(f"buffer_store_dwordx4 v[{o}:{o+3}], v{vL16}, s[{SWS}:{SWS+3}], s{sO} offen {st}")
        seq(f"s_add_u32 s{sO}, s{sO}, {NKB*1024}")
        blocks.append([l.strip() for l in seq.lines])
    if qall:
        for n in range(2):
            for l in blocks[n]: a(l)
        lo = 2; hi = 12 if relayout else 14
        fold_loop(a, blocks, lo, (hi - lo)//2, 2, f"L_{name}_aloop", sIT)
        for n in range(lo + (hi - lo)//2*2, 16):
            for l in blocks[n]: a(l)
    else:
        if relayout:
            for n in range(4):
                for l in blocks[n]: a(l)
            fold_loop(a, blocks, 4, 2, 4, f"L_{name}_aloop", sIT)
        else:
            fold_loop(a, blocks, 0, 3, 4, f"L_{name}_aloop", sIT)
        for n in range(12, 16):
            for l in blocks[n]: a(l)
    P.stamp(2)
    a.label(f"L_{name}_fin")
    if prof: a("s_waitcnt vmcnt(0)")
    P.stamp(5)
    P.dump(vLane, sW)
    a.label(f"L_{name}_end")
    a("s_endpgm")
    return kernel_text(name, a, nv=192, ns=(102 if prof else 64), ao=192), (max(R*SLOT, 8192 + 131072 + 8192) if qall else R*SLOT)
```

```python
from asmlib import *
from common import *
OOB = 0x40000000

def gen_s3(name="s3_kernel", R=4, dist=4, PF=6, prof=False, pmode="epi", pf=False, n0=2, catch=3, ost="sc1"):
    a = Asm()
    P = Prof(a, prof); P.mode = pmode
    NS = NKB // 2
    D = R; U = R
    sOUT, pWS = 28, 34
    SA, SW, SO = 8, 12, 16
    sW, sTQ, sKH, sIT, sAoff, sWoff, sM0, sTB, sNB = 20, 21, 22, 23, 24, 25, 27, 32, 33
    t0, t1, t2 = 36, 37, 38
    vLane, vT0, vT1, vT2 = 1, 2, 3, 4
    vA0, vA1, vWs = 5, 6, 7
    vB = [8, 9, 10, 11]
    ACC = 16
    WF = 48
    AR = 80
    NV = AR + 8*D
    a(f"s_cmp_ge_u32 s2, 256")
    a(f"s_cbranch_scc1 L_{name}_end")
    P.stamp(0)
    a(f"s_load_dwordx2 s[{sOUT}:{sOUT+1}], s[0:1], {KA_OUT}")
    a(f"s_load_dwordx2 s[{pWS}:{pWS+1}], s[0:1], {KA_WS}")
    a(f"v_lshrrev_b32 v{vT0}, 6, v0")
    a(f"v_and_b32 v{vLane}, 63, v0")
    a(f"v_readfirstlane_b32 s{sW}, v{vT0}")
    a(f"s_and_b32 s3, s2, 7"); a(f"s_lshr_b32 s{t0}, s2, 3")
    a(f"s_lshr_b32 s{t1}, s3, 1"); a(f"s_lshl_b32 s{t1}, s{t1}, 2"); a(f"s_and_b32 s{t2}, s{t0}, 3"); a(f"s_add_u32 s{sTB}, s{t1}, s{t2}")
    a(f"s_and_b32 s{t1}, s3, 1"); a(f"s_lshl_b32 s{t1}, s{t1}, 3"); a(f"s_lshr_b32 s{t2}, s{t0}, 2"); a(f"s_add_u32 s{sNB}, s{t1}, s{t2}")
    if pf:
        a(f"s_cmp_eq_u32 s{sW}, 8")
        a(f"s_cbranch_scc1 L_{name}_pf")
    a(f"s_and_b32 s{sTQ}, s{sW}, 3"); a(f"s_lshr_b32 s{sKH}, s{sW}, 2")
    a(f"s_lshl_b32 s{t0}, s{sTB}, 3"); a(f"s_lshl_b32 s{t1}, s{sTQ}, 1"); a(f"s_add_u32 s{t0}, s{t0}, s{t1}")
    a(f"s_mul_i32 s{t0}, s{t0}, {NKB}"); a(f"s_add_u32 s{t0}, s{t0}, s{sKH}"); a(f"s_lshl_b32 s{t0}, s{t0}, 10")
    a(f"v_lshlrev_b32 v{vT0}, 4, v{vLane}")
    a(f"v_add_u32 v{vA0}, s{t0}, v{vT0}")
    a(f"v_add_u32 v{vA1}, {NKB*1024}, v{vA0}")
    a(f"s_mul_i32 s{t0}, s{sNB}, {44*8192}"); a(f"s_lshl_b32 s{sM0}, s{sW}, 10"); a(f"s_add_u32 s{t0}, s{t0}, s{sM0}")
    a(f"v_add_u32 v{vWs}, s{t0}, v{vT0}")
    a(f"s_mov_b32 s{sAoff}, 0"); a(f"s_mov_b32 s{sWoff}, 0")
    a("s_waitcnt lgkmcnt(0)")
    P.stamp(3, "pro")
    srd(a, SA, pWS, ACAT_OFF, ACAT_SZ)
    srd(a, SW, pWS, WT_OFF, WT_SZ)
    vm = VmTracker()
    def dma(tile):
        vm.issue(("W", tile))
        return [f"s_add_u32 m0, s{sM0}, {(tile % R)*8192}",
                f"buffer_load_dwordx4 v{vWs}, s[{SW}:{SW+3}], s{sWoff} offen lds",
                f"s_add_u32 s{sWoff}, s{sWoff}, 8192"]
    def aload(step):
        r = AR + (step % D)*8
        vm.issue(("A", step, 0)); vm.issue(("A", step, 1))
        return [f"buffer_load_dwordx4 v[{r}:{r+3}], v{vA0}, s[{SA}:{SA+3}], s{sAoff} offen",
                f"buffer_load_dwordx4 v[{r+4}:{r+7}], v{vA1}, s[{SA}:{SA+3}], s{sAoff} offen",
                f"s_add_u32 s{sAoff}, s{sAoff}, 2048"]
    if pf: a("s_barrier")
    for i in range(n0):
        for l in dma(i): a(l)
        for l in aload(i): a(l)
    P.stamp(4, "pro")
    a(f"v_lshrrev_b32 v{vT0}, 2, v{vLane}"); a(f"v_bfe_u32 v{vT1}, v{vLane}, 3, 2"); a(f"v_lshlrev_b32 v{vT0}, 7, v{vT0}")
    a(f"v_and_b32 v{vT2}, 3, v{vLane}"); a(f"v_lshlrev_b32 v{vT2}, 3, v{vT2}"); a(f"v_add_u32 v{vT0}, v{vT0}, v{vT2}")
    a(f"s_lshl_b32 s{t0}, s{sKH}, 12"); a(f"v_add_u32 v{vT0}, s{t0}, v{vT0}")
    for j in range(4):
        a(f"v_xor_b32 v{vT2}, {j}, v{vT1}"); a(f"v_lshlrev_b32 v{vT2}, 5, v{vT2}"); a(f"v_add_u32 v{vB[j]}, v{vT0}, v{vT2}")
    for i in range(32): a(f"v_mov_b32 v{ACC+i}, 0")
    srd(a, SO, sOUT, 0, 2048*2048)
    def wreads(tile):
        base = WF + (tile % 2)*16
        return [f"ds_read_b64_tr_b16 v[{base+4*j+2*sec}:{base+4*j+2*sec+1}], v{vB[j]} offset:{(tile % R)*8192 + sec*2048}" for j in range(4) for sec in range(2)]
    def mfmas(step):
        wb = WF + (step % 2)*16; ab = AR + (step % D)*8
        return [f"v_mfma_f32_16x16x32_bf16 v[{ACC+(T*4+j)*4}:{ACC+(T*4+j)*4+3}], v[{wb+4*j}:{wb+4*j+3}], v[{ab+4*T}:{ab+4*T+3}], v[{ACC+(T*4+j)*4}:{ACC+(T*4+j)*4+3}]" for T in range(2) for j in (range(4) if T == 0 else range(3, -1, -1))]
    a(f"s_waitcnt vmcnt({vm.need([('W', 0)])})")
    a("s_barrier")
    for l in wreads(0): a(l)
    a(f"s_waitcnt vmcnt({vm.need([('W', 1), ('A', 0, 0), ('A', 0, 1)])}) lgkmcnt(0)")
    a("s_barrier")
    P.stamp(1)
    nxt = n0; steps = []; first_steady = None
    for s in range(NS):
        m = mfmas(s)
        rd = wreads(s + 1) if s + 1 < NS else []
        tiles = []
        while nxt < NS and nxt <= s + dist and len(tiles) < catch:
            tiles.append(nxt); nxt += 1
        early = [t for t in tiles if t - D < s]; late = [t for t in tiles if t - D == s]
        assert all(t - D <= s for t in tiles)
        seq = [m[0]]
        groups = []
        for t in tiles: groups.append(dma(t))
        k = 0
        seq += rd[0:2]
        for g_ in groups[:1]: seq += [g_[0], m[1]] + g_[1:]
        if not groups: seq.append(m[1])
        seq += rd[2:4]
        seq.append(m[2]); seq += rd[4:6]
        if len(groups) > 1: seq += [groups[1][0], m[3]] + groups[1][1:]
        else: seq.append(m[3])
        seq += rd[6:8]
        if len(groups) > 2: seq += [groups[2][0], m[4]] + groups[2][1:] + m[5:8]
        else: seq += m[4:8]
        assert len(groups) <= 3
        for t in tiles: seq += aload(t)
        need = []
        if s + 2 < NS: need.append(("W", s + 2))
        if s + 1 < NS: need += [("A", s + 1, 0), ("A", s + 1, 1)]
        if need:
            seq.append(f"s_waitcnt vmcnt({min(63, vm.need(need))}) lgkmcnt(0)")
            seq.append("s_barrier")
        steps.append(seq)
        if first_steady is None and len(tiles) == 1 and tiles[0] == s + dist: first_steady = s
    L0 = first_steady
    last_issue = NS - 1 - dist
    n_iter = (last_issue + 1 - L0) // R
    for s in range(L0):
        for l in steps[s]: a(l)
    fold_loop(a, steps, L0, n_iter, R, f"L_{name}_loop", sIT)
    for s in range(L0 + n_iter*R, NS):
        for l in steps[s]: a(l)
    P.stamp(2)
    RS = 272
    a(f"v_and_b32 v{vT0}, 15, v{vLane}")
    a(f"s_lshl_b32 s{t0}, s{sTQ}, 5"); a(f"s_lshl_b32 s{t1}, s{sKH}, 7"); a(f"s_add_u32 s{t0}, s{t0}, s{t1}")
    a(f"v_add_u32 v{vT0}, s{t0}, v{vT0}"); a(f"v_mul_u32_u24 v{vT0}, {RS}, v{vT0}")
    a(f"v_lshrrev_b32 v{vT1}, 4, v{vLane}"); a(f"v_lshlrev_b32 v{vT1}, 4, v{vT1}"); a(f"v_add_u32 v{vT0}, v{vT0}, v{vT1}")
    for T in range(2):
        for j in range(4):
            c = ACC + (T*4+j)*4
            a(f"ds_write_b128 v{vT0}, v[{c}:{c+3}] offset:{T*16*RS + 64*j}")
    a(f"v_lshrrev_b32 v{vT1}, 3, v{vLane}"); a(f"s_lshl_b32 s{t0}, s{sW}, 4"); a(f"v_add_u32 v{vT1}, s{t0}, v{vT1}")
    a(f"v_mul_u32_u24 v{vT2}, {RS}, v{vT1}"); a(f"v_and_b32 v{vT0}, 7, v{vLane}"); a(f"v_lshlrev_b32 v{vA0}, 5, v{vT0}"); a(f"v_add_u32 v{vT2}, v{vT2}, v{vA0}")
    a(f"s_lshl_b32 s{t0}, s{sTB}, 7"); a(f"v_add_u32 v{vT1}, s{t0}, v{vT1}"); a(f"v_lshlrev_b32 v{vT1}, 11, v{vT1}")
    a(f"v_lshlrev_b32 v{vT0}, 4, v{vT0}"); a(f"v_add_u32 v{vT1}, v{vT1}, v{vT0}"); a(f"s_lshl_b32 s{t0}, s{sNB}, 7"); a(f"v_add_u32 v{vT1}, s{t0}, v{vT1}")
    a("s_waitcnt lgkmcnt(0)")
    a("s_barrier")
    X = 48
    for p in range(2):
        for h in range(2):
            for q in range(2):
                r = X + p*16 + h*8 + q*4
                a(f"ds_read_b128 v[{r}:{r+3}], v{vT2} offset:{p*8*RS + h*128*RS + q*16}")
    for p in range(2):
        a(f"s_waitcnt lgkmcnt({4 if p == 0 else 0})")
        b = X + p*16
        for i in range(0, 8, 2):
            a(f"v_pk_add_f32 v[{b+i}:{b+i+1}], v[{b+i}:{b+i+1}], v[{b+8+i}:{b+9+i}]")
        for i in range(4):
            a(f"v_cvt_pk_bf16_f32 v{b+8+i}, v{b+2*i}, v{b+2*i+1}")
        a(f"buffer_store_dwordx4 v[{b+8}:{b+11}], v{vT1}, s[{SO}:{SO+3}], 0 offen {ost}")
        if p == 0: a(f"v_add_u32 v{vT1}, {8*2048}, v{vT1}")
    if prof: a("s_waitcnt vmcnt(0)")
    P.stamp(5)
    P.dump(vLane, sW)
    a("s_endpgm")
    if pf:
        a.label(f"L_{name}_pf")
        a(f"s_lshr_b32 s{t0}, s2, 3"); a(f"s_and_b32 s{t1}, s{t0}, 3"); a(f"s_lshr_b32 s{t0}, s{t0}, 2")
        a(f"v_bfe_u32 v{vT0}, v{vLane}, 3, 1")
        a(f"s_lshl_b32 s{t2}, s{sTB}, 3"); a(f"s_add_u32 s{t2}, s{t2}, s{t0}"); a(f"s_mul_i32 s{t2}, s{t2}, {NKB}")
        a(f"v_add_u32 v{vT0}, s{t2}, v{vT0}"); a(f"v_lshlrev_b32 v{vT0}, 10, v{vT0}")
        a(f"v_and_b32 v{vT1}, 7, v{vLane}"); a(f"v_lshlrev_b32 v{vT1}, 7, v{vT1}"); a(f"v_add_u32 v{vT0}, v{vT0}, v{vT1}")
        a(f"v_add_u32 v{vT0}, {ACAT_OFF}, v{vT0}")
        a(f"s_mul_i32 s{t2}, s{sNB}, {44*8192}"); a(f"s_lshl_b32 s{t1}, s{t1}, 11"); a(f"s_add_u32 s{t2}, s{t2}, s{t1}"); a(f"s_add_u32 s{t2}, s{t2}, {WT_OFF}")
        a(f"v_and_b32 v{vT1}, 15, v{vLane}"); a(f"v_lshlrev_b32 v{vT1}, 7, v{vT1}"); a(f"v_add_u32 v{vT1}, s{t2}, v{vT1}")
        a(f"v_cmp_gt_u32 vcc, 16, v{vLane}"); a(f"v_cndmask_b32 v{vA0}, v{vT1}, v{vT0}, vcc")
        a(f"v_mov_b32 v{vT0}, 2048"); a(f"v_mov_b32 v{vT1}, 8192"); a(f"v_cndmask_b32 v{vA1}, v{vT1}, v{vT0}, vcc")
        a(f"v_cmp_gt_u32 vcc, 32, v{vLane}"); a(f"v_mov_b32 v{vT0}, {hex(OOB)}"); a(f"v_cndmask_b32 v{vA0}, v{vT0}, v{vA0}, vcc")
        a(f"v_mov_b32 v{vT0}, 0"); a(f"v_cndmask_b32 v{vA1}, v{vT0}, v{vA1}, vcc")
        a("s_waitcnt lgkmcnt(0)")
        srd(a, SA, pWS, 0, WS_USED)
        def touch():
            a(f"buffer_load_dword v{vT2}, v{vA0}, s[{SA}:{SA+3}], 0 offen")
            a(f"v_add_u32 v{vA0}, v{vA0}, v{vA1}")
        n0 = min(4, PF)
        for q in range(n0): touch()
        a("s_barrier")
        a("s_barrier")
        for q in range(n0, PF): touch()
        a("s_barrier")
        a(f"s_mov_b32 s{sIT}, 0")
        a.label(f"L_{name}_pfl")
        touch()
        a("s_barrier")
        a(f"s_add_u32 s{sIT}, s{sIT}, 1"); a(f"s_cmp_lt_u32 s{sIT}, {NS - PF}"); a(f"s_cbranch_scc1 L_{name}_pfl")
    a.label(f"L_{name}_end")
    a("s_endpgm")
    lds = max(R*8192, 2*128*RS)
    return kernel_text(name, a, nv=NV, ns=(102 if prof else 48), ao=NV), lds, (576 if pf else 512)
```

```python
import sys, json, os
sys.path.insert(0, os.path.dirname(__file__))
import build, final
args = sys.argv[1:]
for i in range(0, len(args), 2):
    kw = json.loads(args[i+1])
    path = f"v_{args[i]}.s"
    open(path, "w").write(build.build(final.kernels(**kw)))
    print(path, os.path.getsize(path))
```

```python
from asmlib import *
from common import *
import struct
LOG2E = 1.4426950408889634
def f2h(x): return hex(struct.unpack("<I", struct.pack("<f", x))[0])

A_SLOT = 32768; NA = 3
W_BASE = NA*A_SLOT; W_SLOT = 14336
WPHI   = W_BASE + 4*W_SLOT
DUMMY  = WPHI + 2048
MISC   = DUMMY + 1024
S1_LDS = MISC + 256
PHI_SCR = 0
KV_SCR  = 32768
OOB = 0x40000000

def gen_s1(name="s1_kernel", prof=False, st="sc1", touch=True, relayout=True, wsp=False, wsp_epi=False, wsp_tail=29, PT=4, prio=True, pmode="epi", dedupe=True, burst=False, tfl="", dfl="", rfl="", norm="pair", NW=3, bmode=6, first_gather=True, codewarm=1, wsplit=False, selective=True, early3=False):
    a = Asm()
    P = Prof(a, prof); P.mode = pmode
    NS = 32
    U = 12 if NW == 4 else 6
    pX, pQKV, pPHI, pWO = 4, 6, 8, 10
    pWIN, pWSP = 12, 14
    pWOUT, pGATE = 16, 18
    pDBG, pWS = 20, 22
    SX, SD, SD3, SWS = 24, 28, 32, 36
    ST, SRL = 40, 44
    sW, sWQ, sMI, sNJ, sODD = 48, 49, 50, 51, 52
    sKA, sKD, sKD3, sIncD = 53, 54, 55, 56
    sM0, sM0d = 57, 58
    sMs = [59, 60, 61, 62]
    sTo, sTinc = 63, 64
    sRLs, sRLd = 65, 66
    sIT = 67
    t0, t1, t2, t3 = 68, 69, 70, 71
    sC = 72
    sH, sHq = 74, 75
    sSt = 3
    vLane, vA, vB_, vC, vD = 1, 2, 3, 4, 5
    vX = [[6, 7], [8, 9]]
    vDs = [10, 11, 12, 13, 14, 15, 16, 17]
    vW1 = [18, 19]; vW2 = [18, 19]
    vT, vRL, vRLd, vDum = 20, 21, 22, 23
    vRLb = 24
    XF = 32; WF = 64
    ACC_A = 112; ACC_G = 120
    GV = 232

    a("s_cmp_ge_u32 s2, 256")
    a(f"s_cbranch_scc1 L_{name}_end")
    P.stamp(0)
    a(f"s_load_dwordx8 s[4:11], s[0:1], 0")
    a(f"s_load_dwordx4 s[12:15], s[0:1], {KA_WIN}")
    a(f"s_load_dwordx4 s[16:19], s[0:1], {KA_WOUT}")
    a(f"s_load_dwordx4 s[20:23], s[0:1], {KA_DBG}")
    a(f"v_lshrrev_b32 v{vA}, 6, v0")
    a(f"v_and_b32 v{vLane}, 63, v0")
    a(f"v_readfirstlane_b32 s{sW}, v{vA}")
    a(f"s_and_b32 s{t0}, s2, 7")
    a(f"s_lshr_b32 s{t1}, s2, 3")
    a(f"s_and_b32 s{t2}, s{t0}, 1"); a(f"s_lshl_b32 s{t2}, s{t2}, 2"); a(f"s_and_b32 s{t3}, s{t1}, 3")
    a(f"s_add_u32 s{sMI}, s{t2}, s{t3}")
    a(f"s_lshr_b32 s{t1}, s{t1}, 2")
    a(f"s_lshr_b32 s{t0}, s{t0}, 1"); a(f"s_lshl_b32 s{t0}, s{t0}, 2")
    a(f"s_and_b32 s{t2}, s{t1}, 3"); a(f"s_add_u32 s{t0}, s{t0}, s{t2}")
    a(f"s_lshr_b32 s{t2}, s{t1}, 2"); a(f"s_lshl_b32 s{t2}, s{t2}, 4"); a(f"s_add_u32 s{sNJ}, s{t0}, s{t2}")
    a(f"s_and_b32 s{sODD}, s{sNJ}, 1")
    a(f"s_lshr_b32 s{t2}, s{sNJ}, 2"); a(f"s_xor_b32 s{sH}, s{sNJ}, 24")
    a(f"s_cmp_eq_u32 s{t2}, 3"); a(f"s_cselect_b32 s{t3}, s{sH}, s{sNJ}")
    a(f"s_cmp_eq_u32 s{t2}, 5"); a(f"s_cselect_b32 s{sH}, s{sH}, s{t3}")
    a(f"s_xor_b32 s{sHq}, s{sH}, 2"); a(f"s_cmp_lt_u32 s{sNJ}, 16"); a(f"s_cselect_b32 s{sHq}, s{sHq}, s{sH}")
    a(f"s_and_b32 s{sWQ}, s{sW}, 3")
    a(f"v_lshlrev_b32 v{vRLd}, 4, v{vLane}")
    vmA = VmTracker(); vmG = VmTracker()
    a(f"s_cmp_ge_u32 s{sW}, 4")
    a(f"s_cbranch_scc1 L_{name}_gsetup")

    def common_late():
        a(f"s_mov_b32 s{sC}, 1.0"); a(f"s_mov_b32 s{sC+1}, 1.0")
        srd(a, SWS, pWS, 0, WS_USED)
        a(f"v_and_b32 v{vA}, 15, v{vLane}")
        a(f"v_lshrrev_b32 v{vB_}, 1, v{vA}")
        a(f"v_lshrrev_b32 v{vC}, 4, v{vLane}")
        a(f"v_xor_b32 v{vB_}, v{vB_}, v{vC}")
        a(f"v_lshlrev_b32 v{vA}, 7, v{vA}")
        a(f"s_lshl_b32 s{t0}, s{sWQ}, 13")
        a(f"v_add_u32 v{vA}, s{t0}, v{vA}")
        a(f"v_lshlrev_b32 v{vC}, 4, v{vB_}")
        a(f"v_add_u32 v{vX[0][0]}, v{vA}, v{vC}")
        a(f"v_xor_b32 v{vX[0][1]}, 64, v{vX[0][0]}")
        a(f"v_add_u32 v{vX[1][0]}, 65536, v{vX[0][0]}")
        a(f"v_add_u32 v{vX[1][1]}, 65536, v{vX[0][1]}")

    a("s_waitcnt lgkmcnt(0)")
    P.stamp(3, "pro")
    a(f"s_lshr_b32 s{t1}, s2, 3"); a(f"s_and_b32 s{t2}, s{t1}, 3"); a(f"s_lshr_b32 s{t1}, s{t1}, 2")
    a(f"s_cmp_eq_u32 s{sWQ}, 0")
    a(f"s_cbranch_scc0 L_{name}_t1")
    srd(a, ST, pX, 0, 2048*2048)
    a(f"s_lshl_b32 s{t0}, s{sMI}, 8"); a(f"s_lshl_b32 s{t3}, s{t1}, 5"); a(f"s_add_u32 s{t0}, s{t0}, s{t3}")
    a(f"v_add_u32 v{vT}, s{t0}, v{vLane}"); a(f"v_lshlrev_b32 v{vT}, 11, v{vT}")
    a(f"v_cmp_gt_u32 vcc, 32, v{vLane}"); a(f"v_mov_b32 v{vA}, {hex(OOB)}"); a(f"v_cndmask_b32 v{vT}, v{vA}, v{vT}, vcc")
    a(f"s_mov_b32 s{sTinc}, 128")
    a(f"s_branch L_{name}_tdone")
    a.label(f"L_{name}_t1")
    a(f"v_mul_u32_u24 v{vA}, 43, v{vLane}"); a(f"v_lshrrev_b32 v{vA}, 7, v{vA}")
    a(f"v_mul_u32_u24 v{vB_}, 3, v{vA}"); a(f"v_sub_u32 v{vB_}, v{vLane}, v{vB_}")
    a(f"s_lshl_b32 s{t0}, s{t2}, 4"); a(f"v_add_u32 v{vA}, s{t0}, v{vA}")
    a(f"s_cmp_eq_u32 s{sWQ}, 1")
    a(f"s_cbranch_scc0 L_{name}_t2")
    srd(a, ST, pQKV, 0, 1024*6144)
    if dedupe:
        a(f"s_and_b32 s{t0}, s{sH}, 1"); a(f"s_lshl_b32 s{t0}, s{t0}, 3"); a(f"v_add_u32 v{vA}, s{t0}, v{vA}")
    a(f"v_cmp_eq_u32 vcc, 0, v{vB_}")
    a(f"v_mul_u32_u24 v{vT}, 6144, v{vA}"); a(f"v_lshlrev_b32 v{vB_}, 11, v{vB_}"); a(f"v_add_u32 v{vT}, v{vT}, v{vB_}")
    a(f"s_lshl_b32 s{t0}, s{sH}, 6"); a(f"s_lshl_b32 s{t3}, s{sHq}, 6"); a(f"v_mov_b32 v{vA}, s{t0}"); a(f"v_mov_b32 v{vB_}, s{t3}"); a(f"v_cndmask_b32 v{vA}, v{vA}, v{vB_}, vcc")
    a(f"v_add_u32 v{vT}, v{vA}, v{vT}")
    a(f"v_cmp_gt_u32 vcc, {24 if dedupe else 48}, v{vLane}"); a(f"v_mov_b32 v{vA}, {hex(OOB)}"); a(f"v_cndmask_b32 v{vT}, v{vA}, v{vT}, vcc")
    a(f"s_mov_b32 s{sTinc}, {64*6144}")
    a(f"s_branch L_{name}_tdone")
    a.label(f"L_{name}_t2")
    a(f"s_cmp_eq_u32 s{sWQ}, 2")
    a(f"s_cbranch_scc0 L_{name}_t3")
    srd(a, ST, pWIN, 0, 1024*7168)
    a(f"v_mul_u32_u24 v{vT}, 7168, v{vA}"); a(f"v_lshlrev_b32 v{vB_}, 7, v{vB_}"); a(f"v_min_u32 v{vB_}, 252, v{vB_}"); a(f"v_add_u32 v{vT}, v{vT}, v{vB_}")
    a(f"s_mul_i32 s{t0}, s{sNJ}, 224"); a(f"s_lshl_b32 s{t3}, s{sODD}, 5"); a(f"s_sub_u32 s{t0}, s{t0}, s{t3}"); a(f"v_add_u32 v{vT}, s{t0}, v{vT}")
    a(f"v_cmp_gt_u32 vcc, 48, v{vLane}"); a(f"v_mov_b32 v{vA}, {hex(OOB)}"); a(f"v_cndmask_b32 v{vT}, v{vA}, v{vT}, vcc")
    a(f"s_mov_b32 s{sTinc}, {64*7168}")
    a(f"s_branch L_{name}_tdone")
    a.label(f"L_{name}_t3")
    srd(a, ST, pWSP, 0, 2048*4096)
    if wsplit:
        a(f"v_lshrrev_b32 v{vT}, 4, v{vLane}"); a(f"v_lshlrev_b32 v{vT}, 12, v{vT}"); a(f"v_and_b32 v{vA}, 15, v{vLane}"); a(f"v_lshlrev_b32 v{vA}, 7, v{vA}")
        a(f"v_add_u32 v{vT}, v{vT}, v{vA}"); a(f"s_lshl_b32 s{t0}, s2, 15"); a(f"v_add_u32 v{vT}, s{t0}, v{vT}")
        a(f"s_mov_b32 s{sTinc}, 16384")
        a(f"s_add_u32 s{ST+2}, s{t0}, 32768")
    else:
        a(f"v_lshlrev_b32 v{vT}, 7, v{vLane}"); a(f"s_lshl_b32 s{t0}, s2, 15"); a(f"v_add_u32 v{vT}, s{t0}, v{vT}")
        a(f"s_mov_b32 s{sTinc}, 8192")
        a(f"s_add_u32 s{ST+2}, s{t0}, 32768") if wsp else a(f"s_mov_b32 s{ST+2}, 0")
    a.label(f"L_{name}_tdone")
    a(f"s_mov_b32 s{sTo}, 0")
    def touch_ops(vm, tag):
        vm.issue(tag)
        return [f"buffer_load_dword v{vDum}, v{vT}, s[{ST}:{ST+3}], s{sTo} offen {tfl}", f"s_add_u32 s{sTo}, s{sTo}, s{sTinc}"]
    a(f"s_cmp_eq_u32 s{sWQ}, 3")
    a(f"s_cbranch_scc1 L_{name}_notouch0")
    if touch:
        for q in range(2):
            for l in touch_ops(vmA, ("T", q)): a(l)
    a.label(f"L_{name}_notouch0")
    a(f"v_lshrrev_b32 v{vA}, 3, v{vLane}")
    a(f"s_lshl_b32 s{t0}, s{sMI}, 8"); a(f"s_lshl_b32 s{t1}, s{sWQ}, 6"); a(f"s_add_u32 s{t0}, s{t0}, s{t1}")
    a(f"v_add_u32 v{vA}, s{t0}, v{vA}"); a(f"v_lshlrev_b32 v{vA}, 11, v{vA}")
    a(f"v_and_b32 v{vB_}, 7, v{vLane}"); a(f"v_lshrrev_b32 v{vC}, 4, v{vLane}"); a(f"v_xor_b32 v{vB_}, v{vB_}, v{vC}")
    a(f"v_lshlrev_b32 v{vC}, 4, v{vB_}"); a(f"v_add_u32 v{vDs[0]}, v{vA}, v{vC}")
    a(f"v_xor_b32 v{vC}, 64, v{vC}"); a(f"v_add_u32 v{vDs[1]}, v{vA}, v{vC}"); a(f"v_add_u32 v{vDs[1]}, {8*2048}, v{vDs[1]}")
    for e in range(2, 8): a(f"v_add_u32 v{vDs[e]}, {16*2048}, v{vDs[e-2]}")
    a(f"s_lshl_b32 s{sM0}, s{sWQ}, 13")
    a(f"s_mov_b32 s{sKA}, 0")
    srd(a, SX, pX, 0, 2048*2048)
    def dmaA(tile, half):
        out = []
        for e in range(4*half, 4*half+4):
            vmA.issue(("A", tile, e))
            out.append([f"s_add_u32 m0, s{sM0}, {(tile % NA)*A_SLOT + e*1024}",
                        f"buffer_load_dwordx4 v{vDs[e]}, s[{SX}:{SX+3}], s{sKA} offen {dfl} lds"])
        if half == 1: out[-1].append(f"s_add_u32 s{sKA}, s{sKA}, 128")
        return out
    a("s_barrier")
    for half in range(2):
        for grp in dmaA(0, half):
            for l in grp: a(l)
    P.stamp(4, "pro")
    common_late()
    a(f"v_mov_b32 v{vA}, 0"); a(f"v_lshlrev_b32 v{vB_}, 2, v{vLane}"); a(f"v_add_u32 v{vB_}, {MISC}, v{vB_}"); a(f"ds_write_b32 v{vB_}, v{vA}")
    a(f"v_lshrrev_b32 v{vA}, 4, v{vLane}"); a(f"v_mul_u32_u24 v{vB_}, 1536, v{vA}")
    a(f"v_bfe_u32 v{vC}, v{vLane}, 2, 2"); a(f"v_lshlrev_b32 v{vC}, 6, v{vC}"); a(f"v_add_u32 v{vB_}, v{vB_}, v{vC}")
    a(f"v_and_b32 v{vC}, 3, v{vLane}"); a(f"v_lshlrev_b32 v{vC}, 3, v{vC}"); a(f"v_add_u32 v{vB_}, v{vB_}, v{vC}")
    a(f"v_and_b32 v{vA}, 1, v{vA}"); a(f"v_lshlrev_b32 v{vA}, 5, v{vA}"); a(f"v_add_u32 v{vB_}, {W_BASE}, v{vB_}")
    a(f"v_add_u32 v{vW1[0]}, v{vB_}, v{vA}"); a(f"v_xor_b32 v{vA}, 32, v{vA}"); a(f"v_add_u32 v{vW1[1]}, v{vB_}, v{vA}")
    if relayout:
        a(f"s_lshl_b32 s{t0}, s{sWQ}, 8"); a(f"s_add_u32 s{t0}, s{t0}, s2")
        a(f"s_lshr_b32 s{t1}, s{t0}, 1")
        a(f"s_and_b32 s{t2}, s{t0}, 1")
        a(f"s_cmp_lt_u32 s{t1}, 128")
        a(f"s_cselect_b32 s{SRL}, s{pWO}, s{pWOUT}")
        a(f"s_cselect_b32 s{SRL+1}, s{pWO+1}, s{pWOUT+1}")
        a(f"s_mov_b32 s{t3}, {1792*2048}")
        a(f"s_cselect_b32 s{SRL+2}, {1024*2048}, s{t3}")
        a(f"s_mov_b32 s{SRL+3}, {hex(SRD3)}")
        a(f"s_cselect_b32 s{t3}, 0, 128")
        a(f"s_sub_u32 s{t3}, s{t1}, s{t3}")
        a(f"s_lshl_b32 s{t3}, s{t3}, 14")
        a(f"s_lshl_b32 s{sRLs}, s{t2}, 10"); a(f"s_add_u32 s{sRLs}, s{sRLs}, s{t3}")
        a(f"s_mul_i32 s{sRLd}, s{t2}, {8*44*8192}"); a(f"s_lshl_b32 s{t3}, s{t1}, 10"); a(f"s_add_u32 s{sRLd}, s{sRLd}, s{t3}")
        a(f"s_add_u32 s{sRLd}, s{sRLd}, {WT_OFF}")
        a(f"s_cmp_lt_u32 s{t0}, 704")
        a(f"s_cselect_b32 s{sRLs}, s{sRLs}, {hex(OOB)}")
        a(f"s_cselect_b32 s{sRLd}, s{sRLd}, {hex(OOB)}")
        a(f"v_lshrrev_b32 v{vA}, 3, v{vLane}"); a(f"v_lshrrev_b32 v{vB_}, 1, v{vA}")
        a(f"v_bfe_u32 v{vC}, v{vLane}, 1, 2"); a(f"v_xor_b32 v{vC}, v{vC}, v{vB_}"); a(f"v_lshlrev_b32 v{vC}, 5, v{vC}")
        a(f"v_and_b32 v{vB_}, 1, v{vLane}"); a(f"v_lshlrev_b32 v{vB_}, 4, v{vB_}"); a(f"v_add_u32 v{vC}, v{vC}, v{vB_}")
        a(f"v_lshlrev_b32 v{vA}, 11, v{vA}"); a(f"v_add_u32 v{vRL}, v{vA}, v{vC}")
    def att_second():
        for half in range(2):
            for grp in dmaA(1, half):
                for l in grp: a(l)
        if early3:
            a(f"s_cmp_eq_u32 s{sWQ}, 3"); a(f"s_cbranch_scc0 L_{name}_noe3")
            for (ptr, size, per, div, mul, stride) in ((pQKV, 1024*6144, 24, 6, 10923, 6144), (pWIN, 1024*7168, 28, 7, 9363, 7168)):
                srd(a, SRL if not relayout else SD, ptr, 0, size)
                sr_ = SRL if not relayout else SD
                a(f"s_mul_i32 s{t0}, s2, {per}"); a(f"v_add_u32 v{vA}, s{t0}, v{vLane}")
                a(f"v_mul_u32_u24 v{vB_}, {mul}, v{vA}"); a(f"v_lshrrev_b32 v{vB_}, 16, v{vB_}")
                a(f"v_mul_u32_u24 v{vC}, {div}, v{vB_}"); a(f"v_sub_u32 v{vC}, v{vA}, v{vC}")
                a(f"v_mul_u32_u24 v{vB_}, {stride}, v{vB_}"); a(f"v_lshlrev_b32 v{vC}, 10, v{vC}"); a(f"v_add_u32 v{vB_}, v{vB_}, v{vC}"); a(f"v_add_u32 v{vB_}, 384, v{vB_}")
                a(f"v_cmp_gt_u32 vcc, {per}, v{vLane}"); a(f"v_mov_b32 v{vC}, {hex(OOB)}"); a(f"v_cndmask_b32 v{vB_}, v{vC}, v{vB_}, vcc")
                a(f"buffer_load_dword v{vDum}, v{vB_}, s[{sr_}:{sr_+3}], 0 offen")
            a.label(f"L_{name}_noe3")
    def wphi_ops():
        vmA.issue("wphi")
        return [f"s_mov_b32 s{SD}, s{pPHI}", f"s_mov_b32 s{SD+1}, s{pPHI+1}", f"s_mov_b32 s{SD+2}, 65536", f"s_mov_b32 s{SD+3}, {hex(SRD3)}",
                f"s_and_b32 s{t0}, s{sWQ}, 1", f"s_lshl_b32 s{t0}, s{t0}, 10", f"s_lshl_b32 s{t1}, s{sH}, 11", f"s_add_u32 s{t1}, s{t1}, s{t0}",
                f"s_add_u32 m0, s{t0}, {WPHI}", "s_nop 0", f"buffer_load_dwordx4 v{vRLd}, s[{SD}:{SD+3}], s{t1} offen lds"]
    a(f"s_branch L_{name}_amain")

    a.label(f"L_{name}_gsetup")
    a(f"v_lshrrev_b32 v{vA}, 2, v{vLane}")
    a(f"v_and_b32 v{vB_}, 3, v{vA}")
    a(f"v_lshrrev_b32 v{vC}, 2, v{vA}")
    a(f"v_and_b32 v{vD}, 3, v{vLane}")
    a(f"s_mul_i32 s{t3}, s{sNJ}, 224"); a(f"s_lshl_b32 s{t2}, s{sODD}, 5"); a(f"s_sub_u32 s{t3}, s{t3}, s{t2}")
    def w2src(dst, kq_s):
        a(f"s_lshl_b32 s{t0}, s{kq_s}, 2")
        a(f"v_add_u32 v{dst}, s{t0}, v{vB_}"); a(f"v_mul_u32_u24 v{dst}, 7168, v{dst}")
        a(f"s_and_b32 s{t0}, s{kq_s}, 2")
        a(f"v_xor_b32 v{vDum}, s{t0}, v{vD}"); a(f"v_lshlrev_b32 v{vDum}, 4, v{vDum}"); a(f"v_add_u32 v{dst}, v{dst}, v{vDum}")
        a(f"v_lshlrev_b32 v{vDum}, 6, v{vC}"); a(f"v_add_u32 v{dst}, v{dst}, v{vDum}")
        a(f"v_add_u32 v{dst}, s{t3}, v{dst}")
    a(f"s_cmp_ge_u32 s{sWQ}, 2")
    a(f"s_cbranch_scc1 L_{name}_g23")
    a(f"s_mov_b32 s{sIncD}, {32*6144}")
    for j in range(3):
        a(f"s_mul_i32 s{t0}, s{sWQ}, 12"); a(f"s_add_u32 s{t0}, s{t0}, {4*j}")
        a(f"v_add_u32 v{vDs[j]}, s{t0}, v{vC}")
        a(f"v_mul_u32_u24 v{vDum}, 11, v{vDs[j]}"); a(f"v_lshrrev_b32 v{vDum}, 5, v{vDum}")
        a(f"v_mul_u32_u24 v{vT}, 3, v{vDum}"); a(f"v_sub_u32 v{vT}, v{vDs[j]}, v{vT}")
        a(f"v_cmp_eq_u32 vcc, 0, v{vT}")
        a(f"v_lshlrev_b32 v{vT}, 11, v{vT}")
        a(f"v_and_b32 v{vDs[j]}, 2, v{vDum}"); a(f"v_xor_b32 v{vDs[j]}, v{vDs[j]}, v{vD}"); a(f"v_lshlrev_b32 v{vDs[j]}, 4, v{vDs[j]}")
        a(f"v_add_u32 v{vT}, v{vT}, v{vDs[j]}")
        a(f"v_lshlrev_b32 v{vDum}, 2, v{vDum}"); a(f"v_add_u32 v{vDum}, v{vDum}, v{vB_}"); a(f"v_mul_u32_u24 v{vDum}, 6144, v{vDum}")
        a(f"v_add_u32 v{vT}, v{vT}, v{vDum}")
        a(f"s_lshl_b32 s{t0}, s{sH}, 6"); a(f"s_lshl_b32 s{t1}, s{sHq}, 6"); a(f"v_mov_b32 v{vDum}, s{t0}"); a(f"v_mov_b32 v{vDs[j]}, s{t1}")
        a(f"v_cndmask_b32 v{vDum}, v{vDum}, v{vDs[j]}, vcc"); a(f"v_add_u32 v{vDs[j]}, v{vDum}, v{vT}")
        a(f"s_mul_i32 s{t0}, s{sWQ}, 3072"); a(f"s_add_u32 s{sMs[j]}, s{t0}, {W_BASE + j*1024}")
    a(f"s_mov_b32 s{t1}, s{sWQ}"); w2src(vDs[3], t1)
    a(f"s_lshl_b32 s{t0}, s{sWQ}, 10"); a(f"s_add_u32 s{sMs[3]}, s{t0}, {W_BASE + 6144}")
    a("s_waitcnt lgkmcnt(0)")
    srd(a, SD, pQKV, 0, 1024*6144)
    a(f"s_branch L_{name}_g23done")
    a.label(f"L_{name}_g23")
    a(f"s_mov_b32 s{sIncD}, {32*7168}")
    for j in range(3):
        a(f"s_mul_i32 s{t1}, s{sWQ}, 3"); a(f"s_add_u32 s{t1}, s{t1}, {j}"); a(f"s_sub_u32 s{t1}, s{t1}, 4")
        w2src(vDs[j], t1)
        a(f"s_lshl_b32 s{t0}, s{t1}, 10"); a(f"s_add_u32 s{sMs[j]}, s{t0}, {W_BASE + 6144}")
    a(f"v_mov_b32 v{vDs[3]}, {hex(OOB)}")
    a(f"s_mov_b32 s{sMs[3]}, {DUMMY}")
    a("s_waitcnt lgkmcnt(0)")
    srd(a, SD, pWIN, 0, 1024*7168)
    a.label(f"L_{name}_g23done")
    P.stamp(3, "pro")
    srd(a, SD3, pWIN, 0, 1024*7168)
    a(f"s_cmp_ge_u32 s{sWQ}, 2"); a(f"s_cselect_b32 s{sM0d}, 0, {W_SLOT}")
    a(f"s_mov_b32 s{sKD}, 0"); a(f"s_mov_b32 s{sKD3}, 0")
    def dmaW(tile):
        out = []
        for j in range(4):
            vmG.issue(("W", tile, j))
            slot = tile % NW
            if j < 3:
                out.append([f"s_add_u32 m0, s{sMs[j]}, {slot*W_SLOT}",
                            f"buffer_load_dwordx4 v{vDs[j]}, s[{SD}:{SD+3}], s{sKD} offen {dfl} lds"])
            else:
                out.append([f"s_mul_i32 s{t0}, s{sM0d}, {slot}", f"s_add_u32 m0, s{sMs[3]}, s{t0}",
                            f"buffer_load_dwordx4 v{vDs[3]}, s[{SD3}:{SD3+3}], s{sKD3} offen {dfl} lds",
                            f"s_add_u32 s{sKD}, s{sKD}, s{sIncD}", f"s_add_u32 s{sKD3}, s{sKD3}, {32*7168}"])
        return out
    srd(a, SWS, pWS, 0, WS_USED)
    a(f"s_lshl_b32 s{t0}, s{sMI}, 4"); a(f"s_add_u32 s{t0}, s{t0}, s{sNJ}"); a(f"s_sub_u32 s{t0}, s{t0}, 16"); a(f"s_lshl_b32 s{t0}, s{t0}, 11")
    a(f"s_lshl_b32 s{t1}, s{sWQ}, 9"); a(f"s_add_u32 s{t0}, s{t0}, s{t1}"); a(f"s_add_u32 s{sSt}, s{t0}, {STAT_OFF}")
    a(f"s_cmp_lt_u32 s{sNJ}, 16"); a(f"s_cselect_b32 s{sSt}, {hex(OOB)}, s{sSt}")
    a(f"v_mov_b32 v{GV}, 0"); a(f"v_mov_b32 v{GV+1}, -1.0"); a(f"v_lshlrev_b32 v{GV+2}, 3, v{vLane}")
    a(f"buffer_store_dwordx2 v[{GV}:{GV+1}], v{GV+2}, s[{SWS}:{SWS+3}], s{sSt} offen sc1")
    vmG.issue("mark")
    if codewarm:
        a(f"s_cmp_eq_u32 s{sW}, 7")
        a(f"s_cbranch_scc0 L_{name}_nocw")
        a(f"s_getpc_b64 s[{t2}:{t3}]")
        a.label(f"L_{name}_pc")
        a(f"s_lshr_b32 s{t0}, s2, 3"); a(f"s_lshl_b32 s{t0}, s{t0}, 4")
        a(f"v_and_b32 v{GV+4}, 15, v{vLane}"); a(f"v_add_u32 v{GV+4}, s{t0}, v{GV+4}"); a(f"v_lshlrev_b32 v{GV+4}, 7, v{GV+4}")
        a(f"v_mov_b32 v{GV+7}, s{t3}"); a(f"v_add_co_u32 v{GV+6}, vcc, s{t2}, v{GV+4}"); a(f"v_addc_co_u32 v{GV+7}, vcc, 0, v{GV+7}, vcc")
        a(f"s_mov_b32 s{t0}, L_text_end-L_{name}_pc")
        a(f"v_cmp_gt_u32 vcc, s{t0}, v{GV+4}")
        a(f"s_and_saveexec_b64 s[{t2}:{t3}], vcc")
        a(f"s_cbranch_execz L_{name}_cwx")
        a(f"global_load_dword v{GV+5}, v[{GV+6}:{GV+7}], off")
        a.label(f"L_{name}_cwx")
        a(f"s_mov_b64 exec, s[{t2}:{t3}]")
        a.label(f"L_{name}_nocw")
    a("s_barrier")
    for grp in dmaW(0):
        for l in grp: a(l)
    P.stamp(4, "pro")
    gm_w1 = True
    common_late()
    srd(a, SX, pX, 0, 2048*2048)
    a(f"v_lshrrev_b32 v{vA}, 4, v{vLane}"); a(f"v_lshlrev_b32 v{vB_}, 11, v{vA}")
    a(f"v_bfe_u32 v{vC}, v{vLane}, 2, 2"); a(f"v_lshlrev_b32 v{vC}, 6, v{vC}"); a(f"v_add_u32 v{vB_}, v{vB_}, v{vC}")
    a(f"v_and_b32 v{vC}, 3, v{vLane}"); a(f"v_lshlrev_b32 v{vC}, 3, v{vC}"); a(f"v_add_u32 v{vB_}, v{vB_}, v{vC}")
    a(f"v_add_u32 v{vB_}, {W_BASE + 6144}, v{vB_}")
    a(f"v_and_b32 v{vA}, 1, v{vA}"); a(f"v_xor_b32 v{vA}, s{sODD}, v{vA}"); a(f"v_lshlrev_b32 v{vA}, 5, v{vA}")
    a(f"v_add_u32 v{vW2[0]}, v{vB_}, v{vA}"); a(f"v_xor_b32 v{vA}, 32, v{vA}"); a(f"v_add_u32 v{vW2[1]}, v{vB_}, v{vA}")
    a(f"s_lshl_b32 s{t0}, s{sODD}, 8"); a(f"v_add_u32 v{vW2[1]}, s{t0}, v{vW2[1]}")
    a(f"s_branch L_{name}_gmain")

    def gate_loads(vm):
        ops = [f"s_lshl_b32 s{t0}, s{sMI}, 8", f"s_lshl_b32 s{t1}, s{sNJ}, 3", f"s_add_u32 s{t0}, s{t0}, s{t1}", f"s_add_u32 s{t0}, s{t0}, s{sW}",
               f"s_lshl_b32 s{sTo}, s{t0}, 2", f"s_add_u32 s{sTo}, s{sTo}, {GATE_OFF}", f"s_lshl_b32 s{t0}, s{t0}, 11",
               f"s_mov_b32 s{ST}, s{pGATE}", f"s_mov_b32 s{ST+1}, s{pGATE+1}", f"s_mov_b32 s{ST+2}, 2048", f"s_mov_b32 s{ST+3}, {hex(SRD3)}"]
        ld = [f"buffer_load_dwordx4 v[{GV}:{GV+3}], v{vRLd}, s[{SX}:{SX+3}], s{t0} offen",
              f"buffer_load_dwordx4 v[{GV+4}:{GV+7}], v{vRLd}, s[{SX}:{SX+3}], s{t0} offen offset:1024",
              f"buffer_load_dwordx4 v[{GV+8}:{GV+11}], v{vRLd}, s[{ST}:{ST+3}], 0 offen",
              f"buffer_load_dwordx4 v[{GV+12}:{GV+15}], v{vRLd}, s[{ST}:{ST+3}], 0 offen offset:1024"]
        for q in range(4): vm.issue(("gate", q))
        return ops + ld
    def gate_compute():
        T = GV + 16
        o = [f"v_mov_b32 v{T+2}, 0", f"v_mov_b32 v{T+3}, 0"]
        for q in range(8):
            xr, gr = GV + q, GV + 8 + q
            o += [f"v_lshlrev_b32 v{T}, 16, v{xr}", f"v_and_b32 v{T+1}, 0xffff0000, v{xr}",
                  f"v_lshlrev_b32 v{T+4}, 16, v{gr}", f"v_and_b32 v{T+5}, 0xffff0000, v{gr}",
                  f"v_fma_f32 v{T+2}, v{T}, v{T+4}, v{T+2}", f"v_fma_f32 v{T+3}, v{T+1}, v{T+5}, v{T+3}"]
        o.append(f"v_add_f32 v{T}, v{T+2}, v{T+3}")
        for sh in (8, 4, 2, 1):
            o.append(f"v_add_f32_dpp v{T}, v{T}, v{T} row_ror:{sh} row_mask:0xf bank_mask:0xf")
        o += [f"v_mov_b32 v{T+1}, v{T}", f"v_permlane16_swap_b32 v{T}, v{T+1}", f"v_add_f32 v{T}, v{T}, v{T+1}",
              f"v_mov_b32 v{T+1}, v{T}", f"v_permlane32_swap_b32 v{T}, v{T+1}", f"v_add_f32 v{T}, v{T}, v{T+1}",
              f"v_mul_f32 v{T}, {f2h(-LOG2E)}, v{T}", f"v_exp_f32 v{T}, v{T}", f"v_add_f32 v{T}, 1.0, v{T}", f"v_rcp_f32 v{T}, v{T}",
              f"v_lshlrev_b32 v{T+1}, 2, v{vLane}", f"v_cmp_eq_u32 vcc, 0, v{vLane}", f"v_mov_b32 v{T+2}, {hex(OOB)}", f"v_cndmask_b32 v{T+1}, v{T+2}, v{T+1}, vcc"]
        return o, f"buffer_store_dword v{T}, v{T+1}, s[{SWS}:{SWS+3}], s{sTo} offen"

    def xreads(step):
        tile = step >> 1; kh = step & 1; slot = tile % NA
        base = XF + (step % 2)*16
        hi = 1 if slot == 2 else 0; off = 0 if slot == 2 else slot*A_SLOT
        return [f"ds_read_b128 v[{base+4*tb}:{base+4*tb+3}], v{vX[hi][kh]} offset:{off + tb*2048}" for tb in range(4)]
    def main_loop(role):
        att = role == "A"
        vm = vmA if att else vmG
        nb = 6 if att else 7
        ACC = ACC_A if att else ACC_G
        WSET = 4*nb
        def wreads(step):
            base = WF + (step % 2)*WSET; slot = step % NW; out = []
            for i in range(nb):
                for sec in range(2):
                    r = base + 4*i + 2*sec
                    if att: out.append(f"ds_read_b64_tr_b16 v[{r}:{r+1}], v{vW1[i & 1]} offset:{slot*W_SLOT + sec*768 + (i >> 1)*256}")
                    else:   out.append(f"ds_read_b64_tr_b16 v[{r}:{r+1}], v{vW2[i & 1]} offset:{slot*W_SLOT + sec*1024 + (i >> 1)*256}")
            return out
        def mfmas(step):
            xb = XF + (step % 2)*16; wb = WF + (step % 2)*WSET; out = []
            for i in range(nb):
                for tb in (range(4) if i % 2 == 0 else range(3, -1, -1)):
                    c = ACC + (i*4+tb)*4
                    w_, x_ = f"v[{wb+4*i}:{wb+4*i+3}]", f"v[{xb+4*tb}:{xb+4*tb+3}]"
                    if att and i >= 4: w_, x_ = x_, w_
                    out.append(f"v_mfma_f32_16x16x32_bf16 v[{c}:{c+3}], {w_}, {x_}, v[{c}:{c+3}]")
            return out
        for i in range(nb*16): a(f"v_mov_b32 v{ACC+i}, 0")
        if not att:
            for grp in dmaW(1):
                for l in grp: a(l)
        need = [("A", 0, e) for e in range(8)] if att else [("W", 0, j) for j in range(4)]
        a(f"s_waitcnt vmcnt({vm.need(need)}) lgkmcnt(0)")
        a("s_barrier")
        for l in xreads(0) + wreads(0): a(l)
        if att:
            att_second()
            a("s_waitcnt lgkmcnt(0)")
        else:
            for grp in dmaW(2):
                for l in grp: a(l)
            a(f"s_waitcnt vmcnt({max(vm.need([('W', 1, j) for j in range(4)]), 0)}) lgkmcnt(0)")
        a("s_barrier")
        P.stamp(1)
        steps = []; pend_rl = []
        gcomp, gstore = gate_compute()
        GL, GS0, GS1 = 26, 28, 31
        L0 = 2
        for s in range(NS):
            m = mfmas(s); nm = len(m)
            rd = (xreads(s+1) + wreads(s+1)) if s + 1 < NS else []
            dm = []
            if s == GS0: gate_wait = vm.need([("gate", 3)])
            if att:
                t2_ = ((s + 1) >> 1) + 2; half = (s + 1) & 1
                if s == 0: dm += dmaA(2, 0)
                if t2_ < NS // 2: dm += dmaA(t2_, half)
                if s == 1: dm.append(wphi_ops())
                cold = []
                if burst and bmode == 4:
                    inloop = L0 <= s < L0 + 24
                    r = (s - L0) % 12
                    if touch and s == 0: cold += sum([touch_ops(vm, ("T", q)) for q in (2, 3, 4)], [])
                    if inloop and r % 4 == 0:
                        bidx = r // 4
                        if touch: cold += sum([touch_ops(vm, ("T", s, q)) for q in range(2)], [])
                        if relayout:
                            cur = []
                            for bi in range(2 if bidx == 0 else 1):
                                b = vRLb + 4*bi; tag = ("RL", s, bi); vm.issue(tag); cur.append((tag, b))
                                cold += [f"buffer_load_dwordx4 v[{b}:{b+3}], v{vRL}, s[{SRL}:{SRL+3}], s{sRLs} offen {rfl}", f"s_add_u32 s{sRLs}, s{sRLs}, 128"]
                            pend_rl.append(cur)
                    if relayout and inloop and r % 4 == 3:
                        prev = pend_rl.pop(0)
                        n = vm.need([prev[-1][0]])
                        cold.append(f"s_waitcnt vmcnt({n})")
                        for tag, b in prev:
                            vm.issue(("RS", tag))
                            cold += [f"buffer_store_dwordx4 v[{b}:{b+3}], v{vRLd}, s[{SWS}:{SWS+3}], s{sRLd} offen {st}", f"s_add_u32 s{sRLd}, s{sRLd}, {44*8192}"]
                elif burst:
                    if touch and s == 0: cold += sum([touch_ops(vm, ("T", q)) for q in (2, 3, 4)], [])
                    if touch and L0 <= s < L0 + 24 and (s - L0) % U == 1: cold += sum([touch_ops(vm, ("T", s, q)) for q in range(3)], [])
                    if relayout and L0 <= s < L0 + 24:
                        r6 = (s - L0) % U
                        if r6 == 1:
                            for bi in range(2):
                                b = vRLb + 4*bi
                                vm.issue(("RL", s, bi))
                                cold += [f"buffer_load_dwordx4 v[{b}:{b+3}], v{vRL}, s[{SRL}:{SRL+3}], s{sRLs} offen", f"s_add_u32 s{sRLs}, s{sRLs}, 128"]
                        if r6 == 5:
                            n = vm.need([("RL", s - 4, 1)])
                            cold.append(f"s_waitcnt vmcnt({n})")
                            for bi in range(2):
                                b = vRLb + 4*bi
                                vm.issue(("RS", s, bi))
                                cold += [f"buffer_store_dwordx4 v[{b}:{b+3}], v{vRLd}, s[{SWS}:{SWS+3}], s{sRLd} offen {st}", f"s_add_u32 s{sRLd}, s{sRLd}, {44*8192}"]
                    pass
                if burst:
                    if cold: dm.append(cold)
                else:
                    if touch and s < 2:
                        for q in range(2 + s*((PT-1)//2), min(PT, 2 + (s+1)*((PT-1)//2)) if s == 0 else PT): dm.append(touch_ops(vm, ("T", q)))
                    if touch and s % 2 == 0 and s < L0 + 24: dm.append(touch_ops(vm, ("T", s // 2 + PT)))
                    if relayout and L0 <= s < L0 + 24:
                        r6 = (s - L0) % 6
                        if r6 in (0, 2):
                            b = vRLb + 2*r6
                            vm.issue(("RL", s))
                            dm.append([f"buffer_load_dwordx4 v[{b}:{b+3}], v{vRL}, s[{SRL}:{SRL+3}], s{sRLs} offen {rfl}", f"s_add_u32 s{sRLs}, s{sRLs}, 128"])
                        if r6 in (4, 5):
                            src = s - 4 if r6 == 4 else s - 3
                            b = vRLb + (0 if r6 == 4 else 4)
                            n = vm.need([("RL", src)])
                            vm.issue(("RS", s))
                            dm.append([f"s_waitcnt vmcnt({n})", f"buffer_store_dwordx4 v[{b}:{b+3}], v{vRLd}, s[{SWS}:{SWS+3}], s{sRLd} offen {st}", f"s_add_u32 s{sRLd}, s{sRLd}, {44*8192}"])
            else:
                if NW == 4 and s == 0: dm += dmaW(3)
                if s + NW < NS: dm += dmaW(s + NW)
            if att and wsp_tail and s == wsp_tail:
                vm.issue("wsp")
                if wsplit:
                    dm.append([f"s_mov_b32 s{SRL}, s{pWSP}", f"s_mov_b32 s{SRL+1}, s{pWSP+1}", f"s_mov_b32 s{SRL+2}, {2048*4096}", f"s_mov_b32 s{SRL+3}, {hex(SRD3)}",
                               f"s_lshl_b32 s{t0}, s2, 15", f"s_lshl_b32 s{t1}, s{sWQ}, 13", f"s_add_u32 s{t0}, s{t0}, s{t1}", f"s_add_u32 s{t0}, s{t0}, 2048",
                               f"v_lshrrev_b32 v{vRL}, 4, v{vLane}", f"v_lshlrev_b32 v{vRL}, 12, v{vRL}", f"v_and_b32 v{vDum}, 15, v{vLane}", f"v_lshlrev_b32 v{vDum}, 7, v{vDum}",
                               f"v_add_u32 v{vRL}, v{vRL}, v{vDum}", f"v_cmp_gt_u32 vcc, 32, v{vLane}", f"v_mov_b32 v{vDum}, {hex(OOB)}", f"v_cndmask_b32 v{vRL}, v{vDum}, v{vRL}, vcc",
                               f"buffer_load_dword v{vDum}, v{vRL}, s[{SRL}:{SRL+3}], s{t0} offen"])
                else:
                    dm.append([f"s_mov_b32 s{SRL}, s{pWSP}", f"s_mov_b32 s{SRL+1}, s{pWSP+1}", f"s_mov_b32 s{SRL+2}, {2048*4096}", f"s_mov_b32 s{SRL+3}, {hex(SRD3)}",
                               f"s_lshl_b32 s{t0}, s2, 15", f"s_lshl_b32 s{t1}, s{sWQ}, 13", f"s_add_u32 s{t0}, s{t0}, s{t1}",
                               f"v_lshlrev_b32 v{vRL}, 7, v{vLane}", f"buffer_load_dword v{vDum}, v{vRL}, s[{SRL}:{SRL+3}], s{t0} offen"])
            if s == GL: dm.append(gate_loads(vm))
            slots = [[] for _ in range(nm)]
            for k, x in enumerate(rd): slots[min(nm-1, (k*(nm-5))//len(rd))].append(x)
            last_pos = -9
            for k, g in enumerate(dm):
                pos = min(nm-1, 1 + (k*(nm-3))//max(len(dm), 1))
                assert pos - last_pos >= 2, (role, s, k, len(dm)); last_pos = pos
                if g[0].startswith("s_add_u32 m0") or g[0].startswith("s_mul_i32"):
                    n0 = 2 if g[0].startswith("s_mul_i32") else 1
                    slots[pos-1].extend(g[:n0]); slots[pos] = g[n0:] + slots[pos]
                else: slots[pos].extend(g)
            if GS0 <= s < GS1:
                per = -(-len(gcomp)//(GS1 - GS0)); part = gcomp[(s-GS0)*per:(s-GS0+1)*per]
                if s == GS0: slots[0].append(f"s_waitcnt vmcnt({gate_wait})")
                for k, x in enumerate(part): slots[min(nm-1, 1 + (k*(nm-2))//len(part))].append(x)
            if not att and s == 29: assert vm.need([("W", 31, 3)]) == 0
            if not att and s == 30:
                slots[0] += [f"s_cmp_eq_u32 s{sWQ}, 0", f"s_cselect_b32 s{t0}, s{sNJ}, 0", f"s_cmp_ge_u32 s{t0}, 16", f"s_cbranch_scc0 L_{name}_noc1",
                             f"s_mov_b32 s{ST}, s{pDBG}", f"s_mov_b32 s{ST+1}, s{pDBG+1}", f"s_mov_b32 s{ST+2}, 256", f"s_mov_b32 s{ST+3}, {hex(SRD3)}",
                             f"s_lshl_b32 s{t1}, s{sMI}, 5", f"v_mov_b32 v{vA}, 0", f"v_mov_b32 v{vB_}, 1",
                             f"s_mov_b64 s[{t2}:{t3}], exec", "s_mov_b64 exec, 1",
                             f"buffer_atomic_add v{vB_}, v{vA}, s[{ST}:{ST+3}], s{t1} offen sc1",
                             f"s_mov_b64 exec, s[{t2}:{t3}]", f"L_{name}_noc1:"]
            if s == GS1:
                vm.issue("gst"); slots[2].append(gstore)
            seq = []
            for k in range(nm):
                seq.append(m[k]); seq += slots[k]
            need = []
            if s + 2 < NS:
                if att: need = [("A", (s+2) >> 1, e) for e in range(8)]
                else: need = [("W", s+2, j) for j in range(4)]
            if s + 1 < NS:
                w = f"s_waitcnt lgkmcnt(0)" if not need else f"s_waitcnt vmcnt({vm.need(need)}) lgkmcnt(0)"
                seq.append(w); seq.append("s_barrier")
            steps.append(seq)
        n_iter = 24 // U
        for s in range(L0):
            for l in steps[s]: a(l)
        fold_loop(a, steps, L0, n_iter, U, f"L_{name}_loop{role}", sIT)
        for s in range(L0 + n_iter*U, NS):
            for l in steps[s]: a(l)
    a.label(f"L_{name}_amain")
    main_loop("A")
    P.stamp(2)
    epilogue_att(a, locals())
    a(f"s_branch L_{name}_fin")
    a.label(f"L_{name}_gmain")
    main_loop("G")
    P.stamp(2)
    epilogue_gmlp(a, locals())
    a.label(f"L_{name}_fin")
    if prof: a("s_waitcnt vmcnt(0)")
    P.stamp(5)
    P.dump(vLane, sW)
    if wsp_epi:
        srd(a, ST, pWSP, 0, 2048*4096)
        a(f"s_lshl_b32 s{t0}, s{sMI}, 4"); a(f"s_add_u32 s{t0}, s{t0}, s{sNJ}"); a(f"s_lshl_b32 s{t0}, s{t0}, 16")
        a(f"s_lshl_b32 s{t1}, s{sW}, 13"); a(f"s_add_u32 s{t0}, s{t0}, s{t1}")
        a(f"s_cmp_lt_u32 s{sNJ}, 16"); a(f"s_cselect_b32 s{t0}, s{t0}, {hex(OOB)}")
        a(f"v_lshlrev_b32 v{vA}, 7, v{vLane}")
        a(f"buffer_load_dword v{vDum}, v{vA}, s[{ST}:{ST+3}], s{t0} offen")
    a.label(f"L_{name}_end")
    a("s_endpgm")
    return kernel_text(name, a, nv=256, ns=102, ao=256), S1_LDS

from s1_epi import epilogue_att, epilogue_gmlp
```

```python
from asmlib import *
from common import *
import struct
LOG2E = 1.4426950408889634
SPIN_MAX = 400000
def f2h(x): return hex(struct.unpack("<I", struct.pack("<f", x))[0])

def allreduce4(a, op, vals, tmp):
    for v, t in zip(vals, tmp): a(f"v_mov_b32 v{t}, v{v}")
    for v, t in zip(vals, tmp): a(f"v_permlane16_swap_b32 v{v}, v{t}")
    for v, t in zip(vals, tmp): a(f"{op} v{v}, v{v}, v{t}")
    for v, t in zip(vals, tmp): a(f"v_mov_b32 v{t}, v{v}")
    for v, t in zip(vals, tmp): a(f"v_permlane32_swap_b32 v{v}, v{t}")
    for v, t in zip(vals, tmp): a(f"{op} v{v}, v{v}, v{t}")

def softmax_pm(a, L, E, tmp, sC):
    mx, mn, t0, t1 = tmp, tmp+1, tmp+2, tmp+3
    a(f"v_max3_f32 v{mx}, v{L}, v{L+1}, v{L+2}"); a(f"v_min3_f32 v{mn}, v{L}, v{L+1}, v{L+2}")
    a(f"v_max3_f32 v{mx}, v{mx}, v{L+3}, v{L+4}"); a(f"v_min3_f32 v{mn}, v{mn}, v{L+3}, v{L+4}")
    a(f"v_max3_f32 v{mx}, v{mx}, v{L+5}, v{L+6}"); a(f"v_min3_f32 v{mn}, v{mn}, v{L+5}, v{L+6}")
    a(f"v_max_f32 v{mx}, v{mx}, v{L+7}"); a(f"v_min_f32 v{mn}, v{mn}, v{L+7}")
    a(f"v_sub_f32 v{mn}, 0, v{mn}")
    allreduce4(a, "v_max_f32", [mx, mn], [t0, t1])
    Bp, Bm, Cp, Cm = tmp + 4, tmp + 6, tmp + 8, tmp + 10
    a(f"v_mul_f32 v{Bp}, {f2h(-LOG2E)}, v{mx}"); a(f"v_mul_f32 v{Bp+1}, {f2h(-LOG2E)}, v{mx}")
    a(f"v_mul_f32 v{Bm}, {f2h(-LOG2E)}, v{mn}"); a(f"v_mul_f32 v{Bm+1}, {f2h(-LOG2E)}, v{mn}")
    a(f"v_mov_b32 v{Cp}, {f2h(LOG2E)}"); a(f"v_mov_b32 v{Cp+1}, {f2h(LOG2E)}"); a(f"v_mov_b32 v{Cm}, {f2h(-LOG2E)}"); a(f"v_mov_b32 v{Cm+1}, {f2h(-LOG2E)}")
    Pp = tmp + 12
    Pm = tmp + 20
    for i in range(0, 8, 2):
        a(f"v_pk_fma_f32 v[{Pp+i}:{Pp+i+1}], v[{L+i}:{L+i+1}], v[{Cp}:{Cp+1}], v[{Bp}:{Bp+1}]")
        a(f"v_pk_fma_f32 v[{Pm+i}:{Pm+i+1}], v[{L+i}:{L+i+1}], v[{Cm}:{Cm+1}], v[{Bm}:{Bm+1}]")
    for i in range(8):
        a(f"v_exp_f32 v{Pp+i}, v{Pp+i}"); a(f"v_exp_f32 v{Pm+i}, v{Pm+i}")
    a(f"v_pk_add_f32 v[{L}:{L+1}], v[{Pp}:{Pp+1}], v[{Pp+2}:{Pp+3}]"); a(f"v_pk_add_f32 v[{L+2}:{L+3}], v[{Pm}:{Pm+1}], v[{Pm+2}:{Pm+3}]")
    a(f"v_pk_add_f32 v[{L+4}:{L+5}], v[{Pp+4}:{Pp+5}], v[{Pp+6}:{Pp+7}]"); a(f"v_pk_add_f32 v[{L+6}:{L+7}], v[{Pm+4}:{Pm+5}], v[{Pm+6}:{Pm+7}]")
    a(f"v_pk_add_f32 v[{L}:{L+1}], v[{L}:{L+1}], v[{L+4}:{L+5}]"); a(f"v_pk_add_f32 v[{L+2}:{L+3}], v[{L+2}:{L+3}], v[{L+6}:{L+7}]")
    a(f"v_add_f32 v{mx}, v{L}, v{L+1}"); a(f"v_add_f32 v{mn}, v{L+2}, v{L+3}")
    allreduce4(a, "v_add_f32", [mx, mn], [t0, t1])
    a(f"v_rcp_f32 v{Bp}, v{mx}"); a(f"v_rcp_f32 v{Bm}, v{mn}")
    a(f"v_mov_b32 v{Bp+1}, v{Bp}"); a(f"v_mov_b32 v{Bm+1}, v{Bm}")
    for i in range(0, 8, 2):
        a(f"v_pk_mul_f32 v[{Pp+i}:{Pp+i+1}], v[{Pp+i}:{Pp+i+1}], v[{Bp}:{Bp+1}]")
        a(f"v_pk_mul_f32 v[{Pm+i}:{Pm+i+1}], v[{Pm+i}:{Pm+i+1}], v[{Bm}:{Bm+1}]")
    for i in range(4):
        a(f"v_cvt_pk_bf16_f32 v{E+i}, v{Pp+2*i}, v{Pp+2*i+1}")
        a(f"v_cvt_pk_bf16_f32 v{E+4+i}, v{Pm+2*i}, v{Pm+2*i+1}")

def softmax_exp(a, L, E, tmp):
    mx, mn, t0, t1 = tmp, tmp+1, tmp+2, tmp+3
    a(f"v_max3_f32 v{mx}, v{L}, v{L+1}, v{L+2}"); a(f"v_min3_f32 v{mn}, v{L}, v{L+1}, v{L+2}")
    a(f"v_max3_f32 v{mx}, v{mx}, v{L+3}, v{L+4}"); a(f"v_min3_f32 v{mn}, v{mn}, v{L+3}, v{L+4}")
    a(f"v_max3_f32 v{mx}, v{mx}, v{L+5}, v{L+6}"); a(f"v_min3_f32 v{mn}, v{mn}, v{L+5}, v{L+6}")
    a(f"v_max_f32 v{mx}, v{mx}, v{L+7}"); a(f"v_min_f32 v{mn}, v{mn}, v{L+7}")
    a(f"v_sub_f32 v{mn}, 0, v{mn}")
    allreduce4(a, "v_max_f32", [mx, mn], [t0, t1])
    Bp, Bm, Cp, Cm = tmp + 4, tmp + 6, tmp + 8, tmp + 10
    a(f"v_mul_f32 v{Bp}, {f2h(-LOG2E)}, v{mx}"); a(f"v_mul_f32 v{Bp+1}, {f2h(-LOG2E)}, v{mx}")
    a(f"v_mul_f32 v{Bm}, {f2h(-LOG2E)}, v{mn}"); a(f"v_mul_f32 v{Bm+1}, {f2h(-LOG2E)}, v{mn}")
    a(f"v_mov_b32 v{Cp}, {f2h(LOG2E)}"); a(f"v_mov_b32 v{Cp+1}, {f2h(LOG2E)}"); a(f"v_mov_b32 v{Cm}, {f2h(-LOG2E)}"); a(f"v_mov_b32 v{Cm+1}, {f2h(-LOG2E)}")
    Pp, Pm = tmp + 12, tmp + 20
    for i in range(0, 8, 2):
        a(f"v_pk_fma_f32 v[{Pp+i}:{Pp+i+1}], v[{L+i}:{L+i+1}], v[{Cp}:{Cp+1}], v[{Bp}:{Bp+1}]")
        a(f"v_pk_fma_f32 v[{Pm+i}:{Pm+i+1}], v[{L+i}:{L+i+1}], v[{Cm}:{Cm+1}], v[{Bm}:{Bm+1}]")
    for i in range(8):
        a(f"v_exp_f32 v{Pp+i}, v{Pp+i}"); a(f"v_exp_f32 v{Pm+i}, v{Pm+i}")
    for i in range(4):
        a(f"v_cvt_pk_bf16_f32 v{E+i}, v{Pp+2*i}, v{Pp+2*i+1}")
        a(f"v_cvt_pk_bf16_f32 v{E+4+i}, v{Pm+2*i}, v{Pm+2*i+1}")

def pack8(a, dst, lo, hi):
    a(f"v_cvt_pk_bf16_f32 v{dst}, v{lo}, v{lo+1}"); a(f"v_cvt_pk_bf16_f32 v{dst+1}, v{lo+2}, v{lo+3}")
    a(f"v_cvt_pk_bf16_f32 v{dst+2}, v{hi}, v{hi+1}"); a(f"v_cvt_pk_bf16_f32 v{dst+3}, v{hi+2}, v{hi+3}")

def epilogue_att(a, E):
    g = lambda k: E[k]
    g("P").stamp(3); g("P").stamp(4)
    name, st = g("name"), g("st")
    vLane, vA, vB_, vC, vD = g("vLane"), g("vA"), g("vB_"), g("vC"), g("vD")
    sWQ, sMI, sNJ, t0, t1, t2, t3, SWS, sC = g("sWQ"), g("sMI"), g("sNJ"), g("t0"), g("t1"), g("t2"), g("t3"), g("SWS"), g("sC")
    ACC = g("ACC_A"); vRLd = g("vRLd"); sH = g("sH")
    from s1 import WPHI, PHI_SCR, KV_SCR, MISC
    acc = lambda i, tb: ACC + (i*4+tb)*4
    WP = 32
    a(f"v_lshrrev_b32 v{vA}, 2, v{vLane}"); a(f"v_lshlrev_b32 v{vA}, 6, v{vA}")
    a(f"v_and_b32 v{vB_}, 3, v{vLane}"); a(f"v_lshlrev_b32 v{vB_}, 3, v{vB_}"); a(f"v_add_u32 v{vA}, v{vA}, v{vB_}")
    a(f"v_add_u32 v{vA}, {WPHI}, v{vA}")
    for fb in range(2):
        for sec in range(2):
            r = WP + 4*fb + 2*sec
            a(f"ds_read_b64_tr_b16 v[{r}:{r+1}], v{vA} offset:{sec*1024 + fb*32}")
    a(f"s_lshl_b32 s{t0}, s{g('sHq')}, 7"); a(f"s_lshl_b32 s{t1}, s{sMI}, 4"); a(f"s_add_u32 s{t0}, s{t0}, s{t1}")
    a(f"s_lshl_b32 s{t1}, s{sWQ}, 2"); a(f"s_add_u32 s{t0}, s{t0}, s{t1}"); a(f"s_lshl_b32 s{t0}, s{t0}, 10"); a(f"s_add_u32 s{t0}, s{t0}, {QBUF_OFF}")
    QF = 40
    for tb in range(4):
        pack8(a, QF+4*tb, acc(0, tb), acc(1, tb))
        a(f"buffer_store_dwordx4 v[{QF+4*tb}:{QF+4*tb+3}], v{vRLd}, s[{SWS}:{SWS+3}], s{t0} offen offset:{tb*1024} {st}")
    KF = 56
    for tb in range(4): pack8(a, KF+4*tb, acc(2, tb), acc(3, tb))
    a("s_waitcnt lgkmcnt(0)")
    LG = acc(0, 0)
    for tb in range(4):
        for fb in range(2):
            d = LG + tb*8 + fb*4
            a(f"v_mfma_f32_16x16x32_bf16 v[{d}:{d+3}], v[{WP+4*fb}:{WP+4*fb+3}], v[{KF+4*tb}:{KF+4*tb+3}], 0")
    VF = 72
    for Pp in range(2):
        for db in range(2):
            pack8(a, VF + (Pp*2+db)*4, acc(4+db, 2*Pp), acc(4+db, 2*Pp+1))
    vPW, vPR = 88, 89
    a(f"v_and_b32 v{vA}, 15, v{vLane}"); a(f"v_lshlrev_b32 v{vA}, 5, v{vA}"); a(f"v_lshrrev_b32 v{vB_}, 4, v{vLane}"); a(f"v_lshlrev_b32 v{vB_}, 3, v{vB_}")
    a(f"v_add_u32 v{vPW}, v{vA}, v{vB_}"); a(f"s_lshl_b32 s{t0}, s{sWQ}, 13"); a(f"s_add_u32 s{t0}, s{t0}, {PHI_SCR}"); a(f"v_add_u32 v{vPW}, s{t0}, v{vPW}")
    a(f"v_lshrrev_b32 v{vA}, 2, v{vLane}"); a(f"v_lshlrev_b32 v{vA}, 5, v{vA}"); a(f"v_and_b32 v{vB_}, 3, v{vLane}"); a(f"v_lshlrev_b32 v{vB_}, 3, v{vB_}")
    a(f"v_add_u32 v{vPR}, v{vA}, v{vB_}"); a(f"v_add_u32 v{vPR}, s{t0}, v{vPR}")
    PH = 90
    TMP = acc(2, 0)
    for tb in range(4):
        softmax_pm(a, LG + tb*8, PH, TMP, sC)
        for sg in range(2):
            for fb in range(2):
                r = PH + 4*sg + 2*fb
                a(f"ds_write_b64 v{vPW}, v[{r}:{r+1}] offset:{(2*sg+fb)*2048 + tb*512}")
    a("s_waitcnt lgkmcnt(0)")
    PF = acc(0, 0)
    for Pp in range(2):
        for sg in range(2):
            for fb in range(2):
                r = PF + ((Pp*2+sg)*2+fb)*4
                for sec in range(2):
                    a(f"ds_read_b64_tr_b16 v[{r+2*sec}:{r+2*sec+1}], v{vPR} offset:{(2*sg+fb)*2048 + (2*Pp+sec)*512}")
    ONE = 98
    for i in range(4): a(f"v_mov_b32 v{ONE+i}, 0x3f803f80")
    KV = acc(2, 0)
    a("s_waitcnt lgkmcnt(0)")
    for Pp in range(2):
        for sg in range(2):
            for fb in range(2):
                pf = PF + ((Pp*2+sg)*2+fb)*4
                for db in range(3):
                    d = KV + ((sg*2+fb)*3+db)*4
                    b = (VF + (Pp*2+db)*4) if db < 2 else ONE
                    cin = "0" if Pp == 0 else f"v[{d}:{d+3}]"
                    a(f"v_mfma_f32_16x16x32_bf16 v[{d}:{d+3}], v[{pf}:{pf+3}], v[{b}:{b+3}], {cin}")
    a(f"s_mul_i32 s{t0}, s{sWQ}, 12288"); a(f"s_add_u32 s{t0}, s{t0}, {KV_SCR}")
    a(f"v_add_u32 v{vA}, s{t0}, v{vRLd}")
    for b in range(12):
        a(f"ds_write_b128 v{vA}, v[{KV+4*b}:{KV+4*b+3}] offset:{b*1024}")
    a("s_waitcnt lgkmcnt(0)")
    a(f"v_mov_b32 v{vB_}, {MISC}"); a(f"v_mov_b32 v{vC}, 1")
    a(f"s_mov_b64 s[{t2}:{t3}], exec"); a("s_mov_b64 exec, 1")
    a(f"ds_add_u32 v{vB_}, v{vC}")
    a(f"s_mov_b64 exec, s[{t2}:{t3}]")
    a(f"s_mov_b32 s{t1}, 0")
    a.label(f"L_{name}_kvspin")
    a(f"ds_read_b32 v{vC}, v{vB_}")
    a("s_waitcnt lgkmcnt(0)")
    a(f"v_readfirstlane_b32 s{t0}, v{vC}")
    a(f"s_add_u32 s{t1}, s{t1}, 1")
    a(f"s_cmp_ge_u32 s{t1}, {SPIN_MAX}")
    a(f"s_cbranch_scc1 L_{name}_kvgo")
    a(f"s_cmp_lt_u32 s{t0}, 4")
    a(f"s_cbranch_scc1 L_{name}_kvspin")
    a.label(f"L_{name}_kvgo")
    a(f"s_mul_i32 s{t0}, s{sWQ}, 3072"); a(f"s_add_u32 s{t0}, s{t0}, {KV_SCR}")
    a(f"v_add_u32 v{vA}, s{t0}, v{vRLd}")
    R = 32
    for w in range(4):
        for b in range(3):
            r = R + (w*3+b)*4
            a(f"ds_read_b128 v[{r}:{r+3}], v{vA} offset:{w*12288 + b*1024}")
    a("s_waitcnt lgkmcnt(0)")
    for b in range(3):
        for hlf in range(2):
            r = R + b*4 + 2*hlf
            a(f"v_pk_add_f32 v[{r}:{r+1}], v[{r}:{r+1}], v[{r+12}:{r+13}]")
            a(f"v_pk_add_f32 v[{r+24}:{r+25}], v[{r+24}:{r+25}], v[{r+36}:{r+37}]")
            a(f"v_pk_add_f32 v[{r}:{r+1}], v[{r}:{r+1}], v[{r+24}:{r+25}]")
    a(f"s_lshl_b32 s{t0}, s{sMI}, 5"); a(f"s_add_u32 s{t0}, s{t0}, s{sH}"); a(f"s_mul_i32 s{t0}, s{t0}, 12288")
    a(f"s_mul_i32 s{t1}, s{sWQ}, 3072"); a(f"s_add_u32 s{t0}, s{t0}, s{t1}"); a(f"s_add_u32 s{t0}, s{t0}, {KVP_OFF}")
    for b in range(3):
        a(f"buffer_store_dwordx4 v[{R+4*b}:{R+4*b+3}], v{vRLd}, s[{SWS}:{SWS+3}], s{t0} offen offset:{b*1024} {st}")

def epilogue_gmlp(a, E):
    g = lambda k: E[k]
    name, st, P = g("name"), g("st"), g("P")
    vLane, vA, vB_, vC, vD = g("vLane"), g("vA"), g("vB_"), g("vC"), g("vD")
    sWQ, sMI, sNJ, t0, t1, t2, t3, SWS, sC, pDBG, ST = g("sWQ"), g("sMI"), g("sNJ"), g("t0"), g("t1"), g("t2"), g("t3"), g("SWS"), g("sC"), g("pDBG"), g("ST")
    ACC = g("ACC_G"); vRLd = g("vRLd"); sIT = g("sIT")
    from s1 import MISC
    acc = lambda i, tb: ACC + (i*4+tb)*4
    if g("prio"):
        a(f"s_cmp_lt_u32 s{sNJ}, 16"); a(f"s_cbranch_scc1 L_{name}_noprio"); a("s_setprio 2"); a.label(f"L_{name}_noprio")
    vZ, vC1 = 24, 28
    srd(a, ST, pDBG, 0, 256)
    a(f"v_mov_b32 v{vZ}, 0"); a(f"s_lshl_b32 s{t1}, s{sMI}, 5")
    a(f"buffer_load_dword v{vC1}, v{vZ}, s[{ST}:{ST+3}], s{t1} offen sc1")
    if g("defer_gelu"):
        a(f"s_cmp_lt_u32 s{sNJ}, 16"); a(f"s_cbranch_scc1 L_{name}_gstore")
    c1 = -2.0*0.7978845608028654*LOG2E; c3 = c1*0.044715
    CP = 44
    a(f"v_mov_b32 v{CP}, {f2h(c3)}"); a(f"v_mov_b32 v{CP+1}, {f2h(c3)}"); a(f"v_mov_b32 v{CP+2}, {f2h(c1)}"); a(f"v_mov_b32 v{CP+3}, {f2h(c1)}")
    TM = 34
    pairs = [ACC + 2*i for i in range(56)]
    for k in range(0, 56, 4):
        ps = pairs[k:k+4]; ts = [TM + 2*i for i in range(4)]
        for p, t in zip(ps, ts): a(f"v_pk_mul_f32 v[{t}:{t+1}], v[{p}:{p+1}], v[{p}:{p+1}]")
        for p, t in zip(ps, ts): a(f"v_pk_fma_f32 v[{t}:{t+1}], v[{t}:{t+1}], v[{CP}:{CP+1}], v[{CP+2}:{CP+3}]")
        for p, t in zip(ps, ts): a(f"v_pk_mul_f32 v[{t}:{t+1}], v[{t}:{t+1}], v[{p}:{p+1}]")
        for p, t in zip(ps, ts): a(f"v_exp_f32 v{t}, v{t}"); a(f"v_exp_f32 v{t+1}, v{t+1}")
        for p, t in zip(ps, ts): a(f"v_pk_add_f32 v[{t}:{t+1}], v[{t}:{t+1}], s[{sC}:{sC+1}]")
        for p, t in zip(ps, ts): a(f"v_rcp_f32 v{t}, v{t}"); a(f"v_rcp_f32 v{t+1}, v{t+1}")
        for p, t in zip(ps, ts): a(f"v_pk_mul_f32 v[{p}:{p+1}], v[{p}:{p+1}], v[{t}:{t+1}]")
    P.stamp(3); P.stamp(4)
    a(f"s_cmp_lt_u32 s{sNJ}, 16")
    a(f"s_cbranch_scc1 L_{name}_gstore")
    S = 34; Q = 42
    for tb in range(4):
        x = acc(0, tb)
        a(f"v_pk_add_f32 v[{S+2*tb}:{S+2*tb+1}], v[{x}:{x+1}], v[{x+2}:{x+3}]")
        a(f"v_pk_mul_f32 v[{Q+2*tb}:{Q+2*tb+1}], v[{x}:{x+1}], v[{x}:{x+1}]")
    for i in range(7):
        for hlf in range(2):
            if i == 0 and hlf == 0: continue
            for tb in range(4):
                x = acc(i, tb) + 2*hlf
                if not (i == 0): a(f"v_pk_add_f32 v[{S+2*tb}:{S+2*tb+1}], v[{S+2*tb}:{S+2*tb+1}], v[{x}:{x+1}]")
                a(f"v_pk_fma_f32 v[{Q+2*tb}:{Q+2*tb+1}], v[{x}:{x+1}], v[{x}:{x+1}], v[{Q+2*tb}:{Q+2*tb+1}]")
    for tb in range(4):
        a(f"v_add_f32 v{S+2*tb}, v{S+2*tb}, v{S+2*tb+1}"); a(f"v_add_f32 v{Q+2*tb}, v{Q+2*tb}, v{Q+2*tb+1}")
    for B in (S, Q):
        a(f"v_permlane16_swap_b32 v{B}, v{B+2}"); a(f"v_permlane16_swap_b32 v{B+4}, v{B+6}")
        a(f"v_add_f32 v{B}, v{B}, v{B+2}"); a(f"v_add_f32 v{B+4}, v{B+4}, v{B+6}")
        a(f"v_permlane32_swap_b32 v{B}, v{B+4}")
        a(f"v_add_f32 v{B}, v{B}, v{B+4}")
    a(f"v_mov_b32 v{S+1}, v{Q}")
    sSt = g("sSt")
    a(f"v_lshlrev_b32 v{vD}, 3, v{vLane}")
    a("s_waitcnt vmcnt(0)")
    a(f"buffer_store_dwordx2 v[{S}:{S+1}], v{vD}, s[{SWS}:{SWS+3}], s{sSt} offen sc1")
    a("s_setprio 0") if g("prio") else None
    P.stamp(3)
    a(f"s_mov_b32 s{sIT}, 0")
    a(f"s_lshl_b32 s{t1}, s{sMI}, 5")
    a.label(f"L_{name}_c1chk")
    a(f"v_readfirstlane_b32 s{t0}, v{vC1}")
    a(f"s_add_u32 s{sIT}, s{sIT}, 1")
    a(f"s_cmp_ge_u32 s{sIT}, {SPIN_MAX}")
    a(f"s_cbranch_scc1 L_{name}_c1ok")
    a(f"s_cmp_ge_u32 s{t0}, 16")
    a(f"s_cbranch_scc1 L_{name}_c1ok")
    a("s_sleep 2")
    a(f"buffer_load_dword v{vC1}, v{vZ}, s[{ST}:{ST+3}], s{t1} offen sc1")
    a("s_waitcnt vmcnt(0)")
    a(f"s_branch L_{name}_c1chk")
    a.label(f"L_{name}_c1ok")
    if g("selective"):
        Gt = 34
        sMk = g("sTinc")
        a(f"s_lshl_b32 s{t0}, s{sMI}, 15"); a(f"s_lshl_b32 s{t1}, s{sWQ}, 9"); a(f"s_add_u32 s{t0}, s{t0}, s{t1}"); a(f"s_add_u32 s{t1}, s{t0}, {STAT_OFF}")
        a(f"v_lshlrev_b32 v{vD}, 3, v{vLane}")
        a(f"s_mov_b32 s{sMk}, 0xffff"); a(f"s_mov_b32 s{sIT}, 0")
        a.label(f"L_{name}_lnround")
        for j in range(16):
            a(f"s_bitcmp1_b32 s{sMk}, {j}"); a(f"s_cbranch_scc0 L_{name}_lnl{j}")
            a(f"s_add_u32 s{t0}, s{t1}, {2048*j}")
            a(f"buffer_load_dwordx2 v[{Gt+2*j}:{Gt+2*j+1}], v{vD}, s[{SWS}:{SWS+3}], s{t0} offen sc1")
            a.label(f"L_{name}_lnl{j}")
        a("s_waitcnt vmcnt(0)")
        P.stamp(4)
        q = lambda j: Gt + 2*j + 1
        a(f"v_min3_f32 v{vA}, v{q(0)}, v{q(1)}, v{q(2)}")
        for j in range(3, 15, 2): a(f"v_min3_f32 v{vA}, v{vA}, v{q(j)}, v{q(j+1)}")
        a(f"v_min_f32 v{vA}, v{vA}, v{q(15)}")
        a(f"v_cmp_gt_f32 vcc, 0, v{vA}")
        a(f"s_add_u32 s{sIT}, s{sIT}, 1")
        a(f"s_cmp_ge_u32 s{sIT}, {SPIN_MAX}")
        a(f"s_cbranch_scc1 L_{name}_lngo")
        a(f"s_cmp_eq_u64 vcc, 0")
        a(f"s_cbranch_scc1 L_{name}_lngo")
        a("s_setprio 0") if g("prio") else None
        a(f"s_mov_b32 s{sMk}, 0")
        for j in range(16):
            a(f"v_cmp_gt_f32 vcc, 0, v{q(j)}"); a(f"s_cmp_lg_u64 vcc, 0"); a(f"s_cselect_b32 s{t0}, {1 << j}, 0"); a(f"s_or_b32 s{sMk}, s{sMk}, s{t0}")
        a(f"s_branch L_{name}_lnround")
        a.label(f"L_{name}_lngo")
        a("s_setprio 2") if g("prio") else None
    else:
        a(f"s_lshl_b32 s{t0}, s{sMI}, 15"); a(f"s_lshl_b32 s{t1}, s{sWQ}, 9"); a(f"s_add_u32 s{t0}, s{t0}, s{t1}"); a(f"s_add_u32 s{t1}, s{t0}, {STAT_OFF}")
        a(f"v_and_b32 v{vZ+1}, 15, v{vLane}"); a(f"v_lshlrev_b32 v{vZ+1}, 11, v{vZ+1}")
        a(f"s_mov_b32 s{sIT}, 0")
        if g("first_gather"): a(f"s_branch L_{name}_lnok")
        a.label(f"L_{name}_lnpoll")
        a(f"buffer_load_dwordx2 v[{vZ+2}:{vZ+3}], v{vZ+1}, s[{SWS}:{SWS+3}], s{t1} offen sc1")
        a("s_waitcnt vmcnt(0)")
        a(f"v_cmp_gt_f32 vcc, 0, v{vZ+3}")
        a(f"s_add_u32 s{sIT}, s{sIT}, 1")
        a(f"s_cmp_ge_u32 s{sIT}, {SPIN_MAX}")
        a(f"s_cbranch_scc1 L_{name}_lnok")
        a(f"s_cmp_eq_u64 vcc, 0")
        a(f"s_cbranch_scc1 L_{name}_lnok")
        a("s_sleep 1")
        a(f"s_branch L_{name}_lnpoll")
        a.label(f"L_{name}_lnok")
        a("s_setprio 2") if g("prio") else None
        P.stamp(4)
        Gt = 34
        a(f"v_lshlrev_b32 v{vD}, 3, v{vLane}")
        a.label(f"L_{name}_lngather")
        a(f"s_mov_b32 s{t0}, s{t1}")
        for j in range(16):
            a(f"buffer_load_dwordx2 v[{Gt+2*j}:{Gt+2*j+1}], v{vD}, s[{SWS}:{SWS+3}], s{t0} offen sc1")
            a(f"s_add_u32 s{t0}, s{t0}, 2048")
        a("s_waitcnt vmcnt(0)")
        q = lambda j: Gt + 2*j + 1
        a(f"v_min3_f32 v{vA}, v{q(0)}, v{q(1)}, v{q(2)}")
        for j in range(3, 15, 2): a(f"v_min3_f32 v{vA}, v{vA}, v{q(j)}, v{q(j+1)}")
        a(f"v_min_f32 v{vA}, v{vA}, v{q(15)}")
        a(f"v_cmp_gt_f32 vcc, 0, v{vA}")
        a(f"s_add_u32 s{sIT}, s{sIT}, 1")
        a(f"s_cmp_ge_u32 s{sIT}, {SPIN_MAX}")
        a(f"s_cbranch_scc1 L_{name}_lngo")
        a(f"s_cmp_eq_u64 vcc, 0")
        a(f"s_cbranch_scc0 L_{name}_lnpoll")
        a.label(f"L_{name}_lngo")
    for hlf in (8, 4, 2, 1):
        for j in range(hlf):
            a(f"v_pk_add_f32 v[{Gt+2*j}:{Gt+2*j+1}], v[{Gt+2*j}:{Gt+2*j+1}], v[{Gt+2*(j+hlf)}:{Gt+2*(j+hlf)+1}]")
    M = Gt + 2
    a(f"v_mul_f32 v{Gt}, {f2h(1.0/1792)}, v{Gt}")
    a(f"v_mul_f32 v{Gt+1}, {f2h(1.0/1792)}, v{Gt+1}")
    a(f"v_fma_f32 v{M}, -v{Gt}, v{Gt}, v{Gt+1}")
    a(f"v_max_f32 v{M}, 0, v{M}")
    a(f"v_add_f32 v{M}, {f2h(1e-5)}, v{M}")
    a(f"v_rsq_f32 v{M}, v{M}")
    a(f"v_mul_f32 v{M+1}, v{Gt}, v{M}"); a(f"v_sub_f32 v{M+1}, 0, v{M+1}")
    N = 40
    norm = g("norm")
    a(f"v_and_b32 v{vA}, 15, v{vLane}"); a(f"v_lshlrev_b32 v{vA}, 2, v{vA}")
    for tb in range(4):
        a(f"v_add_u32 v{vB_}, {64*tb}, v{vA}")
        a(f"ds_bpermute_b32 v{N+2*tb}, v{vB_}, v{M}"); a(f"ds_bpermute_b32 v{N+2*tb+1}, v{vB_}, v{M+1}")
    a("s_waitcnt lgkmcnt(0)")
    if norm == "pair":
        N2 = 48
        for tb in range(4):
            a(f"v_mov_b32 v{N2+4*tb}, v{N+2*tb}"); a(f"v_mov_b32 v{N2+4*tb+1}, v{N+2*tb}")
            a(f"v_mov_b32 v{N2+4*tb+2}, v{N+2*tb+1}"); a(f"v_mov_b32 v{N2+4*tb+3}, v{N+2*tb+1}")
    def norm_ops(i, tb):
        for hlf in range(2):
            x = acc(i, tb) + 2*hlf
            if norm == "pair":
                a(f"v_pk_fma_f32 v[{x}:{x+1}], v[{x}:{x+1}], v[{N2+4*tb}:{N2+4*tb+1}], v[{N2+4*tb+2}:{N2+4*tb+3}]")
            else:
                a(f"v_fma_f32 v{x}, v{x}, v{N+2*tb}, v{N+2*tb+1}"); a(f"v_fma_f32 v{x+1}, v{x+1}, v{N+2*tb}, v{N+2*tb+1}")
    a(f"s_lshl_b32 s{t0}, s{sMI}, 3"); a(f"s_lshl_b32 s{t1}, s{sWQ}, 1"); a(f"s_add_u32 s{t0}, s{t0}, s{t1}"); a(f"s_mul_i32 s{t0}, s{t0}, 112")
    a(f"s_and_b32 s{t1}, s{sNJ}, 15"); a(f"s_mul_i32 s{t1}, s{t1}, 7"); a(f"s_add_u32 s{t0}, s{t0}, s{t1}"); a(f"s_lshl_b32 s{t0}, s{t0}, 10")
    a(f"s_add_u32 s{t0}, s{t0}, {Z2_OFF}")
    O2 = 64
    k = 0
    for Pp in range(2):
        for i in range(7):
            r = O2 + 4*(k % 8); k += 1
            norm_ops(i, 2*Pp); norm_ops(i, 2*Pp+1)
            pack8(a, r, acc(i, 2*Pp), acc(i, 2*Pp+1))
            a(f"buffer_store_dwordx4 v[{r}:{r+3}], v{vRLd}, s[{SWS}:{SWS+3}], s{t0} offen offset:{(i % 4)*1024} {st}")
            if i == 3: a(f"s_add_u32 s{t0}, s{t0}, 4096")
            if i == 6: a(f"s_add_u32 s{t0}, s{t0}, {112*1024 - 4096}")
    a(f"s_branch L_{name}_fin")
    P.stamp(3) if False else None
    a.label(f"L_{name}_gstore")
    a(f"s_lshl_b32 s{t0}, s{sMI}, 3"); a(f"s_lshl_b32 s{t1}, s{sWQ}, 1"); a(f"s_add_u32 s{t0}, s{t0}, s{t1}"); a(f"s_mul_i32 s{t0}, s{t0}, 112")
    a(f"s_and_b32 s{t1}, s{sNJ}, 15"); a(f"s_mul_i32 s{t1}, s{t1}, 7"); a(f"s_add_u32 s{t0}, s{t0}, s{t1}"); a(f"s_lshl_b32 s{t0}, s{t0}, 10")
    a(f"s_cmp_lt_u32 s{sNJ}, 16"); a(f"s_cselect_b32 s{t1}, 0, {Z2_OFF - Z1_OFF}"); a(f"s_add_u32 s{t0}, s{t0}, s{t1}"); a(f"s_add_u32 s{t0}, s{t0}, {Z1_OFF}")
    O = 32
    k = 0
    for Pp in range(2):
        for i in range(7):
            r = O + 4*(k % 8); k += 1
            pack8(a, r, acc(i, 2*Pp), acc(i, 2*Pp+1))
            if i % 4 == 0 and i > 0 or (i == 0 and Pp == 1): pass
            a(f"buffer_store_dwordx4 v[{r}:{r+3}], v{vRLd}, s[{SWS}:{SWS+3}], s{t0} offen offset:{(i % 4)*1024} {st}")
            if i == 3: a(f"s_add_u32 s{t0}, s{t0}, 4096")
            if i == 6: a(f"s_add_u32 s{t0}, s{t0}, {112*1024 - 4096}")
```

```python
KA_X, KA_WQKV, KA_WPHI, KA_WO, KA_BX, KA_WIN, KA_WSP, KA_BSP, KA_WOUT, KA_GATE, KA_OUT, KA_DBG, KA_WS = [8*i for i in range(13)]
NKB = 88
ACAT_OFF = 0
ACAT_SZ  = 128 * NKB * 1024
QBUF_OFF = ACAT_OFF + ACAT_SZ
QBUF_SZ  = 32 * 128 * 1024
Z1_OFF   = QBUF_OFF + QBUF_SZ
Z1_SZ    = 64 * 112 * 1024
Z2_OFF   = Z1_OFF + Z1_SZ
Z2_SZ    = 64 * 112 * 1024
KVP_OFF  = Z2_OFF + Z2_SZ
KVP_SZ   = 8 * 32 * 12 * 1024
STAT_OFF = KVP_OFF + KVP_SZ
STAT_SZ  = 8 * 16 * 256 * 8
GATE_OFF = STAT_OFF + STAT_SZ
GATE_SZ  = 2048 * 4
WT_OFF   = GATE_OFF + GATE_SZ
WT_SZ    = 16 * 44 * 8192
XCH_OFF  = WT_OFF + WT_SZ
XCH_SZ   = 256 * 32768
FLG_OFF  = XCH_OFF + XCH_SZ
FLG_SZ   = 256 * 128
WS_USED  = FLG_OFF + FLG_SZ
SRD3 = 0x00020000

def srd(a, base, ptr, off, size):
    if off:
        a(f"s_add_u32 s{base}, s{ptr}, {off}")
        a(f"s_addc_u32 s{base+1}, s{ptr+1}, 0")
    else:
        a(f"s_mov_b32 s{base}, s{ptr}")
        a(f"s_mov_b32 s{base+1}, s{ptr+1}")
    a(f"s_mov_b32 s{base+2}, {size}")
    a(f"s_mov_b32 s{base+3}, {hex(SRD3)}")

class VmTracker:
    def __init__(self): self.ops = []
    def issue(self, tag): self.ops.append(tag)
    def need(self, tags):
        last = -1
        for i, t in enumerate(self.ops):
            if t in tags: last = i
        missing = [t for t in tags if t not in self.ops]
        assert not missing, missing
        return min(63, len(self.ops) - 1 - last)

def fold_loop(a, steps, start, n_iter, U, label, counter):
    import re
    def norm(l): return re.sub(r"vmcnt\(\d+\)", "vmcnt(#)", l)
    body = [list(st) for st in steps[start:start+U]]
    for it in range(1, n_iter):
        other = steps[start+it*U:start+(it+1)*U]
        for u in range(U):
            assert [norm(l) for l in other[u]] == [norm(l) for l in body[u]], f"loop not periodic at iter {it} step {u}"
            for k, l in enumerate(other[u]):
                m = re.search(r"vmcnt\((\d+)\)", l)
                if m:
                    m0 = re.search(r"vmcnt\((\d+)\)", body[u][k])
                    if int(m.group(1)) < int(m0.group(1)): body[u][k] = l
    for it in range(0):
        other = steps[start+it*U:start+(it+1)*U]
        assert other == body, f"loop not periodic at iter {it}"
    a(f"s_mov_b32 s{counter}, 0")
    a(".p2align 6")
    a.label(label)
    for st in body:
        for l in st: a(l.replace("@IT@", f"s{counter}"))
    a(f"s_add_u32 s{counter}, s{counter}, 1")
    a(f"s_cmp_lt_u32 s{counter}, {n_iter}")
    a(f"s_cbranch_scc1 {label}")

class Prof:
    def __init__(self, a, on, base=76, n=6):
        self.a, self.on, self.base, self.k, self.n = a, on, base, 0, n
    def stamp(self, idx=None, mode=None):
        if not self.on: return
        if idx in (3, 4) and (mode or "epi") != getattr(self, "mode", "epi"): return
        if idx is None: idx = self.k
        assert idx < self.n
        a = self.a; b = self.base + 2*idx
        a(f"s_memrealtime s[{b}:{b+1}]")
        if idx in (1, 2): a(f"s_memtime s[{88 + 2*(idx-1)}:{89 + 2*(idx-1)}]")
        self.k = max(self.k, idx + 1)
    def dump(self, vlane, wave_sgpr, waves=8):
        if not self.on: return
        a = self.a
        a("s_waitcnt lgkmcnt(0) vmcnt(0)")
        a(f"s_load_dwordx2 s[96:97], s[0:1], {KA_BX}")
        a("s_waitcnt lgkmcnt(0)")
        a("s_mov_b32 s92, s96"); a("s_mov_b32 s93, s97"); a("s_mov_b32 s94, 0x400000"); a("s_mov_b32 s95, 0x20000")
        a(f"s_lshl_b32 s98, s2, 3"); a(f"s_add_u32 s98, s98, s{wave_sgpr}"); a("s_lshl_b32 s98, s98, 6")
        a("v_mov_b32 v2, 0")
        for k in range(self.n):
            a(f"v_writelane_b32 v2, s{self.base + 2*k}, {k}")
        a(f"v_writelane_b32 v2, s88, 8"); a(f"v_writelane_b32 v2, s90, 9")
        a(f"v_lshlrev_b32 v3, 2, v{vlane}")
        a("v_add_u32 v3, s98, v3")
        a(f"v_cmp_gt_u32 vcc, 16, v{vlane}")
        a("s_and_saveexec_b64 s[96:97], vcc")
        a("buffer_store_dword v2, v3, s[92:95], 0 offen")
        a("s_mov_b64 exec, s[96:97]")

def prof_line(d, T0, ks, sel=None):
    import numpy as np
    x = d if sel is None else sel
    s = ""
    for k in ks:
        v = (x[..., k] - T0)/100
        s += f" t{k} {v.min():.2f}/{np.median(v):.2f}/{v.max():.2f}"
    c = (x[..., 9] - x[..., 8]) & 0xffffffff; rt = x[..., 2] - x[..., 1]
    s += f" | loop {np.median(c):.0f} cyc @{np.median(c)/max(np.median(rt),1)*100:.0f}MHz"
    return s

def show_prof(raw, nstamps, tag=""):
    import numpy as np
    d = raw.reshape(-1, 8, 16)[:256].astype(np.int64)
    rt = d[:, :, 0:2*nstamps:2]; cy = d[:, :, 1:2*nstamps:2]
    t0 = rt[:, :, 0].min()
    s = tag
    for k in range(nstamps):
        s += f" | t{k}: {(rt[:,:,k].min()-t0)/100:.2f}/{np.median(rt[:,:,k]-t0)/100:.2f}/{(rt[:,:,k].max()-t0)/100:.2f}"
    s += " || cyc:"
    for k in range(1, nstamps):
        dc = (cy[:,:,k] - cy[:,:,k-1]) & 0xffffffff; dr = (rt[:,:,k]-rt[:,:,k-1])
        s += f" {np.median(dc):.0f}@{np.median(dc)/max(np.median(dr),1)*100:.0f}MHz"
    print(s)
```

```python
import sys, os
sys.path.insert(0, os.path.dirname(__file__))
import build, s1, s2, s3, s3k
def kernels(prof=False, k1={}, k2={}, k3={}):
    t1, l1 = s1.gen_s1("s1_kernel", prof=prof, **k1)
    k2 = dict(k2); k2.setdefault("defer_gelu", k1.get("defer_gelu", False)); k2.setdefault("flags", bool(k3.get("splitk", False)))
    t2, l2 = s2.gen_s2("s2_kernel", prof=prof, **k2)
    k3 = dict(k3); sk = k3.pop("splitk", False)
    t3, l3, b3 = (s3k.gen_s3k if sk else s3.gen_s3)("s3_kernel", prof=prof, **k3)
    return [("s1_kernel", t1, 256, 512, l1), ("s2_kernel", t2, 256, 512, l2), ("s3_kernel", t3, 256, b3, l3)]
if __name__ == "__main__":
    out = sys.argv[1] if len(sys.argv) > 1 else "cdna_kernels/" + build.NAME + ".s"
    open(out, "w").write(build.build(kernels()))
    print("wrote", out, os.path.getsize(out))
```

```python
from asmlib import *
from common import *
import struct
LOG2E = 1.4426950408889634
def f2h(x): return hex(struct.unpack("<I", struct.pack("<f", x))[0])

A_SLOT = 32768; NA = 3
W_BASE = NA*A_SLOT; W_SLOT = 14336
WPHI   = W_BASE + 4*W_SLOT
DUMMY  = WPHI + 2048
MISC   = DUMMY + 1024
S1_LDS = MISC + 256
PHI_SCR = 0
KV_SCR  = 32768
OOB = 0x40000000

def gen_s1(name="s1_kernel", prof=False, st="sc1", touch=True, relayout=True, wsp=False, wsp_epi=False, wsp_tail=29, PT=4, prio=True, pmode="epi", dedupe=True, burst=False, tfl="", dfl="", rfl="", norm="pair", NW=4, bmode=6, first_gather=True, codewarm=1, wsplit=False, selective=True, early3=False, wsp_aff=1, defer_gelu=False, dpos="spread"):
    a = Asm()
    P = Prof(a, prof); P.mode = pmode
    NS = 32
    U = 12 if NW == 4 else 6
    pX, pQKV, pPHI, pWO = 4, 6, 8, 10
    pWIN, pWSP = 12, 14
    pWOUT, pGATE = 16, 18
    pDBG, pWS = 20, 22
    SX, SD, SD3, SWS = 24, 28, 32, 36
    ST, SRL = 40, 44
    sW, sWQ, sMI, sNJ, sODD = 48, 49, 50, 51, 52
    sKA, sKD, sKD3, sIncD = 53, 54, 55, 56
    sM0, sM0d = 57, 58
    sMs = [59, 60, 61, 62]
    sTo, sTinc = 63, 64
    sRLs, sRLd = 65, 66
    sIT = 67
    t0, t1, t2, t3 = 68, 69, 70, 71
    sC = 72
    sH, sHq = 74, 75
    sSt = 3
    vLane, vA, vB_, vC, vD = 1, 2, 3, 4, 5
    vX = [[6, 7], [8, 9]]
    vDs = [10, 11, 12, 13, 14, 15, 16, 17]
    vW1 = [18, 19]; vW2 = [18, 19]
    vT, vRL, vRLd, vDum = 20, 21, 22, 23
    vRLb = 24
    XF = 32; WF = 64
    ACC_A = 112; ACC_G = 120
    GV = 232

    a("s_cmp_ge_u32 s2, 256")
    a(f"s_cbranch_scc1 L_{name}_end")
    P.stamp(0)
    a(f"s_load_dwordx8 s[4:11], s[0:1], 0")
    a(f"s_load_dwordx4 s[12:15], s[0:1], {KA_WIN}")
    a(f"s_load_dwordx4 s[16:19], s[0:1], {KA_WOUT}")
    a(f"s_load_dwordx4 s[20:23], s[0:1], {KA_DBG}")
    a(f"v_lshrrev_b32 v{vA}, 6, v0")
    a(f"v_and_b32 v{vLane}, 63, v0")
    a(f"v_readfirstlane_b32 s{sW}, v{vA}")
    a(f"s_and_b32 s{t0}, s2, 7")
    a(f"s_lshr_b32 s{t1}, s2, 3")
    a(f"s_and_b32 s{t2}, s{t0}, 1"); a(f"s_lshl_b32 s{t2}, s{t2}, 2"); a(f"s_and_b32 s{t3}, s{t1}, 3")
    a(f"s_add_u32 s{sMI}, s{t2}, s{t3}")
    a(f"s_lshr_b32 s{t1}, s{t1}, 2")
    a(f"s_lshr_b32 s{t0}, s{t0}, 1"); a(f"s_lshl_b32 s{t0}, s{t0}, 2")
    a(f"s_and_b32 s{t2}, s{t1}, 3"); a(f"s_add_u32 s{t0}, s{t0}, s{t2}")
    a(f"s_lshr_b32 s{t2}, s{t1}, 2"); a(f"s_lshl_b32 s{t2}, s{t2}, 4"); a(f"s_add_u32 s{sNJ}, s{t0}, s{t2}")
    a(f"s_and_b32 s{sODD}, s{sNJ}, 1")
    a(f"s_lshr_b32 s{t2}, s{sNJ}, 2"); a(f"s_xor_b32 s{sH}, s{sNJ}, 24")
    a(f"s_cmp_eq_u32 s{t2}, 3"); a(f"s_cselect_b32 s{t3}, s{sH}, s{sNJ}")
    a(f"s_cmp_eq_u32 s{t2}, 5"); a(f"s_cselect_b32 s{sH}, s{sH}, s{t3}")
    a(f"s_xor_b32 s{sHq}, s{sH}, 2"); a(f"s_cmp_lt_u32 s{sNJ}, 16"); a(f"s_cselect_b32 s{sHq}, s{sHq}, s{sH}")
    a(f"s_and_b32 s{sWQ}, s{sW}, 3")
    a(f"v_lshlrev_b32 v{vRLd}, 4, v{vLane}")
    vmA = VmTracker(); vmG = VmTracker()
    a(f"s_cmp_ge_u32 s{sW}, 4")
    a(f"s_cbranch_scc1 L_{name}_gsetup")

    def common_late():
        a(f"s_mov_b32 s{sC}, 1.0"); a(f"s_mov_b32 s{sC+1}, 1.0")
        srd(a, SWS, pWS, 0, WS_USED)
        a(f"v_and_b32 v{vA}, 15, v{vLane}")
        a(f"v_lshrrev_b32 v{vB_}, 1, v{vA}")
        a(f"v_lshrrev_b32 v{vC}, 4, v{vLane}")
        a(f"v_xor_b32 v{vB_}, v{vB_}, v{vC}")
        a(f"v_lshlrev_b32 v{vA}, 7, v{vA}")
        a(f"s_lshl_b32 s{t0}, s{sWQ}, 13")
        a(f"v_add_u32 v{vA}, s{t0}, v{vA}")
        a(f"v_lshlrev_b32 v{vC}, 4, v{vB_}")
        a(f"v_add_u32 v{vX[0][0]}, v{vA}, v{vC}")
        a(f"v_xor_b32 v{vX[0][1]}, 64, v{vX[0][0]}")
        a(f"v_add_u32 v{vX[1][0]}, 65536, v{vX[0][0]}")
        a(f"v_add_u32 v{vX[1][1]}, 65536, v{vX[0][1]}")

    a("s_waitcnt lgkmcnt(0)")
    P.stamp(3, "pro")
    a(f"s_lshr_b32 s{t1}, s2, 3"); a(f"s_and_b32 s{t2}, s{t1}, 3"); a(f"s_lshr_b32 s{t1}, s{t1}, 2")
    a(f"s_cmp_eq_u32 s{sWQ}, 0")
    a(f"s_cbranch_scc0 L_{name}_t1")
    srd(a, ST, pX, 0, 2048*2048)
    a(f"s_lshl_b32 s{t0}, s{sMI}, 8"); a(f"s_lshl_b32 s{t3}, s{t1}, 5"); a(f"s_add_u32 s{t0}, s{t0}, s{t3}")
    a(f"v_add_u32 v{vT}, s{t0}, v{vLane}"); a(f"v_lshlrev_b32 v{vT}, 11, v{vT}")
    a(f"v_cmp_gt_u32 vcc, 32, v{vLane}"); a(f"v_mov_b32 v{vA}, {hex(OOB)}"); a(f"v_cndmask_b32 v{vT}, v{vA}, v{vT}, vcc")
    a(f"s_mov_b32 s{sTinc}, 128")
    a(f"s_branch L_{name}_tdone")
    a.label(f"L_{name}_t1")
    a(f"v_mul_u32_u24 v{vA}, 43, v{vLane}"); a(f"v_lshrrev_b32 v{vA}, 7, v{vA}")
    a(f"v_mul_u32_u24 v{vB_}, 3, v{vA}"); a(f"v_sub_u32 v{vB_}, v{vLane}, v{vB_}")
    a(f"s_lshl_b32 s{t0}, s{t2}, 4"); a(f"v_add_u32 v{vA}, s{t0}, v{vA}")
    a(f"s_cmp_eq_u32 s{sWQ}, 1")
    a(f"s_cbranch_scc0 L_{name}_t2")
    srd(a, ST, pQKV, 0, 1024*6144)
    if dedupe:
        a(f"s_and_b32 s{t0}, s{sH}, 1"); a(f"s_lshl_b32 s{t0}, s{t0}, 3"); a(f"v_add_u32 v{vA}, s{t0}, v{vA}")
    a(f"v_cmp_eq_u32 vcc, 0, v{vB_}")
    a(f"v_mul_u32_u24 v{vT}, 6144, v{vA}"); a(f"v_lshlrev_b32 v{vB_}, 11, v{vB_}"); a(f"v_add_u32 v{vT}, v{vT}, v{vB_}")
    a(f"s_lshl_b32 s{t0}, s{sH}, 6"); a(f"s_lshl_b32 s{t3}, s{sHq}, 6"); a(f"v_mov_b32 v{vA}, s{t0}"); a(f"v_mov_b32 v{vB_}, s{t3}"); a(f"v_cndmask_b32 v{vA}, v{vA}, v{vB_}, vcc")
    a(f"v_add_u32 v{vT}, v{vA}, v{vT}")
    a(f"v_cmp_gt_u32 vcc, {24 if dedupe else 48}, v{vLane}"); a(f"v_mov_b32 v{vA}, {hex(OOB)}"); a(f"v_cndmask_b32 v{vT}, v{vA}, v{vT}, vcc")
    a(f"s_mov_b32 s{sTinc}, {64*6144}")
    a(f"s_branch L_{name}_tdone")
    a.label(f"L_{name}_t2")
    a(f"s_cmp_eq_u32 s{sWQ}, 2")
    a(f"s_cbranch_scc0 L_{name}_t3")
    srd(a, ST, pWIN, 0, 1024*7168)
    a(f"v_mul_u32_u24 v{vT}, 7168, v{vA}"); a(f"v_lshlrev_b32 v{vB_}, 7, v{vB_}"); a(f"v_min_u32 v{vB_}, 252, v{vB_}"); a(f"v_add_u32 v{vT}, v{vT}, v{vB_}")
    a(f"s_mul_i32 s{t0}, s{sNJ}, 224"); a(f"s_lshl_b32 s{t3}, s{sODD}, 5"); a(f"s_sub_u32 s{t0}, s{t0}, s{t3}"); a(f"v_add_u32 v{vT}, s{t0}, v{vT}")
    a(f"v_cmp_gt_u32 vcc, 48, v{vLane}"); a(f"v_mov_b32 v{vA}, {hex(OOB)}"); a(f"v_cndmask_b32 v{vT}, v{vA}, v{vT}, vcc")
    a(f"s_mov_b32 s{sTinc}, {64*7168}")
    a(f"s_branch L_{name}_tdone")
    a.label(f"L_{name}_t3")
    srd(a, ST, pWSP, 0, 2048*4096)
    if wsplit:
        a(f"v_lshrrev_b32 v{vT}, 4, v{vLane}"); a(f"v_lshlrev_b32 v{vT}, 12, v{vT}"); a(f"v_and_b32 v{vA}, 15, v{vLane}"); a(f"v_lshlrev_b32 v{vA}, 7, v{vA}")
        a(f"v_add_u32 v{vT}, v{vT}, v{vA}"); a(f"s_lshl_b32 s{t0}, s2, 15"); a(f"v_add_u32 v{vT}, s{t0}, v{vT}")
        a(f"s_mov_b32 s{sTinc}, 16384")
        a(f"s_add_u32 s{ST+2}, s{t0}, 32768")
    else:
        a(f"v_lshlrev_b32 v{vT}, 7, v{vLane}"); a(f"s_lshl_b32 s{t0}, s2, 15"); a(f"v_add_u32 v{vT}, s{t0}, v{vT}")
        a(f"s_mov_b32 s{sTinc}, 8192")
        a(f"s_add_u32 s{ST+2}, s{t0}, 32768") if wsp else a(f"s_mov_b32 s{ST+2}, 0")
    a.label(f"L_{name}_tdone")
    a(f"s_mov_b32 s{sTo}, 0")
    def touch_ops(vm, tag):
        vm.issue(tag)
        return [f"buffer_load_dword v{vDum}, v{vT}, s[{ST}:{ST+3}], s{sTo} offen {tfl}", f"s_add_u32 s{sTo}, s{sTo}, s{sTinc}"]
    a(f"s_cmp_eq_u32 s{sWQ}, 3")
    a(f"s_cbranch_scc1 L_{name}_notouch0")
    if touch:
        for q in range(2):
            for l in touch_ops(vmA, ("T", q)): a(l)
    a.label(f"L_{name}_notouch0")
    a(f"v_lshrrev_b32 v{vA}, 3, v{vLane}")
    a(f"s_lshl_b32 s{t0}, s{sMI}, 8"); a(f"s_lshl_b32 s{t1}, s{sWQ}, 6"); a(f"s_add_u32 s{t0}, s{t0}, s{t1}")
    a(f"v_add_u32 v{vA}, s{t0}, v{vA}"); a(f"v_lshlrev_b32 v{vA}, 11, v{vA}")
    a(f"v_and_b32 v{vB_}, 7, v{vLane}"); a(f"v_lshrrev_b32 v{vC}, 4, v{vLane}"); a(f"v_xor_b32 v{vB_}, v{vB_}, v{vC}")
    a(f"v_lshlrev_b32 v{vC}, 4, v{vB_}"); a(f"v_add_u32 v{vDs[0]}, v{vA}, v{vC}")
    a(f"v_xor_b32 v{vC}, 64, v{vC}"); a(f"v_add_u32 v{vDs[1]}, v{vA}, v{vC}"); a(f"v_add_u32 v{vDs[1]}, {8*2048}, v{vDs[1]}")
    for e in range(2, 8): a(f"v_add_u32 v{vDs[e]}, {16*2048}, v{vDs[e-2]}")
    a(f"s_lshl_b32 s{sM0}, s{sWQ}, 13")
    a(f"s_mov_b32 s{sKA}, 0")
    srd(a, SX, pX, 0, 2048*2048)
    def dmaA(tile, half):
        out = []
        for e in range(4*half, 4*half+4):
            vmA.issue(("A", tile, e))
            out.append([f"s_add_u32 m0, s{sM0}, {(tile % NA)*A_SLOT + e*1024}",
                        f"buffer_load_dwordx4 v{vDs[e]}, s[{SX}:{SX+3}], s{sKA} offen {dfl} lds"])
        if half == 1: out[-1].append(f"s_add_u32 s{sKA}, s{sKA}, 128")
        return out
    a("s_barrier")
    for half in range(2):
        for grp in dmaA(0, half):
            for l in grp: a(l)
    P.stamp(4, "pro")
    common_late()
    a(f"v_mov_b32 v{vA}, 0"); a(f"v_lshlrev_b32 v{vB_}, 2, v{vLane}"); a(f"v_add_u32 v{vB_}, {MISC}, v{vB_}"); a(f"ds_write_b32 v{vB_}, v{vA}")
    a(f"v_lshrrev_b32 v{vA}, 4, v{vLane}"); a(f"v_mul_u32_u24 v{vB_}, 1536, v{vA}")
    a(f"v_bfe_u32 v{vC}, v{vLane}, 2, 2"); a(f"v_lshlrev_b32 v{vC}, 6, v{vC}"); a(f"v_add_u32 v{vB_}, v{vB_}, v{vC}")
    a(f"v_and_b32 v{vC}, 3, v{vLane}"); a(f"v_lshlrev_b32 v{vC}, 3, v{vC}"); a(f"v_add_u32 v{vB_}, v{vB_}, v{vC}")
    a(f"v_and_b32 v{vA}, 1, v{vA}"); a(f"v_lshlrev_b32 v{vA}, 5, v{vA}"); a(f"v_add_u32 v{vB_}, {W_BASE}, v{vB_}")
    a(f"v_add_u32 v{vW1[0]}, v{vB_}, v{vA}"); a(f"v_xor_b32 v{vA}, 32, v{vA}"); a(f"v_add_u32 v{vW1[1]}, v{vB_}, v{vA}")
    if relayout:
        a(f"s_lshl_b32 s{t0}, s{sWQ}, 8"); a(f"s_add_u32 s{t0}, s{t0}, s2")
        a(f"s_lshr_b32 s{t1}, s{t0}, 1")
        a(f"s_and_b32 s{t2}, s{t0}, 1")
        a(f"s_cmp_lt_u32 s{t1}, 128")
        a(f"s_cselect_b32 s{SRL}, s{pWO}, s{pWOUT}")
        a(f"s_cselect_b32 s{SRL+1}, s{pWO+1}, s{pWOUT+1}")
        a(f"s_mov_b32 s{t3}, {1792*2048}")
        a(f"s_cselect_b32 s{SRL+2}, {1024*2048}, s{t3}")
        a(f"s_mov_b32 s{SRL+3}, {hex(SRD3)}")
        a(f"s_cselect_b32 s{t3}, 0, 128")
        a(f"s_sub_u32 s{t3}, s{t1}, s{t3}")
        a(f"s_lshl_b32 s{t3}, s{t3}, 14")
        a(f"s_lshl_b32 s{sRLs}, s{t2}, 10"); a(f"s_add_u32 s{sRLs}, s{sRLs}, s{t3}")
        a(f"s_mul_i32 s{sRLd}, s{t2}, {8*44*8192}"); a(f"s_lshl_b32 s{t3}, s{t1}, 10"); a(f"s_add_u32 s{sRLd}, s{sRLd}, s{t3}")
        a(f"s_add_u32 s{sRLd}, s{sRLd}, {WT_OFF}")
        a(f"s_cmp_lt_u32 s{t0}, 704")
        a(f"s_cselect_b32 s{sRLs}, s{sRLs}, {hex(OOB)}")
        a(f"s_cselect_b32 s{sRLd}, s{sRLd}, {hex(OOB)}")
        a(f"v_lshrrev_b32 v{vA}, 3, v{vLane}"); a(f"v_lshrrev_b32 v{vB_}, 1, v{vA}")
        a(f"v_bfe_u32 v{vC}, v{vLane}, 1, 2"); a(f"v_xor_b32 v{vC}, v{vC}, v{vB_}"); a(f"v_lshlrev_b32 v{vC}, 5, v{vC}")
        a(f"v_and_b32 v{vB_}, 1, v{vLane}"); a(f"v_lshlrev_b32 v{vB_}, 4, v{vB_}"); a(f"v_add_u32 v{vC}, v{vC}, v{vB_}")
        a(f"v_lshlrev_b32 v{vA}, 11, v{vA}"); a(f"v_add_u32 v{vRL}, v{vA}, v{vC}")
    def att_second():
        for half in range(2):
            for grp in dmaA(1, half):
                for l in grp: a(l)
        if early3:
            a(f"s_cmp_eq_u32 s{sWQ}, 3"); a(f"s_cbranch_scc0 L_{name}_noe3")
            for (ptr, size, per, div, mul, stride) in ((pQKV, 1024*6144, 24, 6, 10923, 6144), (pWIN, 1024*7168, 28, 7, 9363, 7168)):
                srd(a, SRL if not relayout else SD, ptr, 0, size)
                sr_ = SRL if not relayout else SD
                a(f"s_mul_i32 s{t0}, s2, {per}"); a(f"v_add_u32 v{vA}, s{t0}, v{vLane}")
                a(f"v_mul_u32_u24 v{vB_}, {mul}, v{vA}"); a(f"v_lshrrev_b32 v{vB_}, 16, v{vB_}")
                a(f"v_mul_u32_u24 v{vC}, {div}, v{vB_}"); a(f"v_sub_u32 v{vC}, v{vA}, v{vC}")
                a(f"v_mul_u32_u24 v{vB_}, {stride}, v{vB_}"); a(f"v_lshlrev_b32 v{vC}, 10, v{vC}"); a(f"v_add_u32 v{vB_}, v{vB_}, v{vC}"); a(f"v_add_u32 v{vB_}, 384, v{vB_}")
                a(f"v_cmp_gt_u32 vcc, {per}, v{vLane}"); a(f"v_mov_b32 v{vC}, {hex(OOB)}"); a(f"v_cndmask_b32 v{vB_}, v{vC}, v{vB_}, vcc")
                a(f"buffer_load_dword v{vDum}, v{vB_}, s[{sr_}:{sr_+3}], 0 offen")
            a.label(f"L_{name}_noe3")
    def wphi_ops():
        vmA.issue("wphi")
        return [f"s_mov_b32 s{SD}, s{pPHI}", f"s_mov_b32 s{SD+1}, s{pPHI+1}", f"s_mov_b32 s{SD+2}, 65536", f"s_mov_b32 s{SD+3}, {hex(SRD3)}",
                f"s_and_b32 s{t0}, s{sWQ}, 1", f"s_lshl_b32 s{t0}, s{t0}, 10", f"s_lshl_b32 s{t1}, s{sH}, 11", f"s_add_u32 s{t1}, s{t1}, s{t0}",
                f"s_add_u32 m0, s{t0}, {WPHI}", "s_nop 0", f"buffer_load_dwordx4 v{vRLd}, s[{SD}:{SD+3}], s{t1} offen lds"]
    a(f"s_branch L_{name}_amain")

    a.label(f"L_{name}_gsetup")
    a(f"v_lshrrev_b32 v{vA}, 2, v{vLane}")
    a(f"v_and_b32 v{vB_}, 3, v{vA}")
    a(f"v_lshrrev_b32 v{vC}, 2, v{vA}")
    a(f"v_and_b32 v{vD}, 3, v{vLane}")
    a(f"s_mul_i32 s{t3}, s{sNJ}, 224"); a(f"s_lshl_b32 s{t2}, s{sODD}, 5"); a(f"s_sub_u32 s{t3}, s{t3}, s{t2}")
    def w2src(dst, kq_s):
        a(f"s_lshl_b32 s{t0}, s{kq_s}, 2")
        a(f"v_add_u32 v{dst}, s{t0}, v{vB_}"); a(f"v_mul_u32_u24 v{dst}, 7168, v{dst}")
        a(f"s_and_b32 s{t0}, s{kq_s}, 2")
        a(f"v_xor_b32 v{vDum}, s{t0}, v{vD}"); a(f"v_lshlrev_b32 v{vDum}, 4, v{vDum}"); a(f"v_add_u32 v{dst}, v{dst}, v{vDum}")
        a(f"v_lshlrev_b32 v{vDum}, 6, v{vC}"); a(f"v_add_u32 v{dst}, v{dst}, v{vDum}")
        a(f"v_add_u32 v{dst}, s{t3}, v{dst}")
    a(f"s_cmp_ge_u32 s{sWQ}, 2")
    a(f"s_cbranch_scc1 L_{name}_g23")
    a(f"s_mov_b32 s{sIncD}, {32*6144}")
    for j in range(3):
        a(f"s_mul_i32 s{t0}, s{sWQ}, 12"); a(f"s_add_u32 s{t0}, s{t0}, {4*j}")
        a(f"v_add_u32 v{vDs[j]}, s{t0}, v{vC}")
        a(f"v_mul_u32_u24 v{vDum}, 11, v{vDs[j]}"); a(f"v_lshrrev_b32 v{vDum}, 5, v{vDum}")
        a(f"v_mul_u32_u24 v{vT}, 3, v{vDum}"); a(f"v_sub_u32 v{vT}, v{vDs[j]}, v{vT}")
        a(f"v_cmp_eq_u32 vcc, 0, v{vT}")
        a(f"v_lshlrev_b32 v{vT}, 11, v{vT}")
        a(f"v_and_b32 v{vDs[j]}, 2, v{vDum}"); a(f"v_xor_b32 v{vDs[j]}, v{vDs[j]}, v{vD}"); a(f"v_lshlrev_b32 v{vDs[j]}, 4, v{vDs[j]}")
        a(f"v_add_u32 v{vT}, v{vT}, v{vDs[j]}")
        a(f"v_lshlrev_b32 v{vDum}, 2, v{vDum}"); a(f"v_add_u32 v{vDum}, v{vDum}, v{vB_}"); a(f"v_mul_u32_u24 v{vDum}, 6144, v{vDum}")
        a(f"v_add_u32 v{vT}, v{vT}, v{vDum}")
        a(f"s_lshl_b32 s{t0}, s{sH}, 6"); a(f"s_lshl_b32 s{t1}, s{sHq}, 6"); a(f"v_mov_b32 v{vDum}, s{t0}"); a(f"v_mov_b32 v{vDs[j]}, s{t1}")
        a(f"v_cndmask_b32 v{vDum}, v{vDum}, v{vDs[j]}, vcc"); a(f"v_add_u32 v{vDs[j]}, v{vDum}, v{vT}")
        a(f"s_mul_i32 s{t0}, s{sWQ}, 3072"); a(f"s_add_u32 s{sMs[j]}, s{t0}, {W_BASE + j*1024}")
    a(f"s_mov_b32 s{t1}, s{sWQ}"); w2src(vDs[3], t1)
    a(f"s_lshl_b32 s{t0}, s{sWQ}, 10"); a(f"s_add_u32 s{sMs[3]}, s{t0}, {W_BASE + 6144}")
    a("s_waitcnt lgkmcnt(0)")
    srd(a, SD, pQKV, 0, 1024*6144)
    a(f"s_branch L_{name}_g23done")
    a.label(f"L_{name}_g23")
    a(f"s_mov_b32 s{sIncD}, {32*7168}")
    for j in range(3):
        a(f"s_mul_i32 s{t1}, s{sWQ}, 3"); a(f"s_add_u32 s{t1}, s{t1}, {j}"); a(f"s_sub_u32 s{t1}, s{t1}, 4")
        w2src(vDs[j], t1)
        a(f"s_lshl_b32 s{t0}, s{t1}, 10"); a(f"s_add_u32 s{sMs[j]}, s{t0}, {W_BASE + 6144}")
    a(f"v_mov_b32 v{vDs[3]}, {hex(OOB)}")
    a(f"s_mov_b32 s{sMs[3]}, {DUMMY}")
    a("s_waitcnt lgkmcnt(0)")
    srd(a, SD, pWIN, 0, 1024*7168)
    a.label(f"L_{name}_g23done")
    P.stamp(3, "pro")
    srd(a, SD3, pWIN, 0, 1024*7168)
    a(f"s_cmp_ge_u32 s{sWQ}, 2"); a(f"s_cselect_b32 s{sM0d}, 0, {W_SLOT}")
    a(f"s_mov_b32 s{sKD}, 0"); a(f"s_mov_b32 s{sKD3}, 0")
    def dmaW(tile):
        out = []
        for j in range(4):
            vmG.issue(("W", tile, j))
            slot = tile % NW
            if j < 3:
                out.append([f"s_add_u32 m0, s{sMs[j]}, {slot*W_SLOT}",
                            f"buffer_load_dwordx4 v{vDs[j]}, s[{SD}:{SD+3}], s{sKD} offen {dfl} lds"])
            else:
                out.append([f"s_mul_i32 s{t0}, s{sM0d}, {slot}", f"s_add_u32 m0, s{sMs[3]}, s{t0}",
                            f"buffer_load_dwordx4 v{vDs[3]}, s[{SD3}:{SD3+3}], s{sKD3} offen {dfl} lds",
                            f"s_add_u32 s{sKD}, s{sKD}, s{sIncD}", f"s_add_u32 s{sKD3}, s{sKD3}, {32*7168}"])
        return out
    srd(a, SWS, pWS, 0, WS_USED)
    a(f"s_lshl_b32 s{t0}, s{sMI}, 4"); a(f"s_add_u32 s{t0}, s{t0}, s{sNJ}"); a(f"s_sub_u32 s{t0}, s{t0}, 16"); a(f"s_lshl_b32 s{t0}, s{t0}, 11")
    a(f"s_lshl_b32 s{t1}, s{sWQ}, 9"); a(f"s_add_u32 s{t0}, s{t0}, s{t1}"); a(f"s_add_u32 s{sSt}, s{t0}, {STAT_OFF}")
    a(f"s_cmp_lt_u32 s{sNJ}, 16"); a(f"s_cselect_b32 s{sSt}, {hex(OOB)}, s{sSt}")
    a(f"v_mov_b32 v{GV}, 0"); a(f"v_mov_b32 v{GV+1}, -1.0"); a(f"v_lshlrev_b32 v{GV+2}, 3, v{vLane}")
    a(f"buffer_store_dwordx2 v[{GV}:{GV+1}], v{GV+2}, s[{SWS}:{SWS+3}], s{sSt} offen sc1")
    vmG.issue("mark")
    if codewarm:
        a(f"s_cmp_eq_u32 s{sW}, 7")
        a(f"s_cbranch_scc0 L_{name}_nocw")
        a(f"s_getpc_b64 s[{t2}:{t3}]")
        a.label(f"L_{name}_pc")
        a(f"s_lshr_b32 s{t0}, s2, 3"); a(f"s_lshl_b32 s{t0}, s{t0}, 4")
        a(f"v_and_b32 v{GV+4}, 15, v{vLane}"); a(f"v_add_u32 v{GV+4}, s{t0}, v{GV+4}"); a(f"v_lshlrev_b32 v{GV+4}, 7, v{GV+4}")
        a(f"v_mov_b32 v{GV+7}, s{t3}"); a(f"v_add_co_u32 v{GV+6}, vcc, s{t2}, v{GV+4}"); a(f"v_addc_co_u32 v{GV+7}, vcc, 0, v{GV+7}, vcc")
        a(f"s_mov_b32 s{t0}, L_text_end-L_{name}_pc")
        a(f"v_cmp_gt_u32 vcc, s{t0}, v{GV+4}")
        a(f"s_and_saveexec_b64 s[{t2}:{t3}], vcc")
        a(f"s_cbranch_execz L_{name}_cwx")
        a(f"global_load_dword v{GV+5}, v[{GV+6}:{GV+7}], off")
        a.label(f"L_{name}_cwx")
        a(f"s_mov_b64 exec, s[{t2}:{t3}]")
        a.label(f"L_{name}_nocw")
    a("s_barrier")
    for grp in dmaW(0):
        for l in grp: a(l)
    P.stamp(4, "pro")
    gm_w1 = True
    common_late()
    srd(a, SX, pX, 0, 2048*2048)
    a(f"v_lshrrev_b32 v{vA}, 4, v{vLane}"); a(f"v_lshlrev_b32 v{vB_}, 11, v{vA}")
    a(f"v_bfe_u32 v{vC}, v{vLane}, 2, 2"); a(f"v_lshlrev_b32 v{vC}, 6, v{vC}"); a(f"v_add_u32 v{vB_}, v{vB_}, v{vC}")
    a(f"v_and_b32 v{vC}, 3, v{vLane}"); a(f"v_lshlrev_b32 v{vC}, 3, v{vC}"); a(f"v_add_u32 v{vB_}, v{vB_}, v{vC}")
    a(f"v_add_u32 v{vB_}, {W_BASE + 6144}, v{vB_}")
    a(f"v_and_b32 v{vA}, 1, v{vA}"); a(f"v_xor_b32 v{vA}, s{sODD}, v{vA}"); a(f"v_lshlrev_b32 v{vA}, 5, v{vA}")
    a(f"v_add_u32 v{vW2[0]}, v{vB_}, v{vA}"); a(f"v_xor_b32 v{vA}, 32, v{vA}"); a(f"v_add_u32 v{vW2[1]}, v{vB_}, v{vA}")
    a(f"s_lshl_b32 s{t0}, s{sODD}, 8"); a(f"v_add_u32 v{vW2[1]}, s{t0}, v{vW2[1]}")
    a(f"s_branch L_{name}_gmain")

    def gate_loads(vm):
        ops = [f"s_lshl_b32 s{t0}, s{sMI}, 8", f"s_lshl_b32 s{t1}, s{sNJ}, 3", f"s_add_u32 s{t0}, s{t0}, s{t1}", f"s_add_u32 s{t0}, s{t0}, s{sW}",
               f"s_lshl_b32 s{sTo}, s{t0}, 2", f"s_add_u32 s{sTo}, s{sTo}, {GATE_OFF}", f"s_lshl_b32 s{t0}, s{t0}, 11",
               f"s_mov_b32 s{ST}, s{pGATE}", f"s_mov_b32 s{ST+1}, s{pGATE+1}", f"s_mov_b32 s{ST+2}, 2048", f"s_mov_b32 s{ST+3}, {hex(SRD3)}"]
        ld = [f"buffer_load_dwordx4 v[{GV}:{GV+3}], v{vRLd}, s[{SX}:{SX+3}], s{t0} offen",
              f"buffer_load_dwordx4 v[{GV+4}:{GV+7}], v{vRLd}, s[{SX}:{SX+3}], s{t0} offen offset:1024",
              f"buffer_load_dwordx4 v[{GV+8}:{GV+11}], v{vRLd}, s[{ST}:{ST+3}], 0 offen",
              f"buffer_load_dwordx4 v[{GV+12}:{GV+15}], v{vRLd}, s[{ST}:{ST+3}], 0 offen offset:1024"]
        for q in range(4): vm.issue(("gate", q))
        return ops + ld
    def gate_compute():
        T = GV + 16
        o = [f"v_mov_b32 v{T+2}, 0", f"v_mov_b32 v{T+3}, 0"]
        for q in range(8):
            xr, gr = GV + q, GV + 8 + q
            o += [f"v_lshlrev_b32 v{T}, 16, v{xr}", f"v_and_b32 v{T+1}, 0xffff0000, v{xr}",
                  f"v_lshlrev_b32 v{T+4}, 16, v{gr}", f"v_and_b32 v{T+5}, 0xffff0000, v{gr}",
                  f"v_fma_f32 v{T+2}, v{T}, v{T+4}, v{T+2}", f"v_fma_f32 v{T+3}, v{T+1}, v{T+5}, v{T+3}"]
        o.append(f"v_add_f32 v{T}, v{T+2}, v{T+3}")
        for sh in (8, 4, 2, 1):
            o.append(f"v_add_f32_dpp v{T}, v{T}, v{T} row_ror:{sh} row_mask:0xf bank_mask:0xf")
        o += [f"v_mov_b32 v{T+1}, v{T}", f"v_permlane16_swap_b32 v{T}, v{T+1}", f"v_add_f32 v{T}, v{T}, v{T+1}",
              f"v_mov_b32 v{T+1}, v{T}", f"v_permlane32_swap_b32 v{T}, v{T+1}", f"v_add_f32 v{T}, v{T}, v{T+1}",
              f"v_mul_f32 v{T}, {f2h(-LOG2E)}, v{T}", f"v_exp_f32 v{T}, v{T}", f"v_add_f32 v{T}, 1.0, v{T}", f"v_rcp_f32 v{T}, v{T}",
              f"v_lshlrev_b32 v{T+1}, 2, v{vLane}", f"v_cmp_eq_u32 vcc, 0, v{vLane}", f"v_mov_b32 v{T+2}, {hex(OOB)}", f"v_cndmask_b32 v{T+1}, v{T+2}, v{T+1}, vcc"]
        return o, f"buffer_store_dword v{T}, v{T+1}, s[{SWS}:{SWS+3}], s{sTo} offen"

    def xreads(step):
        tile = step >> 1; kh = step & 1; slot = tile % NA
        base = XF + (step % 2)*16
        hi = 1 if slot == 2 else 0; off = 0 if slot == 2 else slot*A_SLOT
        return [f"ds_read_b128 v[{base+4*tb}:{base+4*tb+3}], v{vX[hi][kh]} offset:{off + tb*2048}" for tb in range(4)]
    def main_loop(role):
        att = role == "A"
        vm = vmA if att else vmG
        nb = 6 if att else 7
        ACC = ACC_A if att else ACC_G
        WSET = 4*nb
        def wreads(step):
            base = WF + (step % 2)*WSET; slot = step % NW; out = []
            for i in range(nb):
                for sec in range(2):
                    r = base + 4*i + 2*sec
                    if att: out.append(f"ds_read_b64_tr_b16 v[{r}:{r+1}], v{vW1[i & 1]} offset:{slot*W_SLOT + sec*768 + (i >> 1)*256}")
                    else:   out.append(f"ds_read_b64_tr_b16 v[{r}:{r+1}], v{vW2[i & 1]} offset:{slot*W_SLOT + sec*1024 + (i >> 1)*256}")
            return out
        def mfmas(step):
            xb = XF + (step % 2)*16; wb = WF + (step % 2)*WSET; out = []
            for i in range(nb):
                for tb in (range(4) if i % 2 == 0 else range(3, -1, -1)):
                    c = ACC + (i*4+tb)*4
                    w_, x_ = f"v[{wb+4*i}:{wb+4*i+3}]", f"v[{xb+4*tb}:{xb+4*tb+3}]"
                    if att and i >= 4: w_, x_ = x_, w_
                    out.append(f"v_mfma_f32_16x16x32_bf16 v[{c}:{c+3}], {w_}, {x_}, v[{c}:{c+3}]")
            return out
        for i in range(nb*16): a(f"v_mov_b32 v{ACC+i}, 0")
        if not att:
            for grp in dmaW(1):
                for l in grp: a(l)
        need = [("A", 0, e) for e in range(8)] if att else [("W", 0, j) for j in range(4)]
        a(f"s_waitcnt vmcnt({vm.need(need)}) lgkmcnt(0)")
        a("s_barrier")
        for l in xreads(0) + wreads(0): a(l)
        if att:
            att_second()
            a("s_waitcnt lgkmcnt(0)")
        else:
            for grp in dmaW(2):
                for l in grp: a(l)
            a(f"s_waitcnt vmcnt({max(vm.need([('W', 1, j) for j in range(4)]), 0)}) lgkmcnt(0)")
        a("s_barrier")
        P.stamp(1)
        steps = []; pend_rl = []
        gcomp, gstore = gate_compute()
        GL, GS0, GS1 = 26, 28, 31
        L0 = 2
        for s in range(NS):
            m = mfmas(s); nm = len(m)
            rd = (xreads(s+1) + wreads(s+1)) if s + 1 < NS else []
            dm = []
            if s == GS0: gate_wait = vm.need([("gate", 3)])
            if att:
                t2_ = ((s + 1) >> 1) + 2; half = (s + 1) & 1
                if s == 0: dm += dmaA(2, 0)
                if t2_ < NS // 2: dm += dmaA(t2_, half)
                if s == 1: dm.append(wphi_ops())
                cold = []
                if burst and bmode == 4:
                    inloop = L0 <= s < L0 + 24
                    r = (s - L0) % 12
                    if touch and s == 0: cold += sum([touch_ops(vm, ("T", q)) for q in (2, 3, 4)], [])
                    if inloop and r % 4 == 0:
                        bidx = r // 4
                        if touch: cold += sum([touch_ops(vm, ("T", s, q)) for q in range(2)], [])
                        if relayout:
                            cur = []
                            for bi in range(2 if bidx == 0 else 1):
                                b = vRLb + 4*bi; tag = ("RL", s, bi); vm.issue(tag); cur.append((tag, b))
                                cold += [f"buffer_load_dwordx4 v[{b}:{b+3}], v{vRL}, s[{SRL}:{SRL+3}], s{sRLs} offen {rfl}", f"s_add_u32 s{sRLs}, s{sRLs}, 128"]
                            pend_rl.append(cur)
                    if relayout and inloop and r % 4 == 3:
                        prev = pend_rl.pop(0)
                        n = vm.need([prev[-1][0]])
                        cold.append(f"s_waitcnt vmcnt({n})")
                        for tag, b in prev:
                            vm.issue(("RS", tag))
                            cold += [f"buffer_store_dwordx4 v[{b}:{b+3}], v{vRLd}, s[{SWS}:{SWS+3}], s{sRLd} offen {st}", f"s_add_u32 s{sRLd}, s{sRLd}, {44*8192}"]
                elif burst:
                    if touch and s == 0: cold += sum([touch_ops(vm, ("T", q)) for q in (2, 3, 4)], [])
                    if touch and L0 <= s < L0 + 24 and (s - L0) % U == 1: cold += sum([touch_ops(vm, ("T", s, q)) for q in range(3)], [])
                    if relayout and L0 <= s < L0 + 24:
                        r6 = (s - L0) % U
                        if r6 == 1:
                            for bi in range(2):
                                b = vRLb + 4*bi
                                vm.issue(("RL", s, bi))
                                cold += [f"buffer_load_dwordx4 v[{b}:{b+3}], v{vRL}, s[{SRL}:{SRL+3}], s{sRLs} offen", f"s_add_u32 s{sRLs}, s{sRLs}, 128"]
                        if r6 == 5:
                            n = vm.need([("RL", s - 4, 1)])
                            cold.append(f"s_waitcnt vmcnt({n})")
                            for bi in range(2):
                                b = vRLb + 4*bi
                                vm.issue(("RS", s, bi))
                                cold += [f"buffer_store_dwordx4 v[{b}:{b+3}], v{vRLd}, s[{SWS}:{SWS+3}], s{sRLd} offen {st}", f"s_add_u32 s{sRLd}, s{sRLd}, {44*8192}"]
                    pass
                if burst:
                    if cold: dm.append(cold)
                else:
                    if touch and s < 2:
                        for q in range(2 + s*((PT-1)//2), min(PT, 2 + (s+1)*((PT-1)//2)) if s == 0 else PT): dm.append(touch_ops(vm, ("T", q)))
                    if touch and s % 2 == 0 and s < L0 + 24: dm.append(touch_ops(vm, ("T", s // 2 + PT)))
                    if relayout and L0 <= s < L0 + 24:
                        r6 = (s - L0) % 6
                        if r6 in (0, 2):
                            b = vRLb + 2*r6
                            vm.issue(("RL", s))
                            dm.append([f"buffer_load_dwordx4 v[{b}:{b+3}], v{vRL}, s[{SRL}:{SRL+3}], s{sRLs} offen {rfl}", f"s_add_u32 s{sRLs}, s{sRLs}, 128"])
                        if r6 in (4, 5):
                            src = s - 4 if r6 == 4 else s - 3
                            b = vRLb + (0 if r6 == 4 else 4)
                            n = vm.need([("RL", src)])
                            vm.issue(("RS", s))
                            dm.append([f"s_waitcnt vmcnt({n})", f"buffer_store_dwordx4 v[{b}:{b+3}], v{vRLd}, s[{SWS}:{SWS+3}], s{sRLd} offen {st}", f"s_add_u32 s{sRLd}, s{sRLd}, {44*8192}"])
            else:
                if NW == 4 and s == 0: dm += dmaW(3)
                if s + NW < NS: dm += dmaW(s + NW)
            if att and wsp_tail and s == wsp_tail:
                vm.issue("wsp")
                if wsplit:
                    dm.append([f"s_mov_b32 s{SRL}, s{pWSP}", f"s_mov_b32 s{SRL+1}, s{pWSP+1}", f"s_mov_b32 s{SRL+2}, {2048*4096}", f"s_mov_b32 s{SRL+3}, {hex(SRD3)}",
                               f"s_lshl_b32 s{t0}, s2, 15", f"s_lshl_b32 s{t1}, s{sWQ}, 13", f"s_add_u32 s{t0}, s{t0}, s{t1}", f"s_add_u32 s{t0}, s{t0}, 2048",
                               f"v_lshrrev_b32 v{vRL}, 4, v{vLane}", f"v_lshlrev_b32 v{vRL}, 12, v{vRL}", f"v_and_b32 v{vDum}, 15, v{vLane}", f"v_lshlrev_b32 v{vDum}, 7, v{vDum}",
                               f"v_add_u32 v{vRL}, v{vRL}, v{vDum}", f"v_cmp_gt_u32 vcc, 32, v{vLane}", f"v_mov_b32 v{vDum}, {hex(OOB)}", f"v_cndmask_b32 v{vRL}, v{vDum}, v{vRL}, vcc",
                               f"buffer_load_dword v{vDum}, v{vRL}, s[{SRL}:{SRL+3}], s{t0} offen"])
                else:
                    dm.append([f"s_mov_b32 s{SRL}, s{pWSP}", f"s_mov_b32 s{SRL+1}, s{pWSP+1}", f"s_mov_b32 s{SRL+2}, {2048*4096}", f"s_mov_b32 s{SRL+3}, {hex(SRD3)}",
                               ] + (
                               [f"s_and_b32 s{t0}, s2, 7", f"s_lshr_b32 s{t2}, s{t0}, 1", f"s_lshl_b32 s{t2}, s{t2}, 21", f"s_lshr_b32 s{t3}, s2, 3"] +
                               ([f"s_and_b32 s{t0}, s{t0}, 1", f"s_lshl_b32 s{t0}, s{t0}, 5", f"s_add_u32 s{t3}, s{t3}, s{t0}", f"s_lshl_b32 s{t3}, s{t3}, 15", f"s_lshl_b32 s{t1}, s{sWQ}, 13"] if wsp_aff == 1 else
                                [f"s_lshl_b32 s{t3}, s{t3}, 16", f"s_lshl_b32 s{t1}, s{sWQ}, 14"]) +
                               [f"s_add_u32 s{t0}, s{t2}, s{t3}", f"s_add_u32 s{t0}, s{t0}, s{t1}"]
                               if wsp_aff else
                               [f"s_lshl_b32 s{t0}, s2, 15", f"s_lshl_b32 s{t1}, s{sWQ}, 13", f"s_add_u32 s{t0}, s{t0}, s{t1}"]) + [
                               f"v_lshlrev_b32 v{vRL}, 7, v{vLane}", f"buffer_load_dword v{vDum}, v{vRL}, s[{SRL}:{SRL+3}], s{t0} offen"] +
                               ([f"s_add_u32 s{t0}, s{t0}, 8192", f"buffer_load_dword v{vDum}, v{vRL}, s[{SRL}:{SRL+3}], s{t0} offen"] if wsp_aff == 2 else []))
                    if wsp_aff == 2: vm.issue("wsp2")
            if s == GL: dm.append(gate_loads(vm))
            slots = [[] for _ in range(nm)]
            for k, x in enumerate(rd): slots[min(nm-1, (k*(nm-5))//len(rd))].append(x)
            last_pos = -9
            for k, g in enumerate(dm):
                if dpos == "late" and 2*len(dm) + 2 <= nm: pos = nm - 2*len(dm) + 2*k
                elif dpos == "mid" and 3*len(dm) + 2 <= nm: pos = nm - 3*len(dm) + 3*k
                else: pos = min(nm-1, 1 + (k*(nm-3))//max(len(dm), 1))
                assert pos - last_pos >= 2, (role, s, k, len(dm)); last_pos = pos
                if g[0].startswith("s_add_u32 m0") or g[0].startswith("s_mul_i32"):
                    n0 = 2 if g[0].startswith("s_mul_i32") else 1
                    slots[pos-1].extend(g[:n0]); slots[pos] = g[n0:] + slots[pos]
                else: slots[pos].extend(g)
            if GS0 <= s < GS1:
                per = -(-len(gcomp)//(GS1 - GS0)); part = gcomp[(s-GS0)*per:(s-GS0+1)*per]
                if s == GS0: slots[0].append(f"s_waitcnt vmcnt({gate_wait})")
                for k, x in enumerate(part): slots[min(nm-1, 1 + (k*(nm-2))//len(part))].append(x)
            if not att and s == 29: assert vm.need([("W", 31, 3)]) == 0
            if not att and s == 30:
                slots[0] += [f"s_cmp_eq_u32 s{sWQ}, 0", f"s_cselect_b32 s{t0}, s{sNJ}, 0", f"s_cmp_ge_u32 s{t0}, 16", f"s_cbranch_scc0 L_{name}_noc1",
                             f"s_mov_b32 s{ST}, s{pDBG}", f"s_mov_b32 s{ST+1}, s{pDBG+1}", f"s_mov_b32 s{ST+2}, 256", f"s_mov_b32 s{ST+3}, {hex(SRD3)}",
                             f"s_lshl_b32 s{t1}, s{sMI}, 5", f"v_mov_b32 v{vA}, 0", f"v_mov_b32 v{vB_}, 1",
                             f"s_mov_b64 s[{t2}:{t3}], exec", "s_mov_b64 exec, 1",
                             f"buffer_atomic_add v{vB_}, v{vA}, s[{ST}:{ST+3}], s{t1} offen sc1",
                             f"s_mov_b64 exec, s[{t2}:{t3}]", f"L_{name}_noc1:"]
            if s == GS1:
                vm.issue("gst"); slots[2].append(gstore)
            seq = []
            for k in range(nm):
                seq.append(m[k]); seq += slots[k]
            need = []
            if s + 2 < NS:
                if att: need = [("A", (s+2) >> 1, e) for e in range(8)]
                else: need = [("W", s+2, j) for j in range(4)]
            if s + 1 < NS:
                w = f"s_waitcnt lgkmcnt(0)" if not need else f"s_waitcnt vmcnt({vm.need(need)}) lgkmcnt(0)"
                seq.append(w); seq.append("s_barrier")
            steps.append(seq)
        n_iter = 24 // U
        for s in range(L0):
            for l in steps[s]: a(l)
        fold_loop(a, steps, L0, n_iter, U, f"L_{name}_loop{role}", sIT)
        for s in range(L0 + n_iter*U, NS):
            for l in steps[s]: a(l)
    a.label(f"L_{name}_amain")
    main_loop("A")
    P.stamp(2)
    epilogue_att(a, locals())
    a(f"s_branch L_{name}_fin")
    a.label(f"L_{name}_gmain")
    main_loop("G")
    P.stamp(2)
    epilogue_gmlp(a, locals())
    a.label(f"L_{name}_fin")
    if prof: a("s_waitcnt vmcnt(0)")
    P.stamp(5)
    P.dump(vLane, sW)
    if wsp_epi:
        srd(a, ST, pWSP, 0, 2048*4096)
        a(f"s_lshl_b32 s{t0}, s{sMI}, 4"); a(f"s_add_u32 s{t0}, s{t0}, s{sNJ}"); a(f"s_lshl_b32 s{t0}, s{t0}, 16")
        a(f"s_lshl_b32 s{t1}, s{sW}, 13"); a(f"s_add_u32 s{t0}, s{t0}, s{t1}")
        a(f"s_cmp_lt_u32 s{sNJ}, 16"); a(f"s_cselect_b32 s{t0}, s{t0}, {hex(OOB)}")
        a(f"v_lshlrev_b32 v{vA}, 7, v{vLane}")
        a(f"buffer_load_dword v{vDum}, v{vA}, s[{ST}:{ST+3}], s{t0} offen")
    a.label(f"L_{name}_end")
    a("s_endpgm")
    return kernel_text(name, a, nv=256, ns=102, ao=256), S1_LDS

from s1_epi import epilogue_att, epilogue_gmlp
```

```python
from asmlib import *
from common import *
from s1_epi import softmax_pm, softmax_exp, pack8, f2h, LOG2E

SLOT = 32768
def gen_s2(name="s2_kernel", prof=False, st="sc1", R=4, pmode="epi", relayout=False, place="late", stag=False, rl_tail=False, w_touch=False, mfsum=True, qall=False, flags=False, defer_gelu=False):
    a = Asm()
    P = Prof(a, prof); P.mode = pmode
    NS = 32
    pPHI, pWSP, pBSP, pWS = 4, 6, 8, 10
    SX, SZ, SWS, SB = 12, 16, 20, 24
    sW, sTH, sFH, sKH, sTB, sFB, sIT = 28, 29, 30, 31, 32, 33, 34
    sKX, sKZ, sMx, sMz = 35, 36, 37, 38
    t0, t1, t2, t3 = 40, 41, 42, 43
    sC = 44
    pWO, pWOUT, SRL = 46, 48, 52
    sRg, sRn, sRs, sRd, sRi = 50, 51, 56, 57, 58
    vLane, vA, vB_, vC, vD = 1, 2, 3, 4, 5
    vXs = [6, 7]; vZs = [8, 9]
    vXr = [10, 11]; vZr = [12, 13]
    vL16 = 14
    vG = [16, 17]; vBs = [18, 19]
    XF, ZF = 32, 64
    ACC = 96
    Z1R = 160
    a("s_cmp_ge_u32 s2, 256")
    a(f"s_cbranch_scc1 L_{name}_end")
    P.stamp(0)
    a(f"s_load_dwordx2 s[{pPHI}:{pPHI+1}], s[0:1], {KA_WPHI}")
    a(f"s_load_dwordx2 s[{pWSP}:{pWSP+1}], s[0:1], {KA_WSP}")
    a(f"s_load_dwordx2 s[{pBSP}:{pBSP+1}], s[0:1], {KA_BSP}")
    a(f"s_load_dwordx2 s[{pWS}:{pWS+1}], s[0:1], {KA_WS}")
    a(f"s_load_dwordx2 s[{pWO}:{pWO+1}], s[0:1], {KA_WO}")
    a(f"s_load_dwordx2 s[{pWOUT}:{pWOUT+1}], s[0:1], {KA_WOUT}")
    a(f"v_lshrrev_b32 v{vA}, 6, v0")
    a(f"v_and_b32 v{vLane}, 63, v0")
    a(f"v_readfirstlane_b32 s{sW}, v{vA}")
    a(f"v_lshlrev_b32 v{vL16}, 4, v{vLane}")
    a(f"s_and_b32 s{t0}, s2, 7"); a(f"s_lshr_b32 s{t1}, s2, 3")
    a(f"s_mov_b32 s{sC}, 1.0"); a(f"s_mov_b32 s{sC+1}, 1.0")
    a("s_waitcnt lgkmcnt(0)")
    P.stamp(3, "pro")
    srd(a, SWS, pWS, 0, WS_USED)
    if flags:
        a(f"s_lshl_b32 s{t2}, s2, 7"); a(f"s_add_u32 s{t2}, s{t2}, {FLG_OFF}")
        a(f"v_mov_b32 v{vA}, 0"); a(f"v_lshlrev_b32 v{vB_}, 2, v{vLane}"); a(f"v_cmp_gt_u32 vcc, 32, v{vLane}"); a(f"v_mov_b32 v{vC}, 0x40000000"); a(f"v_cndmask_b32 v{vB_}, v{vC}, v{vB_}, vcc")
        a(f"s_cmp_eq_u32 s{sW}, 0"); a(f"s_cselect_b32 s{t2}, s{t2}, 0x40000000")
        a(f"buffer_store_dword v{vA}, v{vB_}, s[{SWS}:{SWS+3}], s{t2} offen sc1")
    a(f"s_cmp_ge_u32 s{t1}, 28")
    a(f"s_cbranch_scc1 L_{name}_att")
    a(f"s_lshr_b32 s{t2}, s{t0}, 1"); a(f"s_lshl_b32 s{t2}, s{t2}, 2"); a(f"s_and_b32 s{t3}, s{t1}, 3"); a(f"s_add_u32 s{sTB}, s{t2}, s{t3}")
    a(f"s_and_b32 s{t2}, s{t0}, 1"); a(f"s_mul_i32 s{t2}, s{t2}, 7"); a(f"s_lshr_b32 s{t3}, s{t1}, 2"); a(f"s_add_u32 s{sFB}, s{t2}, s{t3}")
    a(f"s_and_b32 s{sTH}, s{sW}, 1"); a(f"s_bfe_u32 s{sFH}, s{sW}, 0x10001"); a(f"s_lshr_b32 s{sKH}, s{sW}, 2")
    srd(a, SX, pWSP, 0, 2048*4096)
    srd(a, SZ, pWS, Z2_OFF, Z2_SZ)
    srd(a, SB, pBSP, 0, 4096)
    def hswz(dst, u, tmp):
        a(f"v_lshrrev_b32 v{tmp}, 1, v{u}"); a(f"v_lshrrev_b32 v{dst}, 2, v{u}"); a(f"v_xor_b32 v{tmp}, v{tmp}, v{dst}"); a(f"v_and_b32 v{tmp}, 1, v{tmp}")
        a(f"v_and_b32 v{dst}, 1, v{u}"); a(f"v_lshl_or_b32 v{tmp}, v{dst}, 1, v{tmp}"); a(f"v_and_b32 v{dst}, 4, v{u}"); a(f"v_or_b32 v{dst}, v{dst}, v{tmp}")
    for e in range(2):
        a(f"v_lshrrev_b32 v{vA}, 4, v{vLane}"); a(f"v_add_u32 v{vA}, {4*e}, v{vA}")
        hswz(vB_, vA, vC)
        a(f"v_and_b32 v{vA}, 7, v{vLane}"); a(f"v_xor_b32 v{vA}, v{vA}, v{vB_}"); a(f"v_lshlrev_b32 v{vA}, 4, v{vA}")
        a(f"v_lshrrev_b32 v{vB_}, 3, v{vLane}")
        a(f"s_lshl_b32 s{t2}, s{sTB}, 7"); a(f"s_lshl_b32 s{t3}, s{sW}, 4"); a(f"s_add_u32 s{t2}, s{t2}, s{t3}"); a(f"s_add_u32 s{t2}, s{t2}, {8*e}")
        a(f"v_add_u32 v{vB_}, s{t2}, v{vB_}"); a(f"v_lshlrev_b32 v{vB_}, 12, v{vB_}"); a(f"v_add_u32 v{vXs[e]}, v{vB_}, v{vA}")
    a(f"v_bfe_u32 v{vA}, v{vLane}, 2, 2"); a(f"v_lshlrev_b32 v{vA}, 8, v{vA}")
    a(f"v_lshrrev_b32 v{vB_}, 4, v{vLane}"); a(f"v_lshlrev_b32 v{vB_}, 6, v{vB_}"); a(f"v_add_u32 v{vA}, v{vA}, v{vB_}")
    a(f"v_and_b32 v{vB_}, 3, v{vLane}"); a(f"v_lshlrev_b32 v{vB_}, 4, v{vB_}"); a(f"v_add_u32 v{vA}, v{vA}, v{vB_}")
    a(f"s_mul_i32 s{t2}, s{sKH}, 112"); a(f"s_lshl_b32 s{t3}, s{sFB}, 3"); a(f"s_add_u32 s{t2}, s{t2}, s{t3}")
    a(f"s_and_b32 s{t3}, s{sW}, 3"); a(f"s_lshl_b32 s{t3}, s{t3}, 1"); a(f"s_add_u32 s{t2}, s{t2}, s{t3}"); a(f"s_lshl_b32 s{t2}, s{t2}, 10")
    a(f"v_add_u32 v{vZs[0]}, s{t2}, v{vA}"); a(f"v_add_u32 v{vZs[1]}, 1024, v{vZs[0]}")
    a(f"s_lshl_b32 s{sMx}, s{sW}, 11"); a(f"s_add_u32 s{sMz}, s{sMx}, 16384")
    a(f"s_mov_b32 s{sKX}, 0"); a(f"s_mov_b32 s{sKZ}, 0")
    vm = VmTracker()
    def dma(tile):
        slot = tile % R; out = []
        for e in range(2):
            vm.issue(("T", tile, e))
            out.append([f"s_add_u32 m0, s{sMx}, {slot*SLOT + e*1024}", f"buffer_load_dwordx4 v{vXs[e]}, s[{SX}:{SX+3}], s{sKX} offen lds"])
        for e in range(2):
            vm.issue(("T", tile, 2+e))
            out.append([f"s_add_u32 m0, s{sMz}, {slot*SLOT + e*1024}", f"buffer_load_dwordx4 v{vZs[e]}, s[{SZ}:{SZ+3}], s{sKZ} offen lds"])
        out[-1] += [f"s_add_u32 s{sKX}, s{sKX}, 128", f"s_add_u32 s{sKZ}, s{sKZ}, {2*112*1024}"]
        return out
    for g_ in dma(0):
        for l in g_: a(l)
    P.stamp(4, "pro")
    def epi_loads():
        o = []
        o += [f"s_lshl_b32 s{t2}, s{sTB}, 7", f"s_lshl_b32 s{t3}, s{sTH}, 6", f"s_add_u32 s{t2}, s{t2}, s{t3}", f"s_lshl_b32 s{t3}, s{sKH}, 5", f"s_add_u32 s{t2}, s{t2}, s{t3}",
              f"v_and_b32 v{vA}, 15, v{vLane}", f"v_add_u32 v{vA}, s{t2}, v{vA}",
              f"v_lshlrev_b32 v{vB_}, 2, v{vA}", f"v_add_u32 v{vB_}, {GATE_OFF}, v{vB_}", f"v_lshlrev_b32 v{vC}, 1, v{vA}"]
        g1 = list(o); o = []
        for ii in range(2):
            o.append(f"buffer_load_dword v{vG[ii]}, v{vB_}, s[{SWS}:{SWS+3}], 0 offen offset:{64*ii}"); vm.issue(("g", ii))
            o.append(f"buffer_load_ushort v{vBs[ii]}, v{vC}, s[{SB}:{SB+3}], 0 offen offset:{32*ii}"); vm.issue(("b", ii))
        g2 = list(o)
        o = [f"s_lshl_b32 s{t2}, s{sTB}, 2", f"s_lshl_b32 s{t3}, s{sTH}, 1", f"s_add_u32 s{t2}, s{t2}, s{t3}", f"s_add_u32 s{t2}, s{t2}, s{sKH}", f"s_mul_i32 s{t2}, s{t2}, 112",
             f"s_lshl_b32 s{t3}, s{sFB}, 3", f"s_add_u32 s{t2}, s{t2}, s{t3}", f"s_lshl_b32 s{t3}, s{sFH}, 2", f"s_add_u32 s{t2}, s{t2}, s{t3}",
             f"s_lshl_b32 s{t2}, s{t2}, 10", f"s_add_u32 s{t2}, s{t2}, {Z1_OFF}"]
        g3 = list(o); o = []
        for i2 in range(4):
            o.append(f"buffer_load_dwordx4 v[{Z1R+4*i2}:{Z1R+4*i2+3}], v{vL16}, s[{SWS}:{SWS+3}], s{t2} offen offset:{1024*i2}"); vm.issue(("z1", i2))
        return [g1, g2, g3, o]
    RLT, vRLt = 176, 15
    def rl_loads():
        o = [f"s_and_b32 s{t0}, s2, 7", f"s_mul_i32 s{t0}, s{t0}, 28", f"s_lshr_b32 s{t1}, s2, 3", f"s_add_u32 s{t0}, s{t0}, s{t1}",
             f"s_lshl_b32 s{t0}, s{t0}, 3", f"s_add_u32 s{t0}, s{t0}, s{sW}",
             f"s_lshr_b32 s{t1}, s{t0}, 2", f"s_and_b32 s{t2}, s{t0}, 3",
             f"s_cmp_lt_u32 s{t1}, 128",
             f"s_cselect_b32 s{SRL}, s{pWO}, s{pWOUT}", f"s_cselect_b32 s{SRL+1}, s{pWO+1}, s{pWOUT+1}",
             f"s_mov_b32 s{t3}, {1792*2048}", f"s_cselect_b32 s{SRL+2}, {1024*2048}, s{t3}", f"s_mov_b32 s{SRL+3}, {hex(SRD3)}",
             f"s_cselect_b32 s{t3}, 0, 128", f"s_sub_u32 s{t3}, s{t1}, s{t3}", f"s_lshl_b32 s{t3}, s{t3}, 14",
             f"s_lshl_b32 s{sRs}, s{t2}, 9", f"s_add_u32 s{sRs}, s{sRs}, s{t3}",
             f"s_mul_i32 s{sRd}, s{t2}, {4*44*8192}", f"s_lshl_b32 s{t3}, s{t1}, 10", f"s_add_u32 s{sRd}, s{sRd}, s{t3}", f"s_add_u32 s{sRd}, s{sRd}, {WT_OFF}",
             f"s_cmp_lt_u32 s{t0}, 1408", f"s_cselect_b32 s{sRs}, s{sRs}, 0x40000000", f"s_cselect_b32 s{sRd}, s{sRd}, 0x40000000"]
        v = [f"v_lshrrev_b32 v{vA}, 3, v{vLane}", f"v_lshrrev_b32 v{vB_}, 1, v{vA}", f"v_bfe_u32 v{vC}, v{vLane}, 1, 2", f"v_xor_b32 v{vC}, v{vC}, v{vB_}",
             f"v_lshlrev_b32 v{vC}, 5, v{vC}", f"v_and_b32 v{vB_}, 1, v{vLane}", f"v_lshlrev_b32 v{vB_}, 4, v{vB_}", f"v_add_u32 v{vC}, v{vC}, v{vB_}",
             f"v_lshlrev_b32 v{vA}, 11, v{vA}", f"v_add_u32 v{vRLt}, v{vA}, v{vC}"]
        ld = []
        for i in range(4):
            vm.issue(("RL", i))
            ld.append(f"buffer_load_dwordx4 v[{RLT+4*i}:{RLT+4*i+3}], v{vRLt}, s[{SRL}:{SRL+3}], s{sRs} offen offset:{128*i}")
        return [o, v, ld]
    a(f"v_and_b32 v{vA}, 15, v{vLane}"); a(f"v_lshrrev_b32 v{vD}, 1, v{vA}")
    hswz(vB_, vD, vC)
    a(f"v_lshrrev_b32 v{vC}, 4, v{vLane}")
    a(f"v_and_b32 v{vD}, 1, v{vC}"); a(f"v_lshlrev_b32 v{vD}, 1, v{vD}"); a(f"v_lshrrev_b32 v{vC}, 1, v{vC}"); a(f"v_or_b32 v{vC}, v{vC}, v{vD}")
    a(f"s_lshl_b32 s{t2}, s{sKH}, 2"); a(f"v_or_b32 v{vC}, s{t2}, v{vC}"); a(f"v_xor_b32 v{vC}, v{vC}, v{vB_}"); a(f"v_lshlrev_b32 v{vC}, 4, v{vC}")
    a(f"v_lshlrev_b32 v{vA}, 7, v{vA}"); a(f"v_add_u32 v{vA}, v{vA}, v{vC}"); a(f"s_lshl_b32 s{t2}, s{sTH}, 13"); a(f"v_add_u32 v{vXr[0]}, s{t2}, v{vA}")
    a(f"v_add_u32 v{vXr[1]}, 65536, v{vXr[0]}")
    a(f"v_lshrrev_b32 v{vA}, 5, v{vLane}"); a(f"v_lshlrev_b32 v{vA}, 9, v{vA}")
    a(f"v_and_b32 v{vB_}, 3, v{vLane}"); a(f"v_lshlrev_b32 v{vB_}, 6, v{vB_}"); a(f"v_add_u32 v{vA}, v{vA}, v{vB_}")
    a(f"v_bfe_u32 v{vB_}, v{vLane}, 2, 2"); a(f"v_lshlrev_b32 v{vB_}, 4, v{vB_}"); a(f"v_add_u32 v{vA}, v{vA}, v{vB_}")
    a(f"v_bfe_u32 v{vB_}, v{vLane}, 4, 1"); a(f"v_lshlrev_b32 v{vB_}, 3, v{vB_}"); a(f"v_add_u32 v{vA}, v{vA}, v{vB_}")
    a(f"s_lshl_b32 s{t2}, s{sKH}, 13"); a(f"s_lshl_b32 s{t3}, s{sFH}, 12"); a(f"s_add_u32 s{t2}, s{t2}, s{t3}"); a(f"s_add_u32 s{t2}, s{t2}, 16384")
    a(f"v_add_u32 v{vZr[0]}, s{t2}, v{vA}"); a(f"v_add_u32 v{vZr[1]}, 65536, v{vZr[0]}")
    for i in range(64): a(f"v_mov_b32 v{ACC+i}, 0")
    def reads(step):
        slot = step % R; hi = slot >> 1; off = (slot & 1)*SLOT
        xb = XF + (step % 2)*16; zb = ZF + (step % 2)*16
        out = [f"ds_read_b128 v[{xb+4*i}:{xb+4*i+3}], v{vXr[hi]} offset:{off + i*2048}" for i in range(4)]
        for i2 in range(4):
            for sec in range(2):
                r = zb + 4*i2 + 2*sec
                out.append(f"ds_read_b64_tr_b16 v[{r}:{r+1}], v{vZr[hi]} offset:{off + i2*1024 + sec*256}")
        return out
    def mfmas(step):
        xb = XF + (step % 2)*16; zb = ZF + (step % 2)*16; out = []
        for i2 in range(4):
            for i in (range(4) if i2 % 2 == 0 else range(3, -1, -1)):
                c = ACC + (i2*4+i)*4
                out.append(f"v_mfma_f32_16x16x32_bf16 v[{c}:{c+3}], v[{zb+4*i2}:{zb+4*i2+3}], v[{xb+4*i}:{xb+4*i+3}], v[{c}:{c+3}]")
        return out
    for g_ in dma(1):
        for l in g_: a(l)
    a(f"s_waitcnt vmcnt({vm.need([('T', 0, e) for e in range(4)])})")
    a("s_barrier")
    for l in reads(0): a(l)
    a(f"s_waitcnt vmcnt({vm.need([('T', 1, e) for e in range(4)])}) lgkmcnt(0)")
    a("s_barrier")
    P.stamp(1)
    steps = []; nxt = 2; EL = NS - R
    if defer_gelu: EL = NS - R - 2
    def gelu_ops():
        c1 = -2.0*0.7978845608028654*LOG2E; c3 = c1*0.044715
        vc1 = 15
        o = [f"v_mov_b32 v{vc1}, {f2h(c1)}", f"s_mov_b32 s{sC}, {f2h(c3)}"]
        for r0 in range(0, 16, 2):
            xs = [20, 21, 22, 23]; ts = [24, 25, 26, 27]
            for k in range(2):
                z = Z1R + r0 + k
                o += [f"v_lshlrev_b32 v{xs[2*k]}, 16, v{z}", f"v_and_b32 v{xs[2*k+1]}, 0xffff0000, v{z}"]
            o += [f"v_mul_f32 v{t}, v{x}, v{x}" for x, t in zip(xs, ts)]
            o += [f"v_fma_f32 v{t}, v{t}, s{sC}, v{vc1}" for x, t in zip(xs, ts)]
            o += [f"v_mul_f32 v{t}, v{t}, v{x}" for x, t in zip(xs, ts)]
            o += [f"v_exp_f32 v{t}, v{t}" for t in ts]
            o += [f"v_add_f32 v{t}, 1.0, v{t}" for t in ts]
            o += [f"v_rcp_f32 v{t}, v{t}" for t in ts]
            o += [f"v_mul_f32 v{x}, v{x}, v{t}" for x, t in zip(xs, ts)]
            o += [f"v_cvt_pk_bf16_f32 v{Z1R + r0 + k}, v{xs[2*k]}, v{xs[2*k+1]}" for k in range(2)]
        return o
    gops = gelu_ops() if defer_gelu else []
    G0s = NS - 4
    for s in range(NS):
        m = mfmas(s); nm = len(m)
        rd = reads(s+1) if s + 1 < NS else []
        dm = []
        cnt = 0
        if defer_gelu and s == G0s: z1_wait = vm.need([("z1", 3)])
        while nxt < NS and nxt <= s + R and cnt < 2:
            dm += dma(nxt); nxt += 1; cnt += 1
        slots = [[] for _ in range(nm)]
        for k, x in enumerate(rd): slots[min(nm-1, (k*(nm-3))//len(rd))].append(x)
        sp = 3 if len(dm) <= 5 else 2
        if place == "end" and len(dm) <= 5:
            for k, g_ in enumerate(dm): slots[nm-1] += [g_[0], "s_nop 0"] + g_[1:]
        else:
            p0 = 1 if (place == "early" or len(dm) > 5) else 8
            if p0 == 8: sp = 2
            for k, g_ in enumerate(dm):
                pos = p0 + sp*k
                slots[pos-1].append(g_[0]); slots[pos] = g_[1:] + slots[pos]
        if s == EL:
            for k, g_ in enumerate(epi_loads()): slots[(11 + k) if dm else (1 + 3*k)] += g_
        if defer_gelu and s >= G0s:
            per = -(-len(gops)//4); part = gops[(s-G0s)*per:(s-G0s+1)*per]
            if s == G0s: slots[0].append(f"s_waitcnt vmcnt({z1_wait})")
            for k, x in enumerate(part): slots[min(nm-1, 1 + (k*(nm-1))//len(part))].append(x)
        if rl_tail and s == EL + 1:
            for k, g_ in enumerate(rl_loads()): slots[1 + 4*k] += g_
        seq = []
        for k in range(nm): seq.append(m[k]); seq += slots[k]
        if s + 1 < NS:
            need = [("T", s+2, e) for e in range(4)] if s + 2 < NS else []
            seq.append(f"s_waitcnt vmcnt({vm.need(need)}) lgkmcnt(0)" if need else "s_waitcnt lgkmcnt(0)")
            seq.append("s_barrier")
        steps.append(seq)
    L0 = 2
    n_iter = (NS - R - L0)//R
    for s in range(L0):
        for l in steps[s]: a(l)
    fold_loop(a, steps, L0, n_iter, R, f"L_{name}_loop", sIT)
    for s in range(L0 + n_iter*R, NS):
        for l in steps[s]: a(l)
    P.stamp(2)
    acc = lambda i2, i: ACC + (i2*4+i)*4
    a(f"s_lshl_b32 s{t2}, s{sW}, 13"); a(f"v_add_u32 v{vA}, s{t2}, v{vL16}")
    a(f"s_xor_b32 s{t2}, s{sW}, 4"); a(f"s_lshl_b32 s{t2}, s{t2}, 13"); a(f"v_add_u32 v{vB_}, s{t2}, v{vL16}")
    KEEP = 32
    a(f"s_cmp_eq_u32 s{sKH}, 0")
    a(f"s_cbranch_scc0 L_{name}_k1")
    for kh in range(2):
        if kh == 1: a.label(f"L_{name}_k1")
        for i2 in range(4):
            for ii in range(2):
                r = acc(i2, 2*(1-kh)+ii)
                a(f"ds_write_b128 v{vA}, v[{r}:{r+3}] offset:{(i2*2+ii)*1024}")
        for i2 in range(4):
            for ii in range(2):
                r = acc(i2, 2*kh+ii); d = KEEP + (i2*2+ii)*4
                for q in range(4): a(f"v_mov_b32 v{d+q}, v{r+q}")
        if kh == 0: a(f"s_branch L_{name}_kj")
    a.label(f"L_{name}_kj")
    a("s_waitcnt lgkmcnt(0)")
    a("s_barrier")
    RX = 64
    for b in range(8): a(f"ds_read_b128 v[{RX+4*b}:{RX+4*b+3}], v{vB_} offset:{b*1024}")
    a(f"s_waitcnt vmcnt({vm.need([('z1', 3), ('g', 1), ('b', 1)])})")
    SS, SB2 = 20, 24
    for ii in range(2):
        a(f"v_sub_f32 v{SS+2*ii}, 1.0, v{vG[ii]}"); a(f"v_lshlrev_b32 v{vBs[ii]}, 16, v{vBs[ii]}"); a(f"v_mov_b32 v{SS+2*ii+1}, v{SS+2*ii}")
        a(f"v_mul_f32 v{SB2+2*ii}, v{vBs[ii]}, v{SS+2*ii}"); a(f"v_mov_b32 v{SB2+2*ii+1}, v{SB2+2*ii}")
    a("s_waitcnt lgkmcnt(0)")
    for b in range(8):
        for q in (0, 2):
            a(f"v_pk_add_f32 v[{KEEP+4*b+q}:{KEEP+4*b+q+1}], v[{KEEP+4*b+q}:{KEEP+4*b+q+1}], v[{RX+4*b+q}:{RX+4*b+q+1}]")
    TZ = 28
    for i2 in range(4):
        for ii in range(2):
            k = KEEP + (i2*2+ii)*4
            for q in range(2):
                z = Z1R + 4*i2 + 2*ii + q
                a(f"v_pk_fma_f32 v[{k+2*q}:{k+2*q+1}], v[{k+2*q}:{k+2*q+1}], v[{SS+2*ii}:{SS+2*ii+1}], v[{SB2+2*ii}:{SB2+2*ii+1}]")
                a(f"v_lshlrev_b32 v{TZ+2*q}, 16, v{z}"); a(f"v_and_b32 v{TZ+2*q+1}, 0xffff0000, v{z}")
                a(f"v_pk_mul_f32 v[{k+2*q}:{k+2*q+1}], v[{k+2*q}:{k+2*q+1}], v[{TZ+2*q}:{TZ+2*q+1}]")
    a(f"s_lshl_b32 s{t2}, s{sTB}, 3"); a(f"s_lshl_b32 s{t3}, s{sTH}, 2"); a(f"s_add_u32 s{t2}, s{t2}, s{t3}"); a(f"s_lshl_b32 s{t3}, s{sKH}, 1"); a(f"s_add_u32 s{t2}, s{t2}, s{t3}")
    a(f"s_mul_i32 s{t2}, s{t2}, {NKB}"); a(f"s_lshl_b32 s{t3}, s{sFB}, 2"); a(f"s_add_u32 s{t2}, s{t2}, s{t3}"); a(f"s_lshl_b32 s{t3}, s{sFH}, 1"); a(f"s_add_u32 s{t2}, s{t2}, s{t3}")
    a(f"s_add_u32 s{t2}, s{t2}, 32"); a(f"s_lshl_b32 s{t2}, s{t2}, 10"); a(f"s_add_u32 s{t2}, s{t2}, {ACAT_OFF}")
    O = 64
    for ii in range(2):
        for pr in range(2):
            r = O + (ii*2+pr)*4
            pack8(a, r, KEEP + ((2*pr)*2+ii)*4, KEEP + ((2*pr+1)*2+ii)*4)
            a(f"buffer_store_dwordx4 v[{r}:{r+3}], v{vL16}, s[{SWS}:{SWS+3}], s{t2} offen offset:{pr*1024} {st}")
        if ii == 0: a(f"s_add_u32 s{t2}, s{t2}, {NKB*1024}")
    if rl_tail:
        a("s_waitcnt vmcnt(4)")
        for i in range(4):
            a(f"buffer_store_dwordx4 v[{RLT+4*i}:{RLT+4*i+3}], v{vL16}, s[{SWS}:{SWS+3}], s{sRd} offen {st}")
            a(f"s_add_u32 s{sRd}, s{sRd}, {44*8192}")
    a(f"s_branch L_{name}_fin")

    a.label(f"L_{name}_att")
    sH = sTB
    a(f"s_lshl_b32 s{t0}, s{t0}, 2"); a(f"s_sub_u32 s{t1}, s{t1}, 28"); a(f"s_add_u32 s{sH}, s{t0}, s{t1}")
    srd(a, SB, pPHI, 0, 65536)
    WPHI, KVS = 0, 2048
    a(f"s_and_b32 s{t0}, s{sW}, 1"); a(f"s_lshl_b32 s{t0}, s{t0}, 10"); a(f"s_lshl_b32 s{t1}, s{sH}, 11"); a(f"s_add_u32 s{t1}, s{t1}, s{t0}")
    a(f"s_add_u32 m0, s{t0}, {WPHI}")
    a(f"buffer_load_dwordx4 v{vL16}, s[{SB}:{SB+3}], s{t1} offen lds")
    QN = 2 if qall else 4
    QR = 112
    GR = 128
    QL, GL_ = 8192, 8192 + 131072
    vQa, vGa = 23, 29
    sQ, sGo, sO = sKX, sKZ, sMx
    a(f"s_lshl_b32 s{sQ}, s{sH}, 7"); a(f"s_lshl_b32 s{t0}, s{sW}, 4"); a(f"s_add_u32 s{sQ}, s{sQ}, s{t0}"); a(f"s_lshl_b32 s{sQ}, s{sQ}, 10"); a(f"s_add_u32 s{sQ}, s{sQ}, {QBUF_OFF}")
    a(f"s_lshl_b32 s{sGo}, s{sW}, 10"); a(f"s_add_u32 s{sGo}, s{sGo}, {GATE_OFF}")
    a(f"v_and_b32 v{vD}, 15, v{vLane}"); a(f"v_lshlrev_b32 v{vD}, 2, v{vD}")
    a(f"s_lshl_b32 s{sO}, s{sW}, 4"); a(f"s_mul_i32 s{sO}, s{sO}, {NKB}"); a(f"s_add_u32 s{sO}, s{sO}, s{sH}"); a(f"s_lshl_b32 s{sO}, s{sO}, 10"); a(f"s_add_u32 s{sO}, s{sO}, {ACAT_OFF}")
    a(f"s_cmp_ge_u32 s{sW}, 6")
    a(f"s_cbranch_scc1 L_{name}_nokv")
    a(f"s_cmp_ge_u32 s{sW}, 3"); a(f"s_cselect_b32 s{t0}, 1, 0"); a(f"s_mul_i32 s{t1}, s{t0}, 3"); a(f"s_sub_u32 s{t1}, s{sW}, s{t1}")
    a(f"s_mul_i32 s{t0}, s{t0}, 6"); a(f"s_add_u32 s{t0}, s{t0}, s{t1}")
    a(f"s_mul_i32 s{t1}, s{sH}, 12"); a(f"s_add_u32 s{t0}, s{t0}, s{t1}"); a(f"s_lshl_b32 s{t0}, s{t0}, 10"); a(f"s_add_u32 s{t0}, s{t0}, {KVP_OFF}")
    KR = 32
    for mi in range(8):
        for fb in range(2):
            r = KR + (mi*2+fb)*4
            a(f"buffer_load_dwordx4 v[{r}:{r+3}], v{vL16}, s[{SWS}:{SWS+3}], s{t0} offen offset:{fb*3072}")
        a(f"s_add_u32 s{t0}, s{t0}, {32*12*1024}")
    a("s_waitcnt vmcnt(0)")
    for hlf in (4, 2, 1):
        for mi in range(hlf):
            for q in range(0, 8, 2):
                r = KR + mi*8 + q
                a(f"v_pk_add_f32 v[{r}:{r+1}], v[{r}:{r+1}], v[{r+8*hlf}:{r+8*hlf+1}]")
    pack8(a, KR+8, KR, KR+4)
    a(f"s_lshl_b32 s{t0}, s{sW}, 10"); a(f"s_add_u32 s{t0}, s{t0}, {KVS}"); a(f"v_add_u32 v{vA}, s{t0}, v{vL16}")
    a(f"ds_write_b128 v{vA}, v[{KR+8}:{KR+11}]")
    a.label(f"L_{name}_nokv")
    vq = VmTracker()
    RLB, vRL = 152, 20
    if relayout:
        a(f"s_lshl_b32 s{t0}, s{sH}, 3"); a(f"s_add_u32 s{t0}, s{t0}, s{sW}")
        a(f"s_and_b32 s{sRn}, s{t0}, 15"); a(f"s_lshr_b32 s{t0}, s{t0}, 4"); a(f"s_mul_i32 s{sRg}, s{t0}, 22")
        a(f"s_mul_i32 s{sRd}, s{sRn}, {44*8192}"); a(f"s_lshl_b32 s{t0}, s{sRg}, 10"); a(f"s_add_u32 s{sRd}, s{sRd}, s{t0}"); a(f"s_add_u32 s{sRd}, s{sRd}, {WT_OFF}")
        a(f"s_lshl_b32 s{sRn}, s{sRn}, 7"); a(f"s_mov_b32 s{sRi}, 0"); a(f"s_mov_b32 s{SRL+3}, {hex(SRD3)}")
        a(f"v_lshrrev_b32 v{vA}, 3, v{vLane}"); a(f"v_lshrrev_b32 v{vB_}, 1, v{vA}")
        a(f"v_bfe_u32 v{vC}, v{vLane}, 1, 2"); a(f"v_xor_b32 v{vC}, v{vC}, v{vB_}"); a(f"v_lshlrev_b32 v{vC}, 5, v{vC}")
        a(f"v_and_b32 v{vB_}, 1, v{vLane}"); a(f"v_lshlrev_b32 v{vB_}, 4, v{vB_}"); a(f"v_add_u32 v{vC}, v{vC}, v{vB_}")
        a(f"v_lshlrev_b32 v{vA}, 11, v{vA}"); a(f"v_add_u32 v{vRL}, v{vA}, v{vC}")
    def rl_load(n):
        o = []
        for bi in range(2):
            b = RLB + 8*(n % 2) + 4*bi
            vq.issue(("RL", n, bi))
            o += [f"s_cmp_lt_u32 s{sRg}, 128",
                  f"s_cselect_b32 s{SRL}, s{pWO}, s{pWOUT}", f"s_cselect_b32 s{SRL+1}, s{pWO+1}, s{pWOUT+1}",
                  f"s_cselect_b32 s{t0}, 0, 128", f"s_mov_b32 s{t1}, {1792*2048}", f"s_cselect_b32 s{SRL+2}, {1024*2048}, s{t1}",
                  f"s_sub_u32 s{t0}, s{sRg}, s{t0}", f"s_lshl_b32 s{t0}, s{t0}, 14", f"s_add_u32 s{t0}, s{t0}, s{sRn}",
                  f"s_cmp_lt_u32 s{sRi}, 22", f"s_cselect_b32 s{t0}, s{t0}, 0x40000000",
                  f"buffer_load_dwordx4 v[{b}:{b+3}], v{vRL}, s[{SRL}:{SRL+3}], s{t0} offen",
                  f"s_add_u32 s{sRg}, s{sRg}, 1", f"s_add_u32 s{sRi}, s{sRi}, 1"]
        return o
    def rl_store(n):
        o = [f"s_waitcnt vmcnt({vq.need([('RL', n, 1)])})"]
        for bi in range(2):
            b = RLB + 8*(n % 2) + 4*bi
            vq.issue(("RS", n, bi))
            if 2*n + bi < 22 or True:
                o += [f"s_cmp_lt_u32 s{sRs}, 22", f"s_cselect_b32 s{t0}, s{sRd}, 0x40000000",
                      f"buffer_store_dwordx4 v[{b}:{b+3}], v{vL16}, s[{SWS}:{SWS+3}], s{t0} offen {st}",
                      f"s_add_u32 s{sRd}, s{sRd}, 1024", f"s_add_u32 s{sRs}, s{sRs}, 1"]
        return o
    def qstage():
        o = [f"s_lshl_b32 s{t2}, s{sW}, 14", f"s_add_u32 s{t2}, s{t2}, {QL}"]
        for n in range(16):
            vq.issue(("q", n))
            o += [f"s_add_u32 m0, s{t2}, {n*1024}", "s_nop 0", f"buffer_load_dwordx4 v{vL16}, s[{SWS}:{SWS+3}], s{sQ} offen lds", f"s_add_u32 s{sQ}, s{sQ}, 1024"]
            if n == 0:
                vq.issue("gall")
                o += [f"s_lshl_b32 s{t3}, s{sW}, 10", f"s_add_u32 m0, s{t3}, {GL_}", "s_nop 0", f"buffer_load_dwordx4 v{vL16}, s[{SWS}:{SWS+3}], s{sGo} offen lds"]
        o += [f"v_add_u32 v{vQa}, s{t2}, v{vL16}", f"s_lshl_b32 s{t3}, s{sW}, 10", f"s_add_u32 s{t3}, s{t3}, {GL_}", f"v_add_u32 v{vGa}, s{t3}, v{vD}"]
        return o
    def qread(n):
        return [f"ds_read_b128 v[{QR+4*(n%QN)}:{QR+4*(n%QN)+3}], v{vQa}", f"ds_read_b32 v{GR+(n%QN)}, v{vGa}",
                f"v_add_u32 v{vQa}, 1024, v{vQa}", f"v_add_u32 v{vGa}, 64, v{vGa}"]
    def qload(n):
        vq.issue(("q", n)); vq.issue(("g", n))
        return [f"buffer_load_dwordx4 v[{QR+4*(n%QN)}:{QR+4*(n%QN)+3}], v{vL16}, s[{SWS}:{SWS+3}], s{sQ} offen",
                f"buffer_load_dword v{GR+(n%QN)}, v{vD}, s[{SWS}:{SWS+3}], s{sGo} offen",
                f"s_add_u32 s{sQ}, s{sQ}, 1024", f"s_add_u32 s{sGo}, s{sGo}, 64"]
    a("s_waitcnt vmcnt(0) lgkmcnt(0)")
    if relayout: a(f"s_mov_b32 s{sRs}, 0")
    if qall:
        for l in qstage(): a(l)
    else:
        for n in range(3):
            for l in qload(n): a(l)
    if w_touch:
        a(f"s_lshl_b32 s{t0}, s{sH}, 3"); a(f"s_add_u32 s{t0}, s{t0}, s{sW}"); a(f"s_lshl_b32 s{t0}, s{t0}, 13")
        a(f"v_lshlrev_b32 v22, 7, v{vLane}")
        srd(a, SRL, pWO, 0, 1024*2048)
        a(f"buffer_load_dword v21, v22, s[{SRL}:{SRL+3}], s{t0} offen")
        vq.issue("wt0")
        srd(a, SRL, pWOUT, 0, 1792*2048)
        a(f"buffer_load_dword v21, v22, s[{SRL}:{SRL+3}], s{t0} offen"); vq.issue("wt1")
        a(f"s_add_u32 s{t0}, s{t0}, {256*8192}")
        a(f"buffer_load_dword v21, v22, s[{SRL}:{SRL+3}], s{t0} offen"); vq.issue("wt2")
    a("s_barrier")
    P.stamp(1)
    WP = 32; KV = 40
    a(f"v_lshrrev_b32 v{vA}, 2, v{vLane}"); a(f"v_lshlrev_b32 v{vA}, 6, v{vA}"); a(f"v_and_b32 v{vB_}, 3, v{vLane}"); a(f"v_lshlrev_b32 v{vB_}, 3, v{vB_}"); a(f"v_add_u32 v{vA}, v{vA}, v{vB_}")
    for fb in range(2):
        for sec in range(2):
            r = WP + 4*fb + 2*sec
            a(f"ds_read_b64_tr_b16 v[{r}:{r+1}], v{vA} offset:{WPHI + sec*1024 + fb*32}")
    for b in range(6): a(f"ds_read_b128 v[{KV+4*b}:{KV+4*b+3}], v{vL16} offset:{KVS + b*1024}")
    a("s_waitcnt lgkmcnt(0)")
    if qall:
        a(f"s_waitcnt vmcnt({vq.need([('q', 0), 'gall'])})")
        for l in qread(0): a(l)
    LG, PH, TMP, NUM, OUT = 64, 72, 80, 132, 144
    ONES, EPS, CPM = 24, 28, 16
    if mfsum:
        for i in range(4): a(f"v_mov_b32 v{ONES+i}, 0x3f803f80")
        a(f"v_mov_b32 v{EPS}, {f2h(1e-6)}")
    blocks = []
    for n in range(16):
        seq = Asm()
        if relayout and 2 <= n < 14:
            for l in rl_store(n - 2): seq(l)
        if n + 3 < 16 and not qall:
            for l in qload(n + 3): seq(l)
        if relayout and n < 12:
            for l in rl_load(n): seq(l)
        if qall:
            if n + 1 < 16:
                seq(f"s_waitcnt vmcnt({vq.need([('q', n+1), 'gall'])})")
                for l in qread(n + 1)[:2]: seq(l)
                for l in qread(n + 1)[2:]: seq(l)
                seq("s_waitcnt lgkmcnt(2)")
            else: seq("s_waitcnt lgkmcnt(0)")
        else:
            seq(f"s_waitcnt vmcnt({vq.need([('q', n), ('g', n)])})")
        q = QR + 4*(n % QN)
        for fb in range(2):
            seq(f"v_mfma_f32_16x16x32_bf16 v[{LG+4*fb}:{LG+4*fb+3}], v[{WP+4*fb}:{WP+4*fb+3}], v[{q}:{q+3}], 0")
        if not mfsum:
            softmax_pm(seq, LG, PH, TMP, sC)
            for db in range(3):
                d = NUM + 4*db
                seq(f"v_mfma_f32_16x16x32_bf16 v[{d}:{d+3}], v[{KV+4*db}:{KV+4*db+3}], v[{PH}:{PH+3}], 0")
            for db in range(3):
                d = NUM + 4*db
                seq(f"v_mfma_f32_16x16x32_bf16 v[{d}:{d+3}], v[{KV+12+4*db}:{KV+12+4*db+3}], v[{PH+4}:{PH+7}], v[{d}:{d+3}]")
            seq(f"v_add_f32 v{NUM+8}, {f2h(1e-6)}, v{NUM+8}")
            seq(f"v_rcp_f32 v{NUM+8}, v{NUM+8}")
            seq(f"v_mul_f32 v{NUM+8}, v{NUM+8}, v{GR+(n%QN)}")
            seq(f"v_mov_b32 v{NUM+9}, v{NUM+8}")
            for qq in range(0, 8, 2):
                seq(f"v_pk_mul_f32 v[{NUM+qq}:{NUM+qq+1}], v[{NUM+qq}:{NUM+qq+1}], v[{NUM+8}:{NUM+9}]")
        else:
            softmax_exp(seq, LG, PH, TMP)
            NP, NM = TMP, TMP + 16
            for db in range(4):
                av = (KV + 4*db) if db < 3 else ONES
                seq(f"v_mfma_f32_16x16x32_bf16 v[{NP+4*db}:{NP+4*db+3}], v[{av}:{av+3}], v[{PH}:{PH+3}], 0")
            for db in range(4):
                av = (KV + 12 + 4*db) if db < 3 else ONES
                seq(f"v_mfma_f32_16x16x32_bf16 v[{NM+4*db}:{NM+4*db+3}], v[{av}:{av+3}], v[{PH+4}:{PH+7}], 0")
            rp, rm, dn = NP+12, NM+12, NP+8
            seq(f"v_rcp_f32 v{rp}, v{rp}"); seq(f"v_rcp_f32 v{rm}, v{rm}")
            seq(f"v_fma_f32 v{dn}, v{dn}, v{rp}, v{EPS}")
            seq(f"v_fma_f32 v{dn}, v{NM+8}, v{rm}, v{dn}")
            seq(f"v_rcp_f32 v{dn}, v{dn}")
            seq(f"v_mul_f32 v{dn}, v{dn}, v{GR+(n%QN)}")
            seq(f"v_mul_f32 v{rp}, v{rp}, v{dn}"); seq(f"v_mul_f32 v{rp+1}, v{rp}, 1.0"); seq(f"v_mul_f32 v{rm}, v{rm}, v{dn}"); seq(f"v_mul_f32 v{rm+1}, v{rm}, 1.0")
            for qq in range(0, 8, 2):
                seq(f"v_pk_mul_f32 v[{NUM+qq}:{NUM+qq+1}], v[{NP+qq}:{NP+qq+1}], v[{rp}:{rp+1}]")
            for qq in range(0, 8, 2):
                seq(f"v_pk_fma_f32 v[{NUM+qq}:{NUM+qq+1}], v[{NM+qq}:{NM+qq+1}], v[{rm}:{rm+1}], v[{NUM+qq}:{NUM+qq+1}]")
        o = OUT + 4*(n % 2)
        pack8(seq, o, NUM, NUM+4)
        vq.issue(("o", n))
        seq(f"buffer_store_dwordx4 v[{o}:{o+3}], v{vL16}, s[{SWS}:{SWS+3}], s{sO} offen {st}")
        seq(f"s_add_u32 s{sO}, s{sO}, {NKB*1024}")
        blocks.append([l.strip() for l in seq.lines])
    if qall:
        for n in range(2):
            for l in blocks[n]: a(l)
        lo = 2; hi = 12 if relayout else 14
        fold_loop(a, blocks, lo, (hi - lo)//2, 2, f"L_{name}_aloop", sIT)
        for n in range(lo + (hi - lo)//2*2, 16):
            for l in blocks[n]: a(l)
    else:
        if relayout:
            for n in range(4):
                for l in blocks[n]: a(l)
            fold_loop(a, blocks, 4, 2, 4, f"L_{name}_aloop", sIT)
        else:
            fold_loop(a, blocks, 0, 3, 4, f"L_{name}_aloop", sIT)
        for n in range(12, 16):
            for l in blocks[n]: a(l)
    P.stamp(2)
    a.label(f"L_{name}_fin")
    if prof: a("s_waitcnt vmcnt(0)")
    P.stamp(5)
    P.dump(vLane, sW)
    a.label(f"L_{name}_end")
    a("s_endpgm")
    return kernel_text(name, a, nv=192, ns=(102 if prof else 64), ao=192), (max(R*SLOT, 8192 + 131072 + 8192) if qall else R*SLOT)
```

```python
from asmlib import *
from common import *
OOB = 0x40000000

def gen_s3(name="s3_kernel", R=4, dist=4, PF=6, prof=False, pmode="epi", pf=False, n0=2, catch=3, ost="sc1", wlate=False):
    a = Asm()
    P = Prof(a, prof); P.mode = pmode
    NS = NKB // 2
    D = R; U = R
    sOUT, pWS = 28, 34
    SA, SW, SO = 8, 12, 16
    sW, sTQ, sKH, sIT, sAoff, sWoff, sM0, sTB, sNB = 20, 21, 22, 23, 24, 25, 27, 32, 33
    t0, t1, t2 = 36, 37, 38
    vLane, vT0, vT1, vT2 = 1, 2, 3, 4
    vA0, vA1, vWs = 5, 6, 7
    vB = [8, 9, 10, 11]
    ACC = 16
    WF = 48
    AR = 80
    NV = AR + 8*D
    a(f"s_cmp_ge_u32 s2, 256")
    a(f"s_cbranch_scc1 L_{name}_end")
    P.stamp(0)
    a(f"s_load_dwordx2 s[{sOUT}:{sOUT+1}], s[0:1], {KA_OUT}")
    a(f"s_load_dwordx2 s[{pWS}:{pWS+1}], s[0:1], {KA_WS}")
    a(f"v_lshrrev_b32 v{vT0}, 6, v0")
    a(f"v_and_b32 v{vLane}, 63, v0")
    a(f"v_readfirstlane_b32 s{sW}, v{vT0}")
    a(f"s_and_b32 s3, s2, 7"); a(f"s_lshr_b32 s{t0}, s2, 3")
    a(f"s_lshr_b32 s{t1}, s3, 1"); a(f"s_lshl_b32 s{t1}, s{t1}, 2"); a(f"s_and_b32 s{t2}, s{t0}, 3"); a(f"s_add_u32 s{sTB}, s{t1}, s{t2}")
    a(f"s_and_b32 s{t1}, s3, 1"); a(f"s_lshl_b32 s{t1}, s{t1}, 3"); a(f"s_lshr_b32 s{t2}, s{t0}, 2"); a(f"s_add_u32 s{sNB}, s{t1}, s{t2}")
    if pf:
        a(f"s_cmp_eq_u32 s{sW}, 8")
        a(f"s_cbranch_scc1 L_{name}_pf")
    a(f"s_and_b32 s{sTQ}, s{sW}, 3"); a(f"s_lshr_b32 s{sKH}, s{sW}, 2")
    a(f"s_lshl_b32 s{t0}, s{sTB}, 3"); a(f"s_lshl_b32 s{t1}, s{sTQ}, 1"); a(f"s_add_u32 s{t0}, s{t0}, s{t1}")
    a(f"s_mul_i32 s{t0}, s{t0}, {NKB}"); a(f"s_add_u32 s{t0}, s{t0}, s{sKH}"); a(f"s_lshl_b32 s{t0}, s{t0}, 10")
    a(f"v_lshlrev_b32 v{vT0}, 4, v{vLane}")
    a(f"v_add_u32 v{vA0}, s{t0}, v{vT0}")
    a(f"v_add_u32 v{vA1}, {NKB*1024}, v{vA0}")
    a(f"s_mul_i32 s{t0}, s{sNB}, {44*8192}"); a(f"s_lshl_b32 s{sM0}, s{sW}, 10"); a(f"s_add_u32 s{t0}, s{t0}, s{sM0}")
    a(f"v_add_u32 v{vWs}, s{t0}, v{vT0}")
    a(f"s_mov_b32 s{sAoff}, 0"); a(f"s_mov_b32 s{sWoff}, 0")
    a("s_waitcnt lgkmcnt(0)")
    P.stamp(3, "pro")
    srd(a, SA, pWS, ACAT_OFF, ACAT_SZ)
    srd(a, SW, pWS, WT_OFF, WT_SZ)
    vm = VmTracker()
    def dma(tile):
        vm.issue(("W", tile))
        return [f"s_add_u32 m0, s{sM0}, {(tile % R)*8192}",
                f"buffer_load_dwordx4 v{vWs}, s[{SW}:{SW+3}], s{sWoff} offen lds",
                f"s_add_u32 s{sWoff}, s{sWoff}, 8192"]
    def aload(step):
        r = AR + (step % D)*8
        vm.issue(("A", step, 0)); vm.issue(("A", step, 1))
        return [f"buffer_load_dwordx4 v[{r}:{r+3}], v{vA0}, s[{SA}:{SA+3}], s{sAoff} offen",
                f"buffer_load_dwordx4 v[{r+4}:{r+7}], v{vA1}, s[{SA}:{SA+3}], s{sAoff} offen",
                f"s_add_u32 s{sAoff}, s{sAoff}, 2048"]
    if pf: a("s_barrier")
    for i in range(n0):
        for l in dma(i): a(l)
        for l in aload(i): a(l)
    P.stamp(4, "pro")
    a(f"v_lshrrev_b32 v{vT0}, 2, v{vLane}"); a(f"v_bfe_u32 v{vT1}, v{vLane}, 3, 2"); a(f"v_lshlrev_b32 v{vT0}, 7, v{vT0}")
    a(f"v_and_b32 v{vT2}, 3, v{vLane}"); a(f"v_lshlrev_b32 v{vT2}, 3, v{vT2}"); a(f"v_add_u32 v{vT0}, v{vT0}, v{vT2}")
    a(f"s_lshl_b32 s{t0}, s{sKH}, 12"); a(f"v_add_u32 v{vT0}, s{t0}, v{vT0}")
    for j in range(4):
        a(f"v_xor_b32 v{vT2}, {j}, v{vT1}"); a(f"v_lshlrev_b32 v{vT2}, 5, v{vT2}"); a(f"v_add_u32 v{vB[j]}, v{vT0}, v{vT2}")
    for i in range(32): a(f"v_mov_b32 v{ACC+i}, 0")
    srd(a, SO, sOUT, 0, 2048*2048)
    def wreads(tile):
        base = WF + (tile % 2)*16
        return [f"ds_read_b64_tr_b16 v[{base+4*j+2*sec}:{base+4*j+2*sec+1}], v{vB[j]} offset:{(tile % R)*8192 + sec*2048}" for j in range(4) for sec in range(2)]
    def mfmas(step):
        wb = WF + (step % 2)*16; ab = AR + (step % D)*8
        return [f"v_mfma_f32_16x16x32_bf16 v[{ACC+(T*4+j)*4}:{ACC+(T*4+j)*4+3}], v[{wb+4*j}:{wb+4*j+3}], v[{ab+4*T}:{ab+4*T+3}], v[{ACC+(T*4+j)*4}:{ACC+(T*4+j)*4+3}]" for T in range(2) for j in (range(4) if T == 0 else range(3, -1, -1))]
    a(f"s_waitcnt vmcnt({vm.need([('W', 0)])})")
    a("s_barrier")
    for l in wreads(0): a(l)
    a(f"s_waitcnt vmcnt({vm.need([('W', 1), ('A', 0, 0), ('A', 0, 1)])}) lgkmcnt(0)")
    a("s_barrier")
    P.stamp(1)
    nxt = n0; steps = []; first_steady = None
    for s in range(NS):
        m = mfmas(s)
        rd = wreads(s + 1) if s + 1 < NS else []
        tiles = []
        while nxt < NS and nxt <= s + dist and len(tiles) < catch:
            tiles.append(nxt); nxt += 1
        early = [t for t in tiles if t - D < s]; late = [t for t in tiles if t - D == s]
        assert all(t - D <= s for t in tiles)
        seq = [m[0]]
        groups = []
        for t in tiles: groups.append(dma(t))
        late_g = []
        if wlate and len(groups) == 1: late_g = groups; groups = []
        k = 0
        seq += rd[0:2]
        for g_ in groups[:1]: seq += [g_[0], m[1]] + g_[1:]
        if not groups: seq.append(m[1])
        seq += rd[2:4]
        seq.append(m[2]); seq += rd[4:6]
        if len(groups) > 1: seq += [groups[1][0], m[3]] + groups[1][1:]
        else: seq.append(m[3])
        seq += rd[6:8]
        if len(groups) > 2: seq += [groups[2][0], m[4]] + groups[2][1:] + m[5:8]
        else: seq += m[4:8]
        assert len(groups) <= 3
        for g_ in late_g: seq += [g_[0], "s_nop 0"] + g_[1:]
        for t in tiles: seq += aload(t)
        need = []
        if s + 2 < NS: need.append(("W", s + 2))
        if s + 1 < NS: need += [("A", s + 1, 0), ("A", s + 1, 1)]
        if need:
            seq.append(f"s_waitcnt vmcnt({min(63, vm.need(need))}) lgkmcnt(0)")
            seq.append("s_barrier")
        steps.append(seq)
        if first_steady is None and len(tiles) == 1 and tiles[0] == s + dist: first_steady = s
    L0 = first_steady
    last_issue = NS - 1 - dist
    n_iter = (last_issue + 1 - L0) // R
    for s in range(L0):
        for l in steps[s]: a(l)
    fold_loop(a, steps, L0, n_iter, R, f"L_{name}_loop", sIT)
    for s in range(L0 + n_iter*R, NS):
        for l in steps[s]: a(l)
    P.stamp(2)
    RS = 272
    a(f"v_and_b32 v{vT0}, 15, v{vLane}")
    a(f"s_lshl_b32 s{t0}, s{sTQ}, 5"); a(f"s_lshl_b32 s{t1}, s{sKH}, 7"); a(f"s_add_u32 s{t0}, s{t0}, s{t1}")
    a(f"v_add_u32 v{vT0}, s{t0}, v{vT0}"); a(f"v_mul_u32_u24 v{vT0}, {RS}, v{vT0}")
    a(f"v_lshrrev_b32 v{vT1}, 4, v{vLane}"); a(f"v_lshlrev_b32 v{vT1}, 4, v{vT1}"); a(f"v_add_u32 v{vT0}, v{vT0}, v{vT1}")
    for T in range(2):
        for j in range(4):
            c = ACC + (T*4+j)*4
            a(f"ds_write_b128 v{vT0}, v[{c}:{c+3}] offset:{T*16*RS + 64*j}")
    a(f"v_lshrrev_b32 v{vT1}, 3, v{vLane}"); a(f"s_lshl_b32 s{t0}, s{sW}, 4"); a(f"v_add_u32 v{vT1}, s{t0}, v{vT1}")
    a(f"v_mul_u32_u24 v{vT2}, {RS}, v{vT1}"); a(f"v_and_b32 v{vT0}, 7, v{vLane}"); a(f"v_lshlrev_b32 v{vA0}, 5, v{vT0}"); a(f"v_add_u32 v{vT2}, v{vT2}, v{vA0}")
    a(f"s_lshl_b32 s{t0}, s{sTB}, 7"); a(f"v_add_u32 v{vT1}, s{t0}, v{vT1}"); a(f"v_lshlrev_b32 v{vT1}, 11, v{vT1}")
    a(f"v_lshlrev_b32 v{vT0}, 4, v{vT0}"); a(f"v_add_u32 v{vT1}, v{vT1}, v{vT0}"); a(f"s_lshl_b32 s{t0}, s{sNB}, 7"); a(f"v_add_u32 v{vT1}, s{t0}, v{vT1}")
    a("s_waitcnt lgkmcnt(0)")
    a("s_barrier")
    X = 48
    for p in range(2):
        for h in range(2):
            for q in range(2):
                r = X + p*16 + h*8 + q*4
                a(f"ds_read_b128 v[{r}:{r+3}], v{vT2} offset:{p*8*RS + h*128*RS + q*16}")
    for p in range(2):
        a(f"s_waitcnt lgkmcnt({4 if p == 0 else 0})")
        b = X + p*16
        for i in range(0, 8, 2):
            a(f"v_pk_add_f32 v[{b+i}:{b+i+1}], v[{b+i}:{b+i+1}], v[{b+8+i}:{b+9+i}]")
        for i in range(4):
            a(f"v_cvt_pk_bf16_f32 v{b+8+i}, v{b+2*i}, v{b+2*i+1}")
        a(f"buffer_store_dwordx4 v[{b+8}:{b+11}], v{vT1}, s[{SO}:{SO+3}], 0 offen {ost}")
        if p == 0: a(f"v_add_u32 v{vT1}, {8*2048}, v{vT1}")
    if prof: a("s_waitcnt vmcnt(0)")
    P.stamp(5)
    P.dump(vLane, sW)
    a("s_endpgm")
    if pf:
        a.label(f"L_{name}_pf")
        a(f"s_lshr_b32 s{t0}, s2, 3"); a(f"s_and_b32 s{t1}, s{t0}, 3"); a(f"s_lshr_b32 s{t0}, s{t0}, 2")
        a(f"v_bfe_u32 v{vT0}, v{vLane}, 3, 1")
        a(f"s_lshl_b32 s{t2}, s{sTB}, 3"); a(f"s_add_u32 s{t2}, s{t2}, s{t0}"); a(f"s_mul_i32 s{t2}, s{t2}, {NKB}")
        a(f"v_add_u32 v{vT0}, s{t2}, v{vT0}"); a(f"v_lshlrev_b32 v{vT0}, 10, v{vT0}")
        a(f"v_and_b32 v{vT1}, 7, v{vLane}"); a(f"v_lshlrev_b32 v{vT1}, 7, v{vT1}"); a(f"v_add_u32 v{vT0}, v{vT0}, v{vT1}")
        a(f"v_add_u32 v{vT0}, {ACAT_OFF}, v{vT0}")
        a(f"s_mul_i32 s{t2}, s{sNB}, {44*8192}"); a(f"s_lshl_b32 s{t1}, s{t1}, 11"); a(f"s_add_u32 s{t2}, s{t2}, s{t1}"); a(f"s_add_u32 s{t2}, s{t2}, {WT_OFF}")
        a(f"v_and_b32 v{vT1}, 15, v{vLane}"); a(f"v_lshlrev_b32 v{vT1}, 7, v{vT1}"); a(f"v_add_u32 v{vT1}, s{t2}, v{vT1}")
        a(f"v_cmp_gt_u32 vcc, 16, v{vLane}"); a(f"v_cndmask_b32 v{vA0}, v{vT1}, v{vT0}, vcc")
        a(f"v_mov_b32 v{vT0}, 2048"); a(f"v_mov_b32 v{vT1}, 8192"); a(f"v_cndmask_b32 v{vA1}, v{vT1}, v{vT0}, vcc")
        a(f"v_cmp_gt_u32 vcc, 32, v{vLane}"); a(f"v_mov_b32 v{vT0}, {hex(OOB)}"); a(f"v_cndmask_b32 v{vA0}, v{vT0}, v{vA0}, vcc")
        a(f"v_mov_b32 v{vT0}, 0"); a(f"v_cndmask_b32 v{vA1}, v{vT0}, v{vA1}, vcc")
        a("s_waitcnt lgkmcnt(0)")
        srd(a, SA, pWS, 0, WS_USED)
        def touch():
            a(f"buffer_load_dword v{vT2}, v{vA0}, s[{SA}:{SA+3}], 0 offen")
            a(f"v_add_u32 v{vA0}, v{vA0}, v{vA1}")
        n0 = min(4, PF)
        for q in range(n0): touch()
        a("s_barrier")
        a("s_barrier")
        for q in range(n0, PF): touch()
        a("s_barrier")
        a(f"s_mov_b32 s{sIT}, 0")
        a.label(f"L_{name}_pfl")
        touch()
        a("s_barrier")
        a(f"s_add_u32 s{sIT}, s{sIT}, 1"); a(f"s_cmp_lt_u32 s{sIT}, {NS - PF}"); a(f"s_cbranch_scc1 L_{name}_pfl")
    a.label(f"L_{name}_end")
    a("s_endpgm")
    lds = max(R*8192, 2*128*RS)
    return kernel_text(name, a, nv=NV, ns=(102 if prof else 48), ao=NV), lds, (576 if pf else 512)
```

```python
from asmlib import *
from common import *
OOB = 0x40000000
SPIN_MAX = 400000

def gen_s3k(name="s3_kernel", R=4, dist=4, prof=False, pmode="epi", n0=2, catch=2, ost="sc1"):
    a = Asm()
    P = Prof(a, prof); P.mode = pmode
    NS = NKB // 4
    D = R
    SLOT = 16384
    sOUT, pWS = 28, 34
    SA, SW, SO, SX = 8, 12, 16, 40
    sW, sTQ, sKP, sIT, sAoff, sWoff, sM0, sTB, sNB, sKH = 20, 21, 22, 23, 24, 25, 27, 32, 33, 26
    t0, t1, t2 = 36, 37, 38
    vLane, vT0, vT1, vT2 = 1, 2, 3, 4
    vA0, vA1, vWs0, vWs1 = 5, 6, 7, 12
    vB = [8, 9, 10, 11]
    ACC = 16
    WF = 80
    AR = 144
    NV = AR + 8*D
    a(f"s_cmp_ge_u32 s2, 256")
    a(f"s_cbranch_scc1 L_{name}_end")
    P.stamp(0)
    a(f"s_load_dwordx2 s[{sOUT}:{sOUT+1}], s[0:1], {KA_OUT}")
    a(f"s_load_dwordx2 s[{pWS}:{pWS+1}], s[0:1], {KA_WS}")
    a(f"v_lshrrev_b32 v{vT0}, 6, v0")
    a(f"v_and_b32 v{vLane}, 63, v0")
    a(f"v_readfirstlane_b32 s{sW}, v{vT0}")
    a(f"s_and_b32 s3, s2, 7"); a(f"s_lshr_b32 s{t0}, s2, 3")
    a(f"s_lshr_b32 s{t1}, s3, 1"); a(f"s_lshl_b32 s{t1}, s{t1}, 2"); a(f"s_and_b32 s{t2}, s{t0}, 3"); a(f"s_add_u32 s{sTB}, s{t1}, s{t2}")
    a(f"s_and_b32 s{t1}, s3, 1"); a(f"s_lshl_b32 s{t1}, s{t1}, 2"); a(f"s_bfe_u32 s{t2}, s{t0}, 0x20002"); a(f"s_add_u32 s{sNB}, s{t1}, s{t2}")
    a(f"s_lshr_b32 s{sKH}, s{t0}, 4")
    a(f"s_and_b32 s{sTQ}, s{sW}, 3"); a(f"s_lshr_b32 s{sKP}, s{sW}, 2")
    a(f"s_lshl_b32 s{t0}, s{sTB}, 3"); a(f"s_lshl_b32 s{t1}, s{sTQ}, 1"); a(f"s_add_u32 s{t0}, s{t0}, s{t1}")
    a(f"s_mul_i32 s{t0}, s{t0}, {NKB}"); a(f"s_mul_i32 s{t1}, s{sKH}, 44"); a(f"s_add_u32 s{t0}, s{t0}, s{t1}"); a(f"s_add_u32 s{t0}, s{t0}, s{sKP}"); a(f"s_lshl_b32 s{t0}, s{t0}, 10")
    a(f"v_lshlrev_b32 v{vT0}, 4, v{vLane}")
    a(f"v_add_u32 v{vA0}, s{t0}, v{vT0}")
    a(f"v_add_u32 v{vA1}, {NKB*1024}, v{vA0}")
    a(f"s_lshl_b32 s{t0}, s{sNB}, 1"); a(f"s_mul_i32 s{t0}, s{t0}, 44"); a(f"s_mul_i32 s{t1}, s{sKH}, 22"); a(f"s_add_u32 s{t0}, s{t0}, s{t1}"); a(f"s_lshl_b32 s{t0}, s{t0}, 13")
    a(f"s_lshl_b32 s{sM0}, s{sW}, 10"); a(f"s_add_u32 s{t0}, s{t0}, s{sM0}")
    a(f"v_add_u32 v{vWs0}, s{t0}, v{vT0}"); a(f"v_add_u32 v{vWs1}, {44*8192}, v{vWs0}")
    a(f"s_mov_b32 s{sAoff}, 0"); a(f"s_mov_b32 s{sWoff}, 0")
    a("s_waitcnt lgkmcnt(0)")
    P.stamp(3, "pro")
    srd(a, SA, pWS, ACAT_OFF, ACAT_SZ)
    srd(a, SW, pWS, WT_OFF, WT_SZ)
    vm = VmTracker()
    def dma(tile):
        vm.issue(("W", tile, 0)); vm.issue(("W", tile, 1))
        sl = (tile % R)*SLOT
        return [[f"s_add_u32 m0, s{sM0}, {sl}", f"buffer_load_dwordx4 v{vWs0}, s[{SW}:{SW+3}], s{sWoff} offen lds"],
                [f"s_add_u32 m0, s{sM0}, {sl + 8192}", f"buffer_load_dwordx4 v{vWs1}, s[{SW}:{SW+3}], s{sWoff} offen lds", f"s_add_u32 s{sWoff}, s{sWoff}, 8192"]]
    def aload(step):
        r = AR + (step % D)*8
        vm.issue(("A", step, 0)); vm.issue(("A", step, 1))
        return [f"buffer_load_dwordx4 v[{r}:{r+3}], v{vA0}, s[{SA}:{SA+3}], s{sAoff} offen",
                f"buffer_load_dwordx4 v[{r+4}:{r+7}], v{vA1}, s[{SA}:{SA+3}], s{sAoff} offen",
                f"s_add_u32 s{sAoff}, s{sAoff}, 2048"]
    def emit_dma(t):
        for g_ in dma(t):
            a(g_[0]); a("s_nop 0")
            for l in g_[1:]: a(l)
    for i in range(n0):
        emit_dma(i)
        for l in aload(i): a(l)
    P.stamp(4, "pro")
    a(f"v_lshrrev_b32 v{vT0}, 2, v{vLane}"); a(f"v_bfe_u32 v{vT1}, v{vLane}, 3, 2"); a(f"v_lshlrev_b32 v{vT0}, 7, v{vT0}")
    a(f"v_and_b32 v{vT2}, 3, v{vLane}"); a(f"v_lshlrev_b32 v{vT2}, 3, v{vT2}"); a(f"v_add_u32 v{vT0}, v{vT0}, v{vT2}")
    a(f"s_lshl_b32 s{t0}, s{sKP}, 12"); a(f"v_add_u32 v{vT0}, s{t0}, v{vT0}")
    for j in range(4):
        a(f"v_xor_b32 v{vT2}, {j}, v{vT1}"); a(f"v_lshlrev_b32 v{vT2}, 5, v{vT2}"); a(f"v_add_u32 v{vB[j]}, v{vT0}, v{vT2}")
    for i in range(64): a(f"v_mov_b32 v{ACC+i}, 0")
    srd(a, SO, sOUT, 0, 2048*2048)
    srd(a, SX, pWS, 0, WS_USED)
    def wreads(tile):
        base = WF + (tile % 2)*32
        return [f"ds_read_b64_tr_b16 v[{base+16*hh+4*j+2*sec}:{base+16*hh+4*j+2*sec+1}], v{vB[j]} offset:{(tile % R)*SLOT + hh*8192 + sec*2048}"
                for hh in range(2) for j in range(4) for sec in range(2)]
    accr = lambda T, hh, j: ACC + ((T*2+hh)*4+j)*4
    def mfmas(step):
        wb = WF + (step % 2)*32; ab = AR + (step % D)*8; out = []
        order = [(hh, j) for hh in range(2) for j in range(4)]
        for T in range(2):
            for hh, j in (order if T == 0 else order[::-1]):
                c = accr(T, hh, j)
                out.append(f"v_mfma_f32_16x16x32_bf16 v[{c}:{c+3}], v[{wb+16*hh+4*j}:{wb+16*hh+4*j+3}], v[{ab+4*T}:{ab+4*T+3}], v[{c}:{c+3}]")
        return out
    a(f"s_waitcnt vmcnt({vm.need([('W', 0, 0), ('W', 0, 1)])})")
    a("s_barrier")
    for l in wreads(0): a(l)
    a(f"s_waitcnt vmcnt({vm.need([('W', 1, 0), ('W', 1, 1), ('A', 0, 0), ('A', 0, 1)])}) lgkmcnt(0)")
    a("s_barrier")
    P.stamp(1)
    nxt = n0; steps = []; first_steady = None
    for s in range(NS):
        m = mfmas(s); nm = len(m)
        rd = wreads(s + 1) if s + 1 < NS else []
        tiles = []
        while nxt < NS and nxt <= s + dist and len(tiles) < catch:
            tiles.append(nxt); nxt += 1
        assert all(t - D <= s for t in tiles)
        groups = []
        for t in tiles: groups += dma(t)
        slots = [[] for _ in range(nm)]
        for k, x in enumerate(rd): slots[min(nm-1, (k*(nm-3))//len(rd))].append(x)
        for k, g_ in enumerate(groups):
            pos = 1 + 3*k if len(groups) <= 2 else 1 + 3*k
            assert pos < nm
            slots[pos-1].append(g_[0]); slots[pos] = g_[1:] + slots[pos]
        seq = []
        for k in range(nm): seq.append(m[k]); seq += slots[k]
        for t in tiles: seq += aload(t)
        need = []
        if s + 2 < NS: need += [("W", s + 2, 0), ("W", s + 2, 1)]
        if s + 1 < NS: need += [("A", s + 1, 0), ("A", s + 1, 1)]
        if need:
            seq.append(f"s_waitcnt vmcnt({vm.need(need)}) lgkmcnt(0)")
            seq.append("s_barrier")
        steps.append(seq)
        if first_steady is None and len(tiles) == 1 and tiles[0] == s + dist: first_steady = s
    L0 = first_steady
    last_issue = NS - 1 - dist
    n_iter = (last_issue + 1 - L0) // R
    for s in range(L0):
        for l in steps[s]: a(l)
    fold_loop(a, steps, L0, n_iter, R, f"L_{name}_loop", sIT)
    for s in range(L0 + n_iter*R, NS):
        for l in steps[s]: a(l)
    P.stamp(2)
    RS = 272
    HALF = 2*128*RS
    a(f"v_and_b32 v{vT0}, 15, v{vLane}")
    a(f"s_lshl_b32 s{t0}, s{sTQ}, 5"); a(f"s_lshl_b32 s{t1}, s{sKP}, 7"); a(f"s_add_u32 s{t0}, s{t0}, s{t1}")
    a(f"v_add_u32 v{vT0}, s{t0}, v{vT0}"); a(f"v_mul_u32_u24 v{vT0}, {RS}, v{vT0}")
    a(f"v_lshrrev_b32 v{vT1}, 4, v{vLane}"); a(f"v_lshlrev_b32 v{vT1}, 4, v{vT1}"); a(f"v_add_u32 v{vT0}, v{vT0}, v{vT1}")
    a(f"v_add_u32 v{vA1}, {HALF}, v{vT0}")
    a(f"s_cmp_eq_u32 s{sKH}, 0")
    a(f"s_cbranch_scc0 L_{name}_k1")
    for kh in range(2):
        if kh == 1: a.label(f"L_{name}_k1")
        for T in range(2):
            for j in range(4):
                c = accr(T, 1-kh, j)
                a(f"ds_write_b128 v{vT0}, v[{c}:{c+3}] offset:{T*16*RS + 64*j}")
        for T in range(2):
            for j in range(4):
                c = accr(T, kh, j)
                a(f"ds_write_b128 v{vA1}, v[{c}:{c+3}] offset:{T*16*RS + 64*j}")
        if kh == 0: a(f"s_branch L_{name}_kj")
    a.label(f"L_{name}_kj")
    a(f"v_lshrrev_b32 v{vT1}, 3, v{vLane}"); a(f"s_lshl_b32 s{t0}, s{sW}, 4"); a(f"v_add_u32 v{vT1}, s{t0}, v{vT1}")
    a(f"v_mul_u32_u24 v{vT2}, {RS}, v{vT1}"); a(f"v_and_b32 v{vT0}, 7, v{vLane}"); a(f"v_lshlrev_b32 v{vA0}, 5, v{vT0}"); a(f"v_add_u32 v{vT2}, v{vT2}, v{vA0}")
    a(f"v_add_u32 v{vA1}, {HALF}, v{vT2}")
    a(f"s_lshl_b32 s{t0}, s{sTB}, 7"); a(f"v_add_u32 v{vT1}, s{t0}, v{vT1}"); a(f"v_lshlrev_b32 v{vT1}, 11, v{vT1}")
    a(f"v_lshlrev_b32 v{vT0}, 4, v{vT0}"); a(f"v_add_u32 v{vT1}, v{vT1}, v{vT0}")
    a(f"s_lshl_b32 s{t0}, s{sNB}, 1"); a(f"s_add_u32 s{t0}, s{t0}, s{sKH}"); a(f"s_lshl_b32 s{t0}, s{t0}, 7"); a(f"v_add_u32 v{vT1}, s{t0}, v{vT1}")
    a(f"v_lshlrev_b32 v{vWs0}, 4, v{vLane}")
    a(f"s_lshl_b32 s{t0}, s2, 15"); a(f"s_lshl_b32 s{t1}, s{sW}, 12"); a(f"s_add_u32 s{t0}, s{t0}, s{t1}"); a(f"s_add_u32 s{sAoff}, s{t0}, {XCH_OFF}")
    a(f"s_xor_b32 s{t0}, s2, 128"); a(f"s_lshl_b32 s{sWoff}, s{t0}, 7"); a(f"s_add_u32 s{sWoff}, s{sWoff}, {FLG_OFF}")
    a(f"s_lshl_b32 s{t0}, s{t0}, 15"); a(f"s_add_u32 s{t0}, s{t0}, s{t1}"); a(f"s_add_u32 s{sIT}, s{t0}, {XCH_OFF}")
    a("s_waitcnt lgkmcnt(0)")
    a("s_barrier")
    X = 80; K = 112
    for p in range(2):
        for h in range(2):
            for q in range(2):
                r = X + p*16 + h*8 + q*4
                a(f"ds_read_b128 v[{r}:{r+3}], v{vT2} offset:{p*8*RS + h*128*RS + q*16}")
    for p in range(2):
        for h in range(2):
            for q in range(2):
                r = K + p*16 + h*8 + q*4
                a(f"ds_read_b128 v[{r}:{r+3}], v{vA1} offset:{p*8*RS + h*128*RS + q*16}")
    for p in range(2):
        a(f"s_waitcnt lgkmcnt({12 if p == 0 else 8})")
        b = X + p*16
        for i in range(0, 8, 2):
            a(f"v_pk_add_f32 v[{b+i}:{b+i+1}], v[{b+i}:{b+i+1}], v[{b+8+i}:{b+9+i}]")
        for q in range(2):
            a(f"buffer_store_dwordx4 v[{b+4*q}:{b+4*q+3}], v{vWs0}, s[{SX}:{SX+3}], s{sAoff} offen offset:{(2*p+q)*1024} sc1")
    a("s_waitcnt lgkmcnt(0)")
    for p in range(2):
        b = K + p*16
        for i in range(0, 8, 2):
            a(f"v_pk_add_f32 v[{b+i}:{b+i+1}], v[{b+i}:{b+i+1}], v[{b+8+i}:{b+9+i}]")
    a("s_waitcnt vmcnt(0)")
    a("s_barrier")
    a(f"s_cmp_eq_u32 s{sW}, 0")
    a(f"s_cbranch_scc0 L_{name}_wait")
    a(f"s_lshl_b32 s{t0}, s2, 7"); a(f"s_add_u32 s{t0}, s{t0}, {FLG_OFF}")
    a(f"v_mov_b32 v{vA0}, 0"); a(f"v_mov_b32 v{vB[0]}, 1")
    a(f"s_mov_b64 s[{t1+1}:{t1+2}], exec") if False else None
    a(f"s_mov_b64 s[44:45], exec"); a("s_mov_b64 exec, 1")
    a(f"buffer_store_dword v{vB[0]}, v{vA0}, s[{SX}:{SX+3}], s{t0} offen sc1")
    a(f"s_mov_b32 s{t1}, 0")
    a.label(f"L_{name}_poll")
    a(f"buffer_load_dword v{vB[1]}, v{vA0}, s[{SX}:{SX+3}], s{sWoff} offen sc1")
    a("s_waitcnt vmcnt(0)")
    a(f"v_readfirstlane_b32 s{t0}, v{vB[1]}")
    a(f"s_add_u32 s{t1}, s{t1}, 1")
    a(f"s_cmp_ge_u32 s{t1}, {SPIN_MAX}")
    a(f"s_cbranch_scc1 L_{name}_got")
    a(f"s_cmp_eq_u32 s{t0}, 1")
    a(f"s_cbranch_scc0 L_{name}_poll")
    a.label(f"L_{name}_got")
    a("s_mov_b64 exec, s[44:45]")
    a.label(f"L_{name}_wait")
    a("s_barrier")
    Y = 80
    for p in range(2):
        for q in range(2):
            r = Y + p*8 + q*4
            a(f"buffer_load_dwordx4 v[{r}:{r+3}], v{vWs0}, s[{SX}:{SX+3}], s{sIT} offen offset:{(2*p+q)*1024} sc1")
    for p in range(2):
        a(f"s_waitcnt vmcnt({2 if p == 0 else 1})")
        b = K + p*16; y = Y + p*8
        for i in range(0, 8, 2):
            a(f"v_pk_add_f32 v[{b+i}:{b+i+1}], v[{b+i}:{b+i+1}], v[{y+i}:{y+i+1}]")
        for i in range(4):
            a(f"v_cvt_pk_bf16_f32 v{b+8+i}, v{b+2*i}, v{b+2*i+1}")
        a(f"buffer_store_dwordx4 v[{b+8}:{b+11}], v{vT1}, s[{SO}:{SO+3}], 0 offen {ost}")
        if p == 0: a(f"v_add_u32 v{vT1}, {8*2048}, v{vT1}")
    if prof: a("s_waitcnt vmcnt(0)")
    P.stamp(5)
    P.dump(vLane, sW)
    a.label(f"L_{name}_end")
    a("s_endpgm")
    lds = max(R*SLOT, 2*HALF)
    return kernel_text(name, a, nv=NV, ns=(102 if prof else 48), ao=NV), lds, 512
```

```python
from asmlib import *
from common import *
import struct
LOG2E = 1.4426950408889634
def f2h(x): return hex(struct.unpack("<I", struct.pack("<f", x))[0])

A_SLOT = 32768; NA = 3
W_BASE = NA*A_SLOT; W_SLOT = 14336
WPHI   = W_BASE + 4*W_SLOT
DUMMY  = WPHI + 2048
MISC   = DUMMY + 1024
S1_LDS = MISC + 256
PHI_SCR = 0
KV_SCR  = 32768
OOB = 0x40000000

def gen_s1(name="s1_kernel", prof=False, st="sc1", touch=True, relayout=True, wsp=False, wsp_epi=False, wsp_tail=29, PT=4, prio=True, pmode="epi", dedupe=True, burst=False, tfl="", dfl="", rfl="", norm="pair", NW=4, bmode=6, first_gather=True, codewarm=1, wsplit=False, selective=True, early3=False, wsp_aff=1, defer_gelu=False, dpos="spread", rl_skip=True, ninit=2):
    a = Asm()
    P = Prof(a, prof); P.mode = pmode
    NS = 32
    U = 12 if NW == 4 else 6
    pX, pQKV, pPHI, pWO = 4, 6, 8, 10
    pWIN, pWSP = 12, 14
    pWOUT, pGATE = 16, 18
    pDBG, pWS = 20, 22
    SX, SD, SD3, SWS = 24, 28, 32, 36
    ST, SRL = 40, 44
    sW, sWQ, sMI, sNJ, sODD = 48, 49, 50, 51, 52
    sKA, sKD, sKD3, sIncD = 53, 54, 55, 56
    sM0, sM0d = 57, 58
    sMs = [59, 60, 61, 62]
    sTo, sTinc = 63, 64
    sRLs, sRLd = 65, 66
    sIT = 67
    t0, t1, t2, t3 = 68, 69, 70, 71
    sC = 72
    sH, sHq = 74, 75
    sSt = 3
    vLane, vA, vB_, vC, vD = 1, 2, 3, 4, 5
    vX = [[6, 7], [8, 9]]
    vDs = [10, 11, 12, 13, 14, 15, 16, 17]
    vW1 = [18, 19]; vW2 = [18, 19]
    vT, vRL, vRLd, vDum = 20, 21, 22, 23
    vRLb = 24
    XF = 32; WF = 64
    ACC_A = 112; ACC_G = 120
    GV = 232

    a("s_cmp_ge_u32 s2, 256")
    a(f"s_cbranch_scc1 L_{name}_end")
    P.stamp(0)
    a(f"s_load_dwordx8 s[4:11], s[0:1], 0")
    a(f"s_load_dwordx4 s[12:15], s[0:1], {KA_WIN}")
    a(f"s_load_dwordx4 s[16:19], s[0:1], {KA_WOUT}")
    a(f"s_load_dwordx4 s[20:23], s[0:1], {KA_DBG}")
    a(f"v_lshrrev_b32 v{vA}, 6, v0")
    a(f"v_and_b32 v{vLane}, 63, v0")
    a(f"v_readfirstlane_b32 s{sW}, v{vA}")
    a(f"s_and_b32 s{t0}, s2, 7")
    a(f"s_lshr_b32 s{t1}, s2, 3")
    a(f"s_and_b32 s{t2}, s{t0}, 1"); a(f"s_lshl_b32 s{t2}, s{t2}, 2"); a(f"s_and_b32 s{t3}, s{t1}, 3")
    a(f"s_add_u32 s{sMI}, s{t2}, s{t3}")
    a(f"s_lshr_b32 s{t1}, s{t1}, 2")
    a(f"s_lshr_b32 s{t0}, s{t0}, 1"); a(f"s_lshl_b32 s{t0}, s{t0}, 2")
    a(f"s_and_b32 s{t2}, s{t1}, 3"); a(f"s_add_u32 s{t0}, s{t0}, s{t2}")
    a(f"s_lshr_b32 s{t2}, s{t1}, 2"); a(f"s_lshl_b32 s{t2}, s{t2}, 4"); a(f"s_add_u32 s{sNJ}, s{t0}, s{t2}")
    a(f"s_and_b32 s{sODD}, s{sNJ}, 1")
    a(f"s_lshr_b32 s{t2}, s{sNJ}, 2"); a(f"s_xor_b32 s{sH}, s{sNJ}, 24")
    a(f"s_cmp_eq_u32 s{t2}, 3"); a(f"s_cselect_b32 s{t3}, s{sH}, s{sNJ}")
    a(f"s_cmp_eq_u32 s{t2}, 5"); a(f"s_cselect_b32 s{sH}, s{sH}, s{t3}")
    a(f"s_xor_b32 s{sHq}, s{sH}, 2"); a(f"s_cmp_lt_u32 s{sNJ}, 16"); a(f"s_cselect_b32 s{sHq}, s{sHq}, s{sH}")
    a(f"s_and_b32 s{sWQ}, s{sW}, 3")
    a(f"v_lshlrev_b32 v{vRLd}, 4, v{vLane}")
    vmA = VmTracker(); vmG = VmTracker()
    a(f"s_cmp_ge_u32 s{sW}, 4")
    a(f"s_cbranch_scc1 L_{name}_gsetup")

    def common_late():
        a(f"s_mov_b32 s{sC}, 1.0"); a(f"s_mov_b32 s{sC+1}, 1.0")
        srd(a, SWS, pWS, 0, WS_USED)
        a(f"v_and_b32 v{vA}, 15, v{vLane}")
        a(f"v_lshrrev_b32 v{vB_}, 1, v{vA}")
        a(f"v_lshrrev_b32 v{vC}, 4, v{vLane}")
        a(f"v_xor_b32 v{vB_}, v{vB_}, v{vC}")
        a(f"v_lshlrev_b32 v{vA}, 7, v{vA}")
        a(f"s_lshl_b32 s{t0}, s{sWQ}, 13")
        a(f"v_add_u32 v{vA}, s{t0}, v{vA}")
        a(f"v_lshlrev_b32 v{vC}, 4, v{vB_}")
        a(f"v_add_u32 v{vX[0][0]}, v{vA}, v{vC}")
        a(f"v_xor_b32 v{vX[0][1]}, 64, v{vX[0][0]}")
        a(f"v_add_u32 v{vX[1][0]}, 65536, v{vX[0][0]}")
        a(f"v_add_u32 v{vX[1][1]}, 65536, v{vX[0][1]}")

    a("s_waitcnt lgkmcnt(0)")
    P.stamp(3, "pro")
    a(f"s_lshr_b32 s{t1}, s2, 3"); a(f"s_and_b32 s{t2}, s{t1}, 3"); a(f"s_lshr_b32 s{t1}, s{t1}, 2")
    a(f"s_cmp_eq_u32 s{sWQ}, 0")
    a(f"s_cbranch_scc0 L_{name}_t1")
    srd(a, ST, pX, 0, 2048*2048)
    a(f"s_lshl_b32 s{t0}, s{sMI}, 8"); a(f"s_lshl_b32 s{t3}, s{t1}, 5"); a(f"s_add_u32 s{t0}, s{t0}, s{t3}")
    a(f"v_add_u32 v{vT}, s{t0}, v{vLane}"); a(f"v_lshlrev_b32 v{vT}, 11, v{vT}")
    a(f"v_cmp_gt_u32 vcc, 32, v{vLane}"); a(f"v_mov_b32 v{vA}, {hex(OOB)}"); a(f"v_cndmask_b32 v{vT}, v{vA}, v{vT}, vcc")
    a(f"s_mov_b32 s{sTinc}, 128")
    a(f"s_branch L_{name}_tdone")
    a.label(f"L_{name}_t1")
    a(f"v_mul_u32_u24 v{vA}, 43, v{vLane}"); a(f"v_lshrrev_b32 v{vA}, 7, v{vA}")
    a(f"v_mul_u32_u24 v{vB_}, 3, v{vA}"); a(f"v_sub_u32 v{vB_}, v{vLane}, v{vB_}")
    a(f"s_lshl_b32 s{t0}, s{t2}, 4"); a(f"v_add_u32 v{vA}, s{t0}, v{vA}")
    a(f"s_cmp_eq_u32 s{sWQ}, 1")
    a(f"s_cbranch_scc0 L_{name}_t2")
    srd(a, ST, pQKV, 0, 1024*6144)
    if dedupe:
        a(f"s_and_b32 s{t0}, s{sH}, 1"); a(f"s_lshl_b32 s{t0}, s{t0}, 3"); a(f"v_add_u32 v{vA}, s{t0}, v{vA}")
    a(f"v_cmp_eq_u32 vcc, 0, v{vB_}")
    a(f"v_mul_u32_u24 v{vT}, 6144, v{vA}"); a(f"v_lshlrev_b32 v{vB_}, 11, v{vB_}"); a(f"v_add_u32 v{vT}, v{vT}, v{vB_}")
    a(f"s_lshl_b32 s{t0}, s{sH}, 6"); a(f"s_lshl_b32 s{t3}, s{sHq}, 6"); a(f"v_mov_b32 v{vA}, s{t0}"); a(f"v_mov_b32 v{vB_}, s{t3}"); a(f"v_cndmask_b32 v{vA}, v{vA}, v{vB_}, vcc")
    a(f"v_add_u32 v{vT}, v{vA}, v{vT}")
    a(f"v_cmp_gt_u32 vcc, {24 if dedupe else 48}, v{vLane}"); a(f"v_mov_b32 v{vA}, {hex(OOB)}"); a(f"v_cndmask_b32 v{vT}, v{vA}, v{vT}, vcc")
    a(f"s_mov_b32 s{sTinc}, {64*6144}")
    a(f"s_branch L_{name}_tdone")
    a.label(f"L_{name}_t2")
    a(f"s_cmp_eq_u32 s{sWQ}, 2")
    a(f"s_cbranch_scc0 L_{name}_t3")
    srd(a, ST, pWIN, 0, 1024*7168)
    a(f"v_mul_u32_u24 v{vT}, 7168, v{vA}"); a(f"v_lshlrev_b32 v{vB_}, 7, v{vB_}"); a(f"v_min_u32 v{vB_}, 252, v{vB_}"); a(f"v_add_u32 v{vT}, v{vT}, v{vB_}")
    a(f"s_mul_i32 s{t0}, s{sNJ}, 224"); a(f"s_lshl_b32 s{t3}, s{sODD}, 5"); a(f"s_sub_u32 s{t0}, s{t0}, s{t3}"); a(f"v_add_u32 v{vT}, s{t0}, v{vT}")
    a(f"v_cmp_gt_u32 vcc, 48, v{vLane}"); a(f"v_mov_b32 v{vA}, {hex(OOB)}"); a(f"v_cndmask_b32 v{vT}, v{vA}, v{vT}, vcc")
    a(f"s_mov_b32 s{sTinc}, {64*7168}")
    a(f"s_branch L_{name}_tdone")
    a.label(f"L_{name}_t3")
    srd(a, ST, pWSP, 0, 2048*4096)
    if wsplit:
        a(f"v_lshrrev_b32 v{vT}, 4, v{vLane}"); a(f"v_lshlrev_b32 v{vT}, 12, v{vT}"); a(f"v_and_b32 v{vA}, 15, v{vLane}"); a(f"v_lshlrev_b32 v{vA}, 7, v{vA}")
        a(f"v_add_u32 v{vT}, v{vT}, v{vA}"); a(f"s_lshl_b32 s{t0}, s2, 15"); a(f"v_add_u32 v{vT}, s{t0}, v{vT}")
        a(f"s_mov_b32 s{sTinc}, 16384")
        a(f"s_add_u32 s{ST+2}, s{t0}, 32768")
    else:
        a(f"v_lshlrev_b32 v{vT}, 7, v{vLane}"); a(f"s_lshl_b32 s{t0}, s2, 15"); a(f"v_add_u32 v{vT}, s{t0}, v{vT}")
        a(f"s_mov_b32 s{sTinc}, 8192")
        a(f"s_add_u32 s{ST+2}, s{t0}, 32768") if wsp else a(f"s_mov_b32 s{ST+2}, 0")
    a.label(f"L_{name}_tdone")
    a(f"s_mov_b32 s{sTo}, 0")
    def touch_ops(vm, tag):
        vm.issue(tag)
        return [f"buffer_load_dword v{vDum}, v{vT}, s[{ST}:{ST+3}], s{sTo} offen {tfl}", f"s_add_u32 s{sTo}, s{sTo}, s{sTinc}"]
    a(f"s_cmp_eq_u32 s{sWQ}, 3")
    a(f"s_cbranch_scc1 L_{name}_notouch0")
    if touch:
        for q in range(ninit):
            for l in touch_ops(vmA, ("T", q)): a(l)
    a.label(f"L_{name}_notouch0")
    a(f"v_lshrrev_b32 v{vA}, 3, v{vLane}")
    a(f"s_lshl_b32 s{t0}, s{sMI}, 8"); a(f"s_lshl_b32 s{t1}, s{sWQ}, 6"); a(f"s_add_u32 s{t0}, s{t0}, s{t1}")
    a(f"v_add_u32 v{vA}, s{t0}, v{vA}"); a(f"v_lshlrev_b32 v{vA}, 11, v{vA}")
    a(f"v_and_b32 v{vB_}, 7, v{vLane}"); a(f"v_lshrrev_b32 v{vC}, 4, v{vLane}"); a(f"v_xor_b32 v{vB_}, v{vB_}, v{vC}")
    a(f"v_lshlrev_b32 v{vC}, 4, v{vB_}"); a(f"v_add_u32 v{vDs[0]}, v{vA}, v{vC}")
    a(f"v_xor_b32 v{vC}, 64, v{vC}"); a(f"v_add_u32 v{vDs[1]}, v{vA}, v{vC}"); a(f"v_add_u32 v{vDs[1]}, {8*2048}, v{vDs[1]}")
    for e in range(2, 8): a(f"v_add_u32 v{vDs[e]}, {16*2048}, v{vDs[e-2]}")
    a(f"s_lshl_b32 s{sM0}, s{sWQ}, 13")
    a(f"s_mov_b32 s{sKA}, 0")
    srd(a, SX, pX, 0, 2048*2048)
    def dmaA(tile, half):
        out = []
        for e in range(4*half, 4*half+4):
            vmA.issue(("A", tile, e))
            out.append([f"s_add_u32 m0, s{sM0}, {(tile % NA)*A_SLOT + e*1024}",
                        f"buffer_load_dwordx4 v{vDs[e]}, s[{SX}:{SX+3}], s{sKA} offen {dfl} lds"])
        if half == 1: out[-1].append(f"s_add_u32 s{sKA}, s{sKA}, 128")
        return out
    a("s_barrier")
    for half in range(2):
        for grp in dmaA(0, half):
            for l in grp: a(l)
    if touch and ninit < 2:
        a(f"s_cmp_eq_u32 s{sWQ}, 3"); a(f"s_cbranch_scc1 L_{name}_notouch1")
        for q in range(ninit, 2):
            a(f"buffer_load_dword v{vDum}, v{vT}, s[{ST}:{ST+3}], s{sTo} offen {tfl}"); a(f"s_add_u32 s{sTo}, s{sTo}, s{sTinc}")
        a.label(f"L_{name}_notouch1")
    P.stamp(4, "pro")
    common_late()
    a(f"v_mov_b32 v{vA}, 0"); a(f"v_lshlrev_b32 v{vB_}, 2, v{vLane}"); a(f"v_add_u32 v{vB_}, {MISC}, v{vB_}"); a(f"ds_write_b32 v{vB_}, v{vA}")
    a(f"v_lshrrev_b32 v{vA}, 4, v{vLane}"); a(f"v_mul_u32_u24 v{vB_}, 1536, v{vA}")
    a(f"v_bfe_u32 v{vC}, v{vLane}, 2, 2"); a(f"v_lshlrev_b32 v{vC}, 6, v{vC}"); a(f"v_add_u32 v{vB_}, v{vB_}, v{vC}")
    a(f"v_and_b32 v{vC}, 3, v{vLane}"); a(f"v_lshlrev_b32 v{vC}, 3, v{vC}"); a(f"v_add_u32 v{vB_}, v{vB_}, v{vC}")
    a(f"v_and_b32 v{vA}, 1, v{vA}"); a(f"v_lshlrev_b32 v{vA}, 5, v{vA}"); a(f"v_add_u32 v{vB_}, {W_BASE}, v{vB_}")
    a(f"v_add_u32 v{vW1[0]}, v{vB_}, v{vA}"); a(f"v_xor_b32 v{vA}, 32, v{vA}"); a(f"v_add_u32 v{vW1[1]}, v{vB_}, v{vA}")
    if relayout:
        if rl_skip:
            a(f"s_cmp_gt_u32 s{sNJ}, 7"); a(f"s_cselect_b32 s{t1}, 2, 0"); a(f"s_sub_u32 s{t0}, s{sNJ}, s{t1}")
            a(f"s_cmp_gt_u32 s{sNJ}, 15"); a(f"s_cselect_b32 s{t1}, 2, 0"); a(f"s_sub_u32 s{t0}, s{t0}, s{t1}")
            a(f"s_mul_i32 s{t1}, s{sMI}, 28"); a(f"s_add_u32 s{t0}, s{t0}, s{t1}"); a(f"s_mul_i32 s{t1}, s{sWQ}, 224"); a(f"s_add_u32 s{t0}, s{t0}, s{t1}")
            a(f"s_and_b32 s{t1}, s{sNJ}, 0x16"); a(f"s_cmp_eq_u32 s{t1}, 6"); a(f"s_cselect_b32 s{t0}, 4096, s{t0}")
        else:
            a(f"s_lshl_b32 s{t0}, s{sWQ}, 8"); a(f"s_add_u32 s{t0}, s{t0}, s2")
        a(f"s_lshr_b32 s{t1}, s{t0}, 1")
        a(f"s_and_b32 s{t2}, s{t0}, 1")
        a(f"s_cmp_lt_u32 s{t1}, 128")
        a(f"s_cselect_b32 s{SRL}, s{pWO}, s{pWOUT}")
        a(f"s_cselect_b32 s{SRL+1}, s{pWO+1}, s{pWOUT+1}")
        a(f"s_mov_b32 s{t3}, {1792*2048}")
        a(f"s_cselect_b32 s{SRL+2}, {1024*2048}, s{t3}")
        a(f"s_mov_b32 s{SRL+3}, {hex(SRD3)}")
        a(f"s_cselect_b32 s{t3}, 0, 128")
        a(f"s_sub_u32 s{t3}, s{t1}, s{t3}")
        a(f"s_lshl_b32 s{t3}, s{t3}, 14")
        a(f"s_lshl_b32 s{sRLs}, s{t2}, 10"); a(f"s_add_u32 s{sRLs}, s{sRLs}, s{t3}")
        a(f"s_mul_i32 s{sRLd}, s{t2}, {8*44*8192}"); a(f"s_lshl_b32 s{t3}, s{t1}, 10"); a(f"s_add_u32 s{sRLd}, s{sRLd}, s{t3}")
        a(f"s_add_u32 s{sRLd}, s{sRLd}, {WT_OFF}")
        a(f"s_cmp_lt_u32 s{t0}, 704")
        a(f"s_cselect_b32 s{sRLs}, s{sRLs}, {hex(OOB)}")
        a(f"s_cselect_b32 s{sRLd}, s{sRLd}, {hex(OOB)}")
        a(f"v_lshrrev_b32 v{vA}, 3, v{vLane}"); a(f"v_lshrrev_b32 v{vB_}, 1, v{vA}")
        a(f"v_bfe_u32 v{vC}, v{vLane}, 1, 2"); a(f"v_xor_b32 v{vC}, v{vC}, v{vB_}"); a(f"v_lshlrev_b32 v{vC}, 5, v{vC}")
        a(f"v_and_b32 v{vB_}, 1, v{vLane}"); a(f"v_lshlrev_b32 v{vB_}, 4, v{vB_}"); a(f"v_add_u32 v{vC}, v{vC}, v{vB_}")
        a(f"v_lshlrev_b32 v{vA}, 11, v{vA}"); a(f"v_add_u32 v{vRL}, v{vA}, v{vC}")
    def att_second():
        for half in range(2):
            for grp in dmaA(1, half):
                for l in grp: a(l)
        if early3:
            a(f"s_cmp_eq_u32 s{sWQ}, 3"); a(f"s_cbranch_scc0 L_{name}_noe3")
            for (ptr, size, per, div, mul, stride) in ((pQKV, 1024*6144, 24, 6, 10923, 6144), (pWIN, 1024*7168, 28, 7, 9363, 7168)):
                srd(a, SRL if not relayout else SD, ptr, 0, size)
                sr_ = SRL if not relayout else SD
                a(f"s_mul_i32 s{t0}, s2, {per}"); a(f"v_add_u32 v{vA}, s{t0}, v{vLane}")
                a(f"v_mul_u32_u24 v{vB_}, {mul}, v{vA}"); a(f"v_lshrrev_b32 v{vB_}, 16, v{vB_}")
                a(f"v_mul_u32_u24 v{vC}, {div}, v{vB_}"); a(f"v_sub_u32 v{vC}, v{vA}, v{vC}")
                a(f"v_mul_u32_u24 v{vB_}, {stride}, v{vB_}"); a(f"v_lshlrev_b32 v{vC}, 10, v{vC}"); a(f"v_add_u32 v{vB_}, v{vB_}, v{vC}"); a(f"v_add_u32 v{vB_}, 384, v{vB_}")
                a(f"v_cmp_gt_u32 vcc, {per}, v{vLane}"); a(f"v_mov_b32 v{vC}, {hex(OOB)}"); a(f"v_cndmask_b32 v{vB_}, v{vC}, v{vB_}, vcc")
                a(f"buffer_load_dword v{vDum}, v{vB_}, s[{sr_}:{sr_+3}], 0 offen")
            a.label(f"L_{name}_noe3")
    def wphi_ops():
        vmA.issue("wphi")
        return [f"s_mov_b32 s{SD}, s{pPHI}", f"s_mov_b32 s{SD+1}, s{pPHI+1}", f"s_mov_b32 s{SD+2}, 65536", f"s_mov_b32 s{SD+3}, {hex(SRD3)}",
                f"s_and_b32 s{t0}, s{sWQ}, 1", f"s_lshl_b32 s{t0}, s{t0}, 10", f"s_lshl_b32 s{t1}, s{sH}, 11", f"s_add_u32 s{t1}, s{t1}, s{t0}",
                f"s_add_u32 m0, s{t0}, {WPHI}", "s_nop 0", f"buffer_load_dwordx4 v{vRLd}, s[{SD}:{SD+3}], s{t1} offen lds"]
    a(f"s_branch L_{name}_amain")

    a.label(f"L_{name}_gsetup")
    a(f"v_lshrrev_b32 v{vA}, 2, v{vLane}")
    a(f"v_and_b32 v{vB_}, 3, v{vA}")
    a(f"v_lshrrev_b32 v{vC}, 2, v{vA}")
    a(f"v_and_b32 v{vD}, 3, v{vLane}")
    a(f"s_mul_i32 s{t3}, s{sNJ}, 224"); a(f"s_lshl_b32 s{t2}, s{sODD}, 5"); a(f"s_sub_u32 s{t3}, s{t3}, s{t2}")
    def w2src(dst, kq_s):
        a(f"s_lshl_b32 s{t0}, s{kq_s}, 2")
        a(f"v_add_u32 v{dst}, s{t0}, v{vB_}"); a(f"v_mul_u32_u24 v{dst}, 7168, v{dst}")
        a(f"s_and_b32 s{t0}, s{kq_s}, 2")
        a(f"v_xor_b32 v{vDum}, s{t0}, v{vD}"); a(f"v_lshlrev_b32 v{vDum}, 4, v{vDum}"); a(f"v_add_u32 v{dst}, v{dst}, v{vDum}")
        a(f"v_lshlrev_b32 v{vDum}, 6, v{vC}"); a(f"v_add_u32 v{dst}, v{dst}, v{vDum}")
        a(f"v_add_u32 v{dst}, s{t3}, v{dst}")
    a(f"s_cmp_ge_u32 s{sWQ}, 2")
    a(f"s_cbranch_scc1 L_{name}_g23")
    a(f"s_mov_b32 s{sIncD}, {32*6144}")
    for j in range(3):
        a(f"s_mul_i32 s{t0}, s{sWQ}, 12"); a(f"s_add_u32 s{t0}, s{t0}, {4*j}")
        a(f"v_add_u32 v{vDs[j]}, s{t0}, v{vC}")
        a(f"v_mul_u32_u24 v{vDum}, 11, v{vDs[j]}"); a(f"v_lshrrev_b32 v{vDum}, 5, v{vDum}")
        a(f"v_mul_u32_u24 v{vT}, 3, v{vDum}"); a(f"v_sub_u32 v{vT}, v{vDs[j]}, v{vT}")
        a(f"v_cmp_eq_u32 vcc, 0, v{vT}")
        a(f"v_lshlrev_b32 v{vT}, 11, v{vT}")
        a(f"v_and_b32 v{vDs[j]}, 2, v{vDum}"); a(f"v_xor_b32 v{vDs[j]}, v{vDs[j]}, v{vD}"); a(f"v_lshlrev_b32 v{vDs[j]}, 4, v{vDs[j]}")
        a(f"v_add_u32 v{vT}, v{vT}, v{vDs[j]}")
        a(f"v_lshlrev_b32 v{vDum}, 2, v{vDum}"); a(f"v_add_u32 v{vDum}, v{vDum}, v{vB_}"); a(f"v_mul_u32_u24 v{vDum}, 6144, v{vDum}")
        a(f"v_add_u32 v{vT}, v{vT}, v{vDum}")
        a(f"s_lshl_b32 s{t0}, s{sH}, 6"); a(f"s_lshl_b32 s{t1}, s{sHq}, 6"); a(f"v_mov_b32 v{vDum}, s{t0}"); a(f"v_mov_b32 v{vDs[j]}, s{t1}")
        a(f"v_cndmask_b32 v{vDum}, v{vDum}, v{vDs[j]}, vcc"); a(f"v_add_u32 v{vDs[j]}, v{vDum}, v{vT}")
        a(f"s_mul_i32 s{t0}, s{sWQ}, 3072"); a(f"s_add_u32 s{sMs[j]}, s{t0}, {W_BASE + j*1024}")
    a(f"s_mov_b32 s{t1}, s{sWQ}"); w2src(vDs[3], t1)
    a(f"s_lshl_b32 s{t0}, s{sWQ}, 10"); a(f"s_add_u32 s{sMs[3]}, s{t0}, {W_BASE + 6144}")
    a("s_waitcnt lgkmcnt(0)")
    srd(a, SD, pQKV, 0, 1024*6144)
    a(f"s_branch L_{name}_g23done")
    a.label(f"L_{name}_g23")
    a(f"s_mov_b32 s{sIncD}, {32*7168}")
    for j in range(3):
        a(f"s_mul_i32 s{t1}, s{sWQ}, 3"); a(f"s_add_u32 s{t1}, s{t1}, {j}"); a(f"s_sub_u32 s{t1}, s{t1}, 4")
        w2src(vDs[j], t1)
        a(f"s_lshl_b32 s{t0}, s{t1}, 10"); a(f"s_add_u32 s{sMs[j]}, s{t0}, {W_BASE + 6144}")
    a(f"v_mov_b32 v{vDs[3]}, {hex(OOB)}")
    a(f"s_mov_b32 s{sMs[3]}, {DUMMY}")
    a("s_waitcnt lgkmcnt(0)")
    srd(a, SD, pWIN, 0, 1024*7168)
    a.label(f"L_{name}_g23done")
    P.stamp(3, "pro")
    srd(a, SD3, pWIN, 0, 1024*7168)
    a(f"s_cmp_ge_u32 s{sWQ}, 2"); a(f"s_cselect_b32 s{sM0d}, 0, {W_SLOT}")
    a(f"s_mov_b32 s{sKD}, 0"); a(f"s_mov_b32 s{sKD3}, 0")
    def dmaW(tile):
        out = []
        for j in range(4):
            vmG.issue(("W", tile, j))
            slot = tile % NW
            if j < 3:
                out.append([f"s_add_u32 m0, s{sMs[j]}, {slot*W_SLOT}",
                            f"buffer_load_dwordx4 v{vDs[j]}, s[{SD}:{SD+3}], s{sKD} offen {dfl} lds"])
            else:
                out.append([f"s_mul_i32 s{t0}, s{sM0d}, {slot}", f"s_add_u32 m0, s{sMs[3]}, s{t0}",
                            f"buffer_load_dwordx4 v{vDs[3]}, s[{SD3}:{SD3+3}], s{sKD3} offen {dfl} lds",
                            f"s_add_u32 s{sKD}, s{sKD}, s{sIncD}", f"s_add_u32 s{sKD3}, s{sKD3}, {32*7168}"])
        return out
    srd(a, SWS, pWS, 0, WS_USED)
    a(f"s_lshl_b32 s{t0}, s{sMI}, 4"); a(f"s_add_u32 s{t0}, s{t0}, s{sNJ}"); a(f"s_sub_u32 s{t0}, s{t0}, 16"); a(f"s_lshl_b32 s{t0}, s{t0}, 11")
    a(f"s_lshl_b32 s{t1}, s{sWQ}, 9"); a(f"s_add_u32 s{t0}, s{t0}, s{t1}"); a(f"s_add_u32 s{sSt}, s{t0}, {STAT_OFF}")
    a(f"s_cmp_lt_u32 s{sNJ}, 16"); a(f"s_cselect_b32 s{sSt}, {hex(OOB)}, s{sSt}")
    a(f"v_mov_b32 v{GV}, 0"); a(f"v_mov_b32 v{GV+1}, -1.0"); a(f"v_lshlrev_b32 v{GV+2}, 3, v{vLane}")
    a(f"buffer_store_dwordx2 v[{GV}:{GV+1}], v{GV+2}, s[{SWS}:{SWS+3}], s{sSt} offen sc1")
    vmG.issue("mark")
    if codewarm:
        a(f"s_cmp_eq_u32 s{sW}, 7")
        a(f"s_cbranch_scc0 L_{name}_nocw")
        a(f"s_getpc_b64 s[{t2}:{t3}]")
        a.label(f"L_{name}_pc")
        a(f"s_lshr_b32 s{t0}, s2, 3"); a(f"s_lshl_b32 s{t0}, s{t0}, 4")
        a(f"v_and_b32 v{GV+4}, 15, v{vLane}"); a(f"v_add_u32 v{GV+4}, s{t0}, v{GV+4}"); a(f"v_lshlrev_b32 v{GV+4}, 7, v{GV+4}")
        a(f"v_mov_b32 v{GV+7}, s{t3}"); a(f"v_add_co_u32 v{GV+6}, vcc, s{t2}, v{GV+4}"); a(f"v_addc_co_u32 v{GV+7}, vcc, 0, v{GV+7}, vcc")
        a(f"s_mov_b32 s{t0}, L_text_end-L_{name}_pc")
        a(f"v_cmp_gt_u32 vcc, s{t0}, v{GV+4}")
        a(f"s_and_saveexec_b64 s[{t2}:{t3}], vcc")
        a(f"s_cbranch_execz L_{name}_cwx")
        a(f"global_load_dword v{GV+5}, v[{GV+6}:{GV+7}], off")
        a.label(f"L_{name}_cwx")
        a(f"s_mov_b64 exec, s[{t2}:{t3}]")
        a.label(f"L_{name}_nocw")
    a("s_barrier")
    for grp in dmaW(0):
        for l in grp: a(l)
    P.stamp(4, "pro")
    gm_w1 = True
    common_late()
    srd(a, SX, pX, 0, 2048*2048)
    a(f"v_lshrrev_b32 v{vA}, 4, v{vLane}"); a(f"v_lshlrev_b32 v{vB_}, 11, v{vA}")
    a(f"v_bfe_u32 v{vC}, v{vLane}, 2, 2"); a(f"v_lshlrev_b32 v{vC}, 6, v{vC}"); a(f"v_add_u32 v{vB_}, v{vB_}, v{vC}")
    a(f"v_and_b32 v{vC}, 3, v{vLane}"); a(f"v_lshlrev_b32 v{vC}, 3, v{vC}"); a(f"v_add_u32 v{vB_}, v{vB_}, v{vC}")
    a(f"v_add_u32 v{vB_}, {W_BASE + 6144}, v{vB_}")
    a(f"v_and_b32 v{vA}, 1, v{vA}"); a(f"v_xor_b32 v{vA}, s{sODD}, v{vA}"); a(f"v_lshlrev_b32 v{vA}, 5, v{vA}")
    a(f"v_add_u32 v{vW2[0]}, v{vB_}, v{vA}"); a(f"v_xor_b32 v{vA}, 32, v{vA}"); a(f"v_add_u32 v{vW2[1]}, v{vB_}, v{vA}")
    a(f"s_lshl_b32 s{t0}, s{sODD}, 8"); a(f"v_add_u32 v{vW2[1]}, s{t0}, v{vW2[1]}")
    a(f"s_branch L_{name}_gmain")

    def gate_loads(vm):
        ops = [f"s_lshl_b32 s{t0}, s{sMI}, 8", f"s_lshl_b32 s{t1}, s{sNJ}, 3", f"s_add_u32 s{t0}, s{t0}, s{t1}", f"s_add_u32 s{t0}, s{t0}, s{sW}",
               f"s_lshl_b32 s{sTo}, s{t0}, 2", f"s_add_u32 s{sTo}, s{sTo}, {GATE_OFF}", f"s_lshl_b32 s{t0}, s{t0}, 11",
               f"s_mov_b32 s{ST}, s{pGATE}", f"s_mov_b32 s{ST+1}, s{pGATE+1}", f"s_mov_b32 s{ST+2}, 2048", f"s_mov_b32 s{ST+3}, {hex(SRD3)}"]
        ld = [f"buffer_load_dwordx4 v[{GV}:{GV+3}], v{vRLd}, s[{SX}:{SX+3}], s{t0} offen",
              f"buffer_load_dwordx4 v[{GV+4}:{GV+7}], v{vRLd}, s[{SX}:{SX+3}], s{t0} offen offset:1024",
              f"buffer_load_dwordx4 v[{GV+8}:{GV+11}], v{vRLd}, s[{ST}:{ST+3}], 0 offen",
              f"buffer_load_dwordx4 v[{GV+12}:{GV+15}], v{vRLd}, s[{ST}:{ST+3}], 0 offen offset:1024"]
        for q in range(4): vm.issue(("gate", q))
        return ops + ld
    def gate_compute():
        T = GV + 16
        o = [f"v_mov_b32 v{T+2}, 0", f"v_mov_b32 v{T+3}, 0"]
        for q in range(8):
            xr, gr = GV + q, GV + 8 + q
            o += [f"v_lshlrev_b32 v{T}, 16, v{xr}", f"v_and_b32 v{T+1}, 0xffff0000, v{xr}",
                  f"v_lshlrev_b32 v{T+4}, 16, v{gr}", f"v_and_b32 v{T+5}, 0xffff0000, v{gr}",
                  f"v_fma_f32 v{T+2}, v{T}, v{T+4}, v{T+2}", f"v_fma_f32 v{T+3}, v{T+1}, v{T+5}, v{T+3}"]
        o.append(f"v_add_f32 v{T}, v{T+2}, v{T+3}")
        for sh in (8, 4, 2, 1):
            o.append(f"v_add_f32_dpp v{T}, v{T}, v{T} row_ror:{sh} row_mask:0xf bank_mask:0xf")
        o += [f"v_mov_b32 v{T+1}, v{T}", f"v_permlane16_swap_b32 v{T}, v{T+1}", f"v_add_f32 v{T}, v{T}, v{T+1}",
              f"v_mov_b32 v{T+1}, v{T}", f"v_permlane32_swap_b32 v{T}, v{T+1}", f"v_add_f32 v{T}, v{T}, v{T+1}",
              f"v_mul_f32 v{T}, {f2h(-LOG2E)}, v{T}", f"v_exp_f32 v{T}, v{T}", f"v_add_f32 v{T}, 1.0, v{T}", f"v_rcp_f32 v{T}, v{T}",
              f"v_lshlrev_b32 v{T+1}, 2, v{vLane}", f"v_cmp_eq_u32 vcc, 0, v{vLane}", f"v_mov_b32 v{T+2}, {hex(OOB)}", f"v_cndmask_b32 v{T+1}, v{T+2}, v{T+1}, vcc"]
        return o, f"buffer_store_dword v{T}, v{T+1}, s[{SWS}:{SWS+3}], s{sTo} offen"

    def xreads(step):
        tile = step >> 1; kh = step & 1; slot = tile % NA
        base = XF + (step % 2)*16
        hi = 1 if slot == 2 else 0; off = 0 if slot == 2 else slot*A_SLOT
        return [f"ds_read_b128 v[{base+4*tb}:{base+4*tb+3}], v{vX[hi][kh]} offset:{off + tb*2048}" for tb in range(4)]
    def main_loop(role):
        att = role == "A"
        vm = vmA if att else vmG
        nb = 6 if att else 7
        ACC = ACC_A if att else ACC_G
        WSET = 4*nb
        def wreads(step):
            base = WF + (step % 2)*WSET; slot = step % NW; out = []
            for i in range(nb):
                for sec in range(2):
                    r = base + 4*i + 2*sec
                    if att: out.append(f"ds_read_b64_tr_b16 v[{r}:{r+1}], v{vW1[i & 1]} offset:{slot*W_SLOT + sec*768 + (i >> 1)*256}")
                    else:   out.append(f"ds_read_b64_tr_b16 v[{r}:{r+1}], v{vW2[i & 1]} offset:{slot*W_SLOT + sec*1024 + (i >> 1)*256}")
            return out
        def mfmas(step):
            xb = XF + (step % 2)*16; wb = WF + (step % 2)*WSET; out = []
            for i in range(nb):
                for tb in (range(4) if i % 2 == 0 else range(3, -1, -1)):
                    c = ACC + (i*4+tb)*4
                    w_, x_ = f"v[{wb+4*i}:{wb+4*i+3}]", f"v[{xb+4*tb}:{xb+4*tb+3}]"
                    if att and i >= 4: w_, x_ = x_, w_
                    out.append(f"v_mfma_f32_16x16x32_bf16 v[{c}:{c+3}], {w_}, {x_}, v[{c}:{c+3}]")
            return out
        for i in range(nb*16): a(f"v_mov_b32 v{ACC+i}, 0")
        if not att:
            for grp in dmaW(1):
                for l in grp: a(l)
        need = [("A", 0, e) for e in range(8)] if att else [("W", 0, j) for j in range(4)]
        a(f"s_waitcnt vmcnt({vm.need(need)}) lgkmcnt(0)")
        a("s_barrier")
        for l in xreads(0) + wreads(0): a(l)
        if att:
            att_second()
            a("s_waitcnt lgkmcnt(0)")
        else:
            for grp in dmaW(2):
                for l in grp: a(l)
            a(f"s_waitcnt vmcnt({max(vm.need([('W', 1, j) for j in range(4)]), 0)}) lgkmcnt(0)")
        a("s_barrier")
        P.stamp(1)
        steps = []; pend_rl = []
        gcomp, gstore = gate_compute()
        GL, GS0, GS1 = 26, 28, 31
        L0 = 2
        for s in range(NS):
            m = mfmas(s); nm = len(m)
            rd = (xreads(s+1) + wreads(s+1)) if s + 1 < NS else []
            dm = []
            if s == GS0: gate_wait = vm.need([("gate", 3)])
            if att:
                t2_ = ((s + 1) >> 1) + 2; half = (s + 1) & 1
                if s == 0: dm += dmaA(2, 0)
                if t2_ < NS // 2: dm += dmaA(t2_, half)
                if s == 1: dm.append(wphi_ops())
                cold = []
                if burst and bmode == 4:
                    inloop = L0 <= s < L0 + 24
                    r = (s - L0) % 12
                    if touch and s == 0: cold += sum([touch_ops(vm, ("T", q)) for q in (2, 3, 4)], [])
                    if inloop and r % 4 == 0:
                        bidx = r // 4
                        if touch: cold += sum([touch_ops(vm, ("T", s, q)) for q in range(2)], [])
                        if relayout:
                            cur = []
                            for bi in range(2 if bidx == 0 else 1):
                                b = vRLb + 4*bi; tag = ("RL", s, bi); vm.issue(tag); cur.append((tag, b))
                                cold += [f"buffer_load_dwordx4 v[{b}:{b+3}], v{vRL}, s[{SRL}:{SRL+3}], s{sRLs} offen {rfl}", f"s_add_u32 s{sRLs}, s{sRLs}, 128"]
                            pend_rl.append(cur)
                    if relayout and inloop and r % 4 == 3:
                        prev = pend_rl.pop(0)
                        n = vm.need([prev[-1][0]])
                        cold.append(f"s_waitcnt vmcnt({n})")
                        for tag, b in prev:
                            vm.issue(("RS", tag))
                            cold += [f"buffer_store_dwordx4 v[{b}:{b+3}], v{vRLd}, s[{SWS}:{SWS+3}], s{sRLd} offen {st}", f"s_add_u32 s{sRLd}, s{sRLd}, {44*8192}"]
                elif burst:
                    if touch and s == 0: cold += sum([touch_ops(vm, ("T", q)) for q in (2, 3, 4)], [])
                    if touch and L0 <= s < L0 + 24 and (s - L0) % U == 1: cold += sum([touch_ops(vm, ("T", s, q)) for q in range(3)], [])
                    if relayout and L0 <= s < L0 + 24:
                        r6 = (s - L0) % U
                        if r6 == 1:
                            for bi in range(2):
                                b = vRLb + 4*bi
                                vm.issue(("RL", s, bi))
                                cold += [f"buffer_load_dwordx4 v[{b}:{b+3}], v{vRL}, s[{SRL}:{SRL+3}], s{sRLs} offen", f"s_add_u32 s{sRLs}, s{sRLs}, 128"]
                        if r6 == 5:
                            n = vm.need([("RL", s - 4, 1)])
                            cold.append(f"s_waitcnt vmcnt({n})")
                            for bi in range(2):
                                b = vRLb + 4*bi
                                vm.issue(("RS", s, bi))
                                cold += [f"buffer_store_dwordx4 v[{b}:{b+3}], v{vRLd}, s[{SWS}:{SWS+3}], s{sRLd} offen {st}", f"s_add_u32 s{sRLd}, s{sRLd}, {44*8192}"]
                    pass
                if burst:
                    if cold: dm.append(cold)
                else:
                    if touch and s < 2:
                        for q in range(2 + s*((PT-1)//2), min(PT, 2 + (s+1)*((PT-1)//2)) if s == 0 else PT): dm.append(touch_ops(vm, ("T", q)))
                    if touch and s % 2 == 0 and s < L0 + 24: dm.append(touch_ops(vm, ("T", s // 2 + PT)))
                    if relayout and L0 <= s < L0 + 24:
                        r6 = (s - L0) % 6
                        if r6 in (0, 2):
                            b = vRLb + 2*r6
                            vm.issue(("RL", s))
                            dm.append([f"buffer_load_dwordx4 v[{b}:{b+3}], v{vRL}, s[{SRL}:{SRL+3}], s{sRLs} offen {rfl}", f"s_add_u32 s{sRLs}, s{sRLs}, 128"])
                        if r6 in (4, 5):
                            src = s - 4 if r6 == 4 else s - 3
                            b = vRLb + (0 if r6 == 4 else 4)
                            n = vm.need([("RL", src)])
                            vm.issue(("RS", s))
                            dm.append([f"s_waitcnt vmcnt({n})", f"buffer_store_dwordx4 v[{b}:{b+3}], v{vRLd}, s[{SWS}:{SWS+3}], s{sRLd} offen {st}", f"s_add_u32 s{sRLd}, s{sRLd}, {44*8192}"])
            else:
                if NW == 4 and s == 0: dm += dmaW(3)
                if s + NW < NS: dm += dmaW(s + NW)
            if att and wsp_tail and s == wsp_tail:
                vm.issue("wsp")
                if wsplit:
                    dm.append([f"s_mov_b32 s{SRL}, s{pWSP}", f"s_mov_b32 s{SRL+1}, s{pWSP+1}", f"s_mov_b32 s{SRL+2}, {2048*4096}", f"s_mov_b32 s{SRL+3}, {hex(SRD3)}",
                               f"s_lshl_b32 s{t0}, s2, 15", f"s_lshl_b32 s{t1}, s{sWQ}, 13", f"s_add_u32 s{t0}, s{t0}, s{t1}", f"s_add_u32 s{t0}, s{t0}, 2048",
                               f"v_lshrrev_b32 v{vRL}, 4, v{vLane}", f"v_lshlrev_b32 v{vRL}, 12, v{vRL}", f"v_and_b32 v{vDum}, 15, v{vLane}", f"v_lshlrev_b32 v{vDum}, 7, v{vDum}",
                               f"v_add_u32 v{vRL}, v{vRL}, v{vDum}", f"v_cmp_gt_u32 vcc, 32, v{vLane}", f"v_mov_b32 v{vDum}, {hex(OOB)}", f"v_cndmask_b32 v{vRL}, v{vDum}, v{vRL}, vcc",
                               f"buffer_load_dword v{vDum}, v{vRL}, s[{SRL}:{SRL+3}], s{t0} offen"])
                else:
                    dm.append([f"s_mov_b32 s{SRL}, s{pWSP}", f"s_mov_b32 s{SRL+1}, s{pWSP+1}", f"s_mov_b32 s{SRL+2}, {2048*4096}", f"s_mov_b32 s{SRL+3}, {hex(SRD3)}",
                               ] + (
                               [f"s_and_b32 s{t0}, s2, 7", f"s_lshr_b32 s{t2}, s{t0}, 1", f"s_lshl_b32 s{t2}, s{t2}, 21", f"s_lshr_b32 s{t3}, s2, 3"] +
                               ([f"s_and_b32 s{t0}, s{t0}, 1", f"s_lshl_b32 s{t0}, s{t0}, 5", f"s_add_u32 s{t3}, s{t3}, s{t0}", f"s_lshl_b32 s{t3}, s{t3}, 15", f"s_lshl_b32 s{t1}, s{sWQ}, 13"] if wsp_aff == 1 else
                                [f"s_lshl_b32 s{t3}, s{t3}, 16", f"s_lshl_b32 s{t1}, s{sWQ}, 14"]) +
                               [f"s_add_u32 s{t0}, s{t2}, s{t3}", f"s_add_u32 s{t0}, s{t0}, s{t1}"]
                               if wsp_aff else
                               [f"s_lshl_b32 s{t0}, s2, 15", f"s_lshl_b32 s{t1}, s{sWQ}, 13", f"s_add_u32 s{t0}, s{t0}, s{t1}"]) + [
                               f"v_lshlrev_b32 v{vRL}, 7, v{vLane}", f"buffer_load_dword v{vDum}, v{vRL}, s[{SRL}:{SRL+3}], s{t0} offen"] +
                               ([f"s_add_u32 s{t0}, s{t0}, 8192", f"buffer_load_dword v{vDum}, v{vRL}, s[{SRL}:{SRL+3}], s{t0} offen"] if wsp_aff == 2 else []))
                    if wsp_aff == 2: vm.issue("wsp2")
            if s == GL: dm.append(gate_loads(vm))
            slots = [[] for _ in range(nm)]
            for k, x in enumerate(rd): slots[min(nm-1, (k*(nm-5))//len(rd))].append(x)
            last_pos = -9
            for k, g in enumerate(dm):
                if dpos == "late" and 2*len(dm) + 2 <= nm: pos = nm - 2*len(dm) + 2*k
                elif dpos == "mid" and 3*len(dm) + 2 <= nm: pos = nm - 3*len(dm) + 3*k
                else: pos = min(nm-1, 1 + (k*(nm-3))//max(len(dm), 1))
                assert pos - last_pos >= 2, (role, s, k, len(dm)); last_pos = pos
                if g[0].startswith("s_add_u32 m0") or g[0].startswith("s_mul_i32"):
                    n0 = 2 if g[0].startswith("s_mul_i32") else 1
                    slots[pos-1].extend(g[:n0]); slots[pos] = g[n0:] + slots[pos]
                else: slots[pos].extend(g)
            if GS0 <= s < GS1:
                per = -(-len(gcomp)//(GS1 - GS0)); part = gcomp[(s-GS0)*per:(s-GS0+1)*per]
                if s == GS0: slots[0].append(f"s_waitcnt vmcnt({gate_wait})")
                for k, x in enumerate(part): slots[min(nm-1, 1 + (k*(nm-2))//len(part))].append(x)
            if not att and s == 29: assert vm.need([("W", 31, 3)]) == 0
            if not att and s == 30:
                slots[0] += [f"s_cmp_eq_u32 s{sWQ}, 0", f"s_cselect_b32 s{t0}, s{sNJ}, 0", f"s_cmp_ge_u32 s{t0}, 16", f"s_cbranch_scc0 L_{name}_noc1",
                             f"s_mov_b32 s{ST}, s{pDBG}", f"s_mov_b32 s{ST+1}, s{pDBG+1}", f"s_mov_b32 s{ST+2}, 256", f"s_mov_b32 s{ST+3}, {hex(SRD3)}",
                             f"s_lshl_b32 s{t1}, s{sMI}, 5", f"v_mov_b32 v{vA}, 0", f"v_mov_b32 v{vB_}, 1",
                             f"s_mov_b64 s[{t2}:{t3}], exec", "s_mov_b64 exec, 1",
                             f"buffer_atomic_add v{vB_}, v{vA}, s[{ST}:{ST+3}], s{t1} offen sc1",
                             f"s_mov_b64 exec, s[{t2}:{t3}]", f"L_{name}_noc1:"]
            if s == GS1:
                vm.issue("gst"); slots[2].append(gstore)
            seq = []
            for k in range(nm):
                seq.append(m[k]); seq += slots[k]
            need = []
            if s + 2 < NS:
                if att: need = [("A", (s+2) >> 1, e) for e in range(8)]
                else: need = [("W", s+2, j) for j in range(4)]
            if s + 1 < NS:
                w = f"s_waitcnt lgkmcnt(0)" if not need else f"s_waitcnt vmcnt({vm.need(need)}) lgkmcnt(0)"
                seq.append(w); seq.append("s_barrier")
            steps.append(seq)
        n_iter = 24 // U
        for s in range(L0):
            for l in steps[s]: a(l)
        fold_loop(a, steps, L0, n_iter, U, f"L_{name}_loop{role}", sIT)
        for s in range(L0 + n_iter*U, NS):
            for l in steps[s]: a(l)
    a.label(f"L_{name}_amain")
    main_loop("A")
    P.stamp(2)
    epilogue_att(a, locals())
    a(f"s_branch L_{name}_fin")
    a.label(f"L_{name}_gmain")
    main_loop("G")
    P.stamp(2)
    epilogue_gmlp(a, locals())
    a.label(f"L_{name}_fin")
    if prof: a("s_waitcnt vmcnt(0)")
    P.stamp(5)
    P.dump(vLane, sW)
    if wsp_epi:
        srd(a, ST, pWSP, 0, 2048*4096)
        a(f"s_lshl_b32 s{t0}, s{sMI}, 4"); a(f"s_add_u32 s{t0}, s{t0}, s{sNJ}"); a(f"s_lshl_b32 s{t0}, s{t0}, 16")
        a(f"s_lshl_b32 s{t1}, s{sW}, 13"); a(f"s_add_u32 s{t0}, s{t0}, s{t1}")
        a(f"s_cmp_lt_u32 s{sNJ}, 16"); a(f"s_cselect_b32 s{t0}, s{t0}, {hex(OOB)}")
        a(f"v_lshlrev_b32 v{vA}, 7, v{vLane}")
        a(f"buffer_load_dword v{vDum}, v{vA}, s[{ST}:{ST+3}], s{t0} offen")
    a.label(f"L_{name}_end")
    a("s_endpgm")
    return kernel_text(name, a, nv=256, ns=102, ao=256), S1_LDS

from s1_epi import epilogue_att, epilogue_gmlp
```

```python
from asmlib import *
from common import *
from s1_epi import softmax_pm, softmax_exp, pack8, f2h, LOG2E

SLOT = 32768
def gen_s2(name="s2_kernel", prof=False, st="sc1", R=4, pmode="epi", relayout=False, place="late", stag=False, rl_tail=False, w_touch=False, mfsum=True, qall=False, flags=False, defer_gelu=False, krot=0, hprio=False):
    a = Asm()
    P = Prof(a, prof); P.mode = pmode
    NS = 32
    pPHI, pWSP, pBSP, pWS = 4, 6, 8, 10
    SX, SZ, SWS, SB = 12, 16, 20, 24
    sW, sTH, sFH, sKH, sTB, sFB, sIT = 28, 29, 30, 31, 32, 33, 34
    sKX, sKZ, sMx, sMz = 35, 36, 37, 38
    t0, t1, t2, t3 = 40, 41, 42, 43
    sC = 44
    pWO, pWOUT, SRL = 46, 48, 52
    sRg, sRn, sRs, sRd, sRi = 50, 51, 56, 57, 58
    vLane, vA, vB_, vC, vD = 1, 2, 3, 4, 5
    vXs = [6, 7]; vZs = [8, 9]
    vXr = [10, 11]; vZr = [12, 13]
    vL16 = 14
    vG = [16, 17]; vBs = [18, 19]
    XF, ZF = 32, 64
    ACC = 96
    Z1R = 160
    a("s_cmp_ge_u32 s2, 256")
    a(f"s_cbranch_scc1 L_{name}_end")
    P.stamp(0)
    a(f"s_load_dwordx2 s[{pPHI}:{pPHI+1}], s[0:1], {KA_WPHI}")
    a(f"s_load_dwordx2 s[{pWSP}:{pWSP+1}], s[0:1], {KA_WSP}")
    a(f"s_load_dwordx2 s[{pBSP}:{pBSP+1}], s[0:1], {KA_BSP}")
    a(f"s_load_dwordx2 s[{pWS}:{pWS+1}], s[0:1], {KA_WS}")
    a(f"s_load_dwordx2 s[{pWO}:{pWO+1}], s[0:1], {KA_WO}")
    a(f"s_load_dwordx2 s[{pWOUT}:{pWOUT+1}], s[0:1], {KA_WOUT}")
    a(f"v_lshrrev_b32 v{vA}, 6, v0")
    a(f"v_and_b32 v{vLane}, 63, v0")
    a(f"v_readfirstlane_b32 s{sW}, v{vA}")
    a(f"v_lshlrev_b32 v{vL16}, 4, v{vLane}")
    a(f"s_and_b32 s{t0}, s2, 7"); a(f"s_lshr_b32 s{t1}, s2, 3")
    a(f"s_mov_b32 s{sC}, 1.0"); a(f"s_mov_b32 s{sC+1}, 1.0")
    a("s_waitcnt lgkmcnt(0)")
    P.stamp(3, "pro")
    srd(a, SWS, pWS, 0, WS_USED)
    if flags:
        a(f"s_lshl_b32 s{t2}, s2, 7"); a(f"s_add_u32 s{t2}, s{t2}, {FLG_OFF}")
        a(f"v_mov_b32 v{vA}, 0"); a(f"v_lshlrev_b32 v{vB_}, 2, v{vLane}"); a(f"v_cmp_gt_u32 vcc, 32, v{vLane}"); a(f"v_mov_b32 v{vC}, 0x40000000"); a(f"v_cndmask_b32 v{vB_}, v{vC}, v{vB_}, vcc")
        a(f"s_cmp_eq_u32 s{sW}, 0"); a(f"s_cselect_b32 s{t2}, s{t2}, 0x40000000")
        a(f"buffer_store_dword v{vA}, v{vB_}, s[{SWS}:{SWS+3}], s{t2} offen sc1")
    a(f"s_cmp_ge_u32 s{t1}, 28")
    a(f"s_cbranch_scc1 L_{name}_att")
    a(f"s_lshr_b32 s{t2}, s{t0}, 1"); a(f"s_lshl_b32 s{t2}, s{t2}, 2"); a(f"s_and_b32 s{t3}, s{t1}, 3"); a(f"s_add_u32 s{sTB}, s{t2}, s{t3}")
    a(f"s_and_b32 s{t2}, s{t0}, 1"); a(f"s_mul_i32 s{t2}, s{t2}, 7"); a(f"s_lshr_b32 s{t3}, s{t1}, 2"); a(f"s_add_u32 s{sFB}, s{t2}, s{t3}")
    a(f"s_and_b32 s{sTH}, s{sW}, 1"); a(f"s_bfe_u32 s{sFH}, s{sW}, 0x10001"); a(f"s_lshr_b32 s{sKH}, s{sW}, 2")
    srd(a, SX, pWSP, 0, 2048*4096)
    srd(a, SZ, pWS, Z2_OFF, Z2_SZ)
    srd(a, SB, pBSP, 0, 4096)
    def hswz(dst, u, tmp):
        a(f"v_lshrrev_b32 v{tmp}, 1, v{u}"); a(f"v_lshrrev_b32 v{dst}, 2, v{u}"); a(f"v_xor_b32 v{tmp}, v{tmp}, v{dst}"); a(f"v_and_b32 v{tmp}, 1, v{tmp}")
        a(f"v_and_b32 v{dst}, 1, v{u}"); a(f"v_lshl_or_b32 v{tmp}, v{dst}, 1, v{tmp}"); a(f"v_and_b32 v{dst}, 4, v{u}"); a(f"v_or_b32 v{dst}, v{dst}, v{tmp}")
    for e in range(2):
        a(f"v_lshrrev_b32 v{vA}, 4, v{vLane}"); a(f"v_add_u32 v{vA}, {4*e}, v{vA}")
        hswz(vB_, vA, vC)
        a(f"v_and_b32 v{vA}, 7, v{vLane}"); a(f"v_xor_b32 v{vA}, v{vA}, v{vB_}"); a(f"v_lshlrev_b32 v{vA}, 4, v{vA}")
        a(f"v_lshrrev_b32 v{vB_}, 3, v{vLane}")
        a(f"s_lshl_b32 s{t2}, s{sTB}, 7"); a(f"s_lshl_b32 s{t3}, s{sW}, 4"); a(f"s_add_u32 s{t2}, s{t2}, s{t3}"); a(f"s_add_u32 s{t2}, s{t2}, {8*e}")
        a(f"v_add_u32 v{vB_}, s{t2}, v{vB_}"); a(f"v_lshlrev_b32 v{vB_}, 12, v{vB_}"); a(f"v_add_u32 v{vXs[e]}, v{vB_}, v{vA}")
    a(f"v_bfe_u32 v{vA}, v{vLane}, 2, 2"); a(f"v_lshlrev_b32 v{vA}, 8, v{vA}")
    a(f"v_lshrrev_b32 v{vB_}, 4, v{vLane}"); a(f"v_lshlrev_b32 v{vB_}, 6, v{vB_}"); a(f"v_add_u32 v{vA}, v{vA}, v{vB_}")
    a(f"v_and_b32 v{vB_}, 3, v{vLane}"); a(f"v_lshlrev_b32 v{vB_}, 4, v{vB_}"); a(f"v_add_u32 v{vA}, v{vA}, v{vB_}")
    a(f"s_mul_i32 s{t2}, s{sKH}, 112"); a(f"s_lshl_b32 s{t3}, s{sFB}, 3"); a(f"s_add_u32 s{t2}, s{t2}, s{t3}")
    a(f"s_and_b32 s{t3}, s{sW}, 3"); a(f"s_lshl_b32 s{t3}, s{t3}, 1"); a(f"s_add_u32 s{t2}, s{t2}, s{t3}"); a(f"s_lshl_b32 s{t2}, s{t2}, 10")
    a(f"v_add_u32 v{vZs[0]}, s{t2}, v{vA}"); a(f"v_add_u32 v{vZs[1]}, 1024, v{vZs[0]}")
    a(f"s_lshl_b32 s{sMx}, s{sW}, 11"); a(f"s_add_u32 s{sMz}, s{sMx}, 16384")
    if krot:
        a(f"s_and_b32 s{t2}, s2, 7"); a(f"s_mul_i32 s{t2}, s{t2}, {krot}"); a(f"s_and_b32 s{t2}, s{t2}, 31")
        a(f"s_lshl_b32 s{sKX}, s{t2}, 7"); a(f"s_mul_i32 s{sKZ}, s{t2}, {2*112*1024}")
    else:
        a(f"s_mov_b32 s{sKX}, 0"); a(f"s_mov_b32 s{sKZ}, 0")
    vm = VmTracker()
    def dma(tile):
        slot = tile % R; out = []
        for e in range(2):
            vm.issue(("T", tile, e))
            out.append([f"s_add_u32 m0, s{sMx}, {slot*SLOT + e*1024}", f"buffer_load_dwordx4 v{vXs[e]}, s[{SX}:{SX+3}], s{sKX} offen lds"])
        for e in range(2):
            vm.issue(("T", tile, 2+e))
            out.append([f"s_add_u32 m0, s{sMz}, {slot*SLOT + e*1024}", f"buffer_load_dwordx4 v{vZs[e]}, s[{SZ}:{SZ+3}], s{sKZ} offen lds"])
        out[-1] += [f"s_add_u32 s{sKX}, s{sKX}, 128", f"s_add_u32 s{sKZ}, s{sKZ}, {2*112*1024}"]
        if krot: out[-1] += [f"s_and_b32 s{sKX}, s{sKX}, 4095", f"s_cselect_b32 s{sKZ}, s{sKZ}, 0"]
        return out
    for g_ in dma(0):
        for l in g_: a(l)
    P.stamp(4, "pro")
    def epi_loads():
        o = []
        o += [f"s_lshl_b32 s{t2}, s{sTB}, 7", f"s_lshl_b32 s{t3}, s{sTH}, 6", f"s_add_u32 s{t2}, s{t2}, s{t3}", f"s_lshl_b32 s{t3}, s{sKH}, 5", f"s_add_u32 s{t2}, s{t2}, s{t3}",
              f"v_and_b32 v{vA}, 15, v{vLane}", f"v_add_u32 v{vA}, s{t2}, v{vA}",
              f"v_lshlrev_b32 v{vB_}, 2, v{vA}", f"v_add_u32 v{vB_}, {GATE_OFF}, v{vB_}", f"v_lshlrev_b32 v{vC}, 1, v{vA}"]
        g1 = list(o); o = []
        for ii in range(2):
            o.append(f"buffer_load_dword v{vG[ii]}, v{vB_}, s[{SWS}:{SWS+3}], 0 offen offset:{64*ii}"); vm.issue(("g", ii))
            o.append(f"buffer_load_ushort v{vBs[ii]}, v{vC}, s[{SB}:{SB+3}], 0 offen offset:{32*ii}"); vm.issue(("b", ii))
        g2 = list(o)
        o = [f"s_lshl_b32 s{t2}, s{sTB}, 2", f"s_lshl_b32 s{t3}, s{sTH}, 1", f"s_add_u32 s{t2}, s{t2}, s{t3}", f"s_add_u32 s{t2}, s{t2}, s{sKH}", f"s_mul_i32 s{t2}, s{t2}, 112",
             f"s_lshl_b32 s{t3}, s{sFB}, 3", f"s_add_u32 s{t2}, s{t2}, s{t3}", f"s_lshl_b32 s{t3}, s{sFH}, 2", f"s_add_u32 s{t2}, s{t2}, s{t3}",
             f"s_lshl_b32 s{t2}, s{t2}, 10", f"s_add_u32 s{t2}, s{t2}, {Z1_OFF}"]
        g3 = list(o); o = []
        for i2 in range(4):
            o.append(f"buffer_load_dwordx4 v[{Z1R+4*i2}:{Z1R+4*i2+3}], v{vL16}, s[{SWS}:{SWS+3}], s{t2} offen offset:{1024*i2}"); vm.issue(("z1", i2))
        return [g1, g2, g3, o]
    RLT, vRLt = 176, 15
    def rl_loads():
        o = [f"s_and_b32 s{t0}, s2, 7", f"s_mul_i32 s{t0}, s{t0}, 28", f"s_lshr_b32 s{t1}, s2, 3", f"s_add_u32 s{t0}, s{t0}, s{t1}",
             f"s_lshl_b32 s{t0}, s{t0}, 3", f"s_add_u32 s{t0}, s{t0}, s{sW}",
             f"s_lshr_b32 s{t1}, s{t0}, 2", f"s_and_b32 s{t2}, s{t0}, 3",
             f"s_cmp_lt_u32 s{t1}, 128",
             f"s_cselect_b32 s{SRL}, s{pWO}, s{pWOUT}", f"s_cselect_b32 s{SRL+1}, s{pWO+1}, s{pWOUT+1}",
             f"s_mov_b32 s{t3}, {1792*2048}", f"s_cselect_b32 s{SRL+2}, {1024*2048}, s{t3}", f"s_mov_b32 s{SRL+3}, {hex(SRD3)}",
             f"s_cselect_b32 s{t3}, 0, 128", f"s_sub_u32 s{t3}, s{t1}, s{t3}", f"s_lshl_b32 s{t3}, s{t3}, 14",
             f"s_lshl_b32 s{sRs}, s{t2}, 9", f"s_add_u32 s{sRs}, s{sRs}, s{t3}",
             f"s_mul_i32 s{sRd}, s{t2}, {4*44*8192}", f"s_lshl_b32 s{t3}, s{t1}, 10", f"s_add_u32 s{sRd}, s{sRd}, s{t3}", f"s_add_u32 s{sRd}, s{sRd}, {WT_OFF}",
             f"s_cmp_lt_u32 s{t0}, 1408", f"s_cselect_b32 s{sRs}, s{sRs}, 0x40000000", f"s_cselect_b32 s{sRd}, s{sRd}, 0x40000000"]
        v = [f"v_lshrrev_b32 v{vA}, 3, v{vLane}", f"v_lshrrev_b32 v{vB_}, 1, v{vA}", f"v_bfe_u32 v{vC}, v{vLane}, 1, 2", f"v_xor_b32 v{vC}, v{vC}, v{vB_}",
             f"v_lshlrev_b32 v{vC}, 5, v{vC}", f"v_and_b32 v{vB_}, 1, v{vLane}", f"v_lshlrev_b32 v{vB_}, 4, v{vB_}", f"v_add_u32 v{vC}, v{vC}, v{vB_}",
             f"v_lshlrev_b32 v{vA}, 11, v{vA}", f"v_add_u32 v{vRLt}, v{vA}, v{vC}"]
        ld = []
        for i in range(4):
            vm.issue(("RL", i))
            ld.append(f"buffer_load_dwordx4 v[{RLT+4*i}:{RLT+4*i+3}], v{vRLt}, s[{SRL}:{SRL+3}], s{sRs} offen offset:{128*i}")
        return [o, v, ld]
    a(f"v_and_b32 v{vA}, 15, v{vLane}"); a(f"v_lshrrev_b32 v{vD}, 1, v{vA}")
    hswz(vB_, vD, vC)
    a(f"v_lshrrev_b32 v{vC}, 4, v{vLane}")
    a(f"v_and_b32 v{vD}, 1, v{vC}"); a(f"v_lshlrev_b32 v{vD}, 1, v{vD}"); a(f"v_lshrrev_b32 v{vC}, 1, v{vC}"); a(f"v_or_b32 v{vC}, v{vC}, v{vD}")
    a(f"s_lshl_b32 s{t2}, s{sKH}, 2"); a(f"v_or_b32 v{vC}, s{t2}, v{vC}"); a(f"v_xor_b32 v{vC}, v{vC}, v{vB_}"); a(f"v_lshlrev_b32 v{vC}, 4, v{vC}")
    a(f"v_lshlrev_b32 v{vA}, 7, v{vA}"); a(f"v_add_u32 v{vA}, v{vA}, v{vC}"); a(f"s_lshl_b32 s{t2}, s{sTH}, 13"); a(f"v_add_u32 v{vXr[0]}, s{t2}, v{vA}")
    a(f"v_add_u32 v{vXr[1]}, 65536, v{vXr[0]}")
    a(f"v_lshrrev_b32 v{vA}, 5, v{vLane}"); a(f"v_lshlrev_b32 v{vA}, 9, v{vA}")
    a(f"v_and_b32 v{vB_}, 3, v{vLane}"); a(f"v_lshlrev_b32 v{vB_}, 6, v{vB_}"); a(f"v_add_u32 v{vA}, v{vA}, v{vB_}")
    a(f"v_bfe_u32 v{vB_}, v{vLane}, 2, 2"); a(f"v_lshlrev_b32 v{vB_}, 4, v{vB_}"); a(f"v_add_u32 v{vA}, v{vA}, v{vB_}")
    a(f"v_bfe_u32 v{vB_}, v{vLane}, 4, 1"); a(f"v_lshlrev_b32 v{vB_}, 3, v{vB_}"); a(f"v_add_u32 v{vA}, v{vA}, v{vB_}")
    a(f"s_lshl_b32 s{t2}, s{sKH}, 13"); a(f"s_lshl_b32 s{t3}, s{sFH}, 12"); a(f"s_add_u32 s{t2}, s{t2}, s{t3}"); a(f"s_add_u32 s{t2}, s{t2}, 16384")
    a(f"v_add_u32 v{vZr[0]}, s{t2}, v{vA}"); a(f"v_add_u32 v{vZr[1]}, 65536, v{vZr[0]}")
    for i in range(64): a(f"v_mov_b32 v{ACC+i}, 0")
    def reads(step):
        slot = step % R; hi = slot >> 1; off = (slot & 1)*SLOT
        xb = XF + (step % 2)*16; zb = ZF + (step % 2)*16
        out = [f"ds_read_b128 v[{xb+4*i}:{xb+4*i+3}], v{vXr[hi]} offset:{off + i*2048}" for i in range(4)]
        for i2 in range(4):
            for sec in range(2):
                r = zb + 4*i2 + 2*sec
                out.append(f"ds_read_b64_tr_b16 v[{r}:{r+1}], v{vZr[hi]} offset:{off + i2*1024 + sec*256}")
        return out
    def mfmas(step):
        xb = XF + (step % 2)*16; zb = ZF + (step % 2)*16; out = []
        for i2 in range(4):
            for i in (range(4) if i2 % 2 == 0 else range(3, -1, -1)):
                c = ACC + (i2*4+i)*4
                out.append(f"v_mfma_f32_16x16x32_bf16 v[{c}:{c+3}], v[{zb+4*i2}:{zb+4*i2+3}], v[{xb+4*i}:{xb+4*i+3}], v[{c}:{c+3}]")
        return out
    for g_ in dma(1):
        for l in g_: a(l)
    a(f"s_waitcnt vmcnt({vm.need([('T', 0, e) for e in range(4)])})")
    a("s_barrier")
    for l in reads(0): a(l)
    a(f"s_waitcnt vmcnt({vm.need([('T', 1, e) for e in range(4)])}) lgkmcnt(0)")
    a("s_barrier")
    P.stamp(1)
    if hprio:
        a(f"s_cmp_ge_u32 s{sW}, 4"); a(f"s_cbranch_scc0 L_{name}_np"); a("s_setprio 1"); a.label(f"L_{name}_np")
    steps = []; nxt = 2; EL = NS - R
    if defer_gelu: EL = NS - R - 2
    def gelu_ops():
        c1 = -2.0*0.7978845608028654*LOG2E; c3 = c1*0.044715
        vc1 = 15
        o = [f"v_mov_b32 v{vc1}, {f2h(c1)}", f"s_mov_b32 s{sC}, {f2h(c3)}"]
        for r0 in range(0, 16, 2):
            xs = [20, 21, 22, 23]; ts = [24, 25, 26, 27]
            for k in range(2):
                z = Z1R + r0 + k
                o += [f"v_lshlrev_b32 v{xs[2*k]}, 16, v{z}", f"v_and_b32 v{xs[2*k+1]}, 0xffff0000, v{z}"]
            o += [f"v_mul_f32 v{t}, v{x}, v{x}" for x, t in zip(xs, ts)]
            o += [f"v_fma_f32 v{t}, v{t}, s{sC}, v{vc1}" for x, t in zip(xs, ts)]
            o += [f"v_mul_f32 v{t}, v{t}, v{x}" for x, t in zip(xs, ts)]
            o += [f"v_exp_f32 v{t}, v{t}" for t in ts]
            o += [f"v_add_f32 v{t}, 1.0, v{t}" for t in ts]
            o += [f"v_rcp_f32 v{t}, v{t}" for t in ts]
            o += [f"v_mul_f32 v{x}, v{x}, v{t}" for x, t in zip(xs, ts)]
            o += [f"v_cvt_pk_bf16_f32 v{Z1R + r0 + k}, v{xs[2*k]}, v{xs[2*k+1]}" for k in range(2)]
        return o
    gops = gelu_ops() if defer_gelu else []
    G0s = NS - 4
    for s in range(NS):
        m = mfmas(s); nm = len(m)
        rd = reads(s+1) if s + 1 < NS else []
        dm = []
        cnt = 0
        if defer_gelu and s == G0s: z1_wait = vm.need([("z1", 3)])
        while nxt < NS and nxt <= s + R and cnt < 2:
            dm += dma(nxt); nxt += 1; cnt += 1
        slots = [[] for _ in range(nm)]
        for k, x in enumerate(rd): slots[min(nm-1, (k*(nm-3))//len(rd))].append(x)
        sp = 3 if len(dm) <= 5 else 2
        if place == "end" and len(dm) <= 5:
            for k, g_ in enumerate(dm): slots[nm-1] += [g_[0], "s_nop 0"] + g_[1:]
        else:
            p0 = 1 if (place == "early" or len(dm) > 5) else 8
            if p0 == 8: sp = 2
            for k, g_ in enumerate(dm):
                pos = p0 + sp*k
                slots[pos-1].append(g_[0]); slots[pos] = g_[1:] + slots[pos]
        if s == EL:
            for k, g_ in enumerate(epi_loads()): slots[(11 + k) if dm else (1 + 3*k)] += g_
        if defer_gelu and s >= G0s:
            per = -(-len(gops)//4); part = gops[(s-G0s)*per:(s-G0s+1)*per]
            if s == G0s: slots[0].append(f"s_waitcnt vmcnt({z1_wait})")
            for k, x in enumerate(part): slots[min(nm-1, 1 + (k*(nm-1))//len(part))].append(x)
        if rl_tail and s == EL + 1:
            for k, g_ in enumerate(rl_loads()): slots[1 + 4*k] += g_
        seq = []
        for k in range(nm): seq.append(m[k]); seq += slots[k]
        if s + 1 < NS:
            need = [("T", s+2, e) for e in range(4)] if s + 2 < NS else []
            seq.append(f"s_waitcnt vmcnt({vm.need(need)}) lgkmcnt(0)" if need else "s_waitcnt lgkmcnt(0)")
            seq.append("s_barrier")
        steps.append(seq)
    L0 = 2
    n_iter = (NS - R - L0)//R
    for s in range(L0):
        for l in steps[s]: a(l)
    fold_loop(a, steps, L0, n_iter, R, f"L_{name}_loop", sIT)
    for s in range(L0 + n_iter*R, NS):
        for l in steps[s]: a(l)
    P.stamp(2)
    acc = lambda i2, i: ACC + (i2*4+i)*4
    a(f"s_lshl_b32 s{t2}, s{sW}, 13"); a(f"v_add_u32 v{vA}, s{t2}, v{vL16}")
    a(f"s_xor_b32 s{t2}, s{sW}, 4"); a(f"s_lshl_b32 s{t2}, s{t2}, 13"); a(f"v_add_u32 v{vB_}, s{t2}, v{vL16}")
    KEEP = 32
    a(f"s_cmp_eq_u32 s{sKH}, 0")
    a(f"s_cbranch_scc0 L_{name}_k1")
    for kh in range(2):
        if kh == 1: a.label(f"L_{name}_k1")
        for i2 in range(4):
            for ii in range(2):
                r = acc(i2, 2*(1-kh)+ii)
                a(f"ds_write_b128 v{vA}, v[{r}:{r+3}] offset:{(i2*2+ii)*1024}")
        for i2 in range(4):
            for ii in range(2):
                r = acc(i2, 2*kh+ii); d = KEEP + (i2*2+ii)*4
                for q in range(4): a(f"v_mov_b32 v{d+q}, v{r+q}")
        if kh == 0: a(f"s_branch L_{name}_kj")
    a.label(f"L_{name}_kj")
    a("s_waitcnt lgkmcnt(0)")
    a("s_barrier")
    RX = 64
    for b in range(8): a(f"ds_read_b128 v[{RX+4*b}:{RX+4*b+3}], v{vB_} offset:{b*1024}")
    a(f"s_waitcnt vmcnt({vm.need([('z1', 3), ('g', 1), ('b', 1)])})")
    SS, SB2 = 20, 24
    for ii in range(2):
        a(f"v_sub_f32 v{SS+2*ii}, 1.0, v{vG[ii]}"); a(f"v_lshlrev_b32 v{vBs[ii]}, 16, v{vBs[ii]}"); a(f"v_mov_b32 v{SS+2*ii+1}, v{SS+2*ii}")
        a(f"v_mul_f32 v{SB2+2*ii}, v{vBs[ii]}, v{SS+2*ii}"); a(f"v_mov_b32 v{SB2+2*ii+1}, v{SB2+2*ii}")
    a("s_waitcnt lgkmcnt(0)")
    for b in range(8):
        for q in (0, 2):
            a(f"v_pk_add_f32 v[{KEEP+4*b+q}:{KEEP+4*b+q+1}], v[{KEEP+4*b+q}:{KEEP+4*b+q+1}], v[{RX+4*b+q}:{RX+4*b+q+1}]")
    TZ = 28
    for i2 in range(4):
        for ii in range(2):
            k = KEEP + (i2*2+ii)*4
            for q in range(2):
                z = Z1R + 4*i2 + 2*ii + q
                a(f"v_pk_fma_f32 v[{k+2*q}:{k+2*q+1}], v[{k+2*q}:{k+2*q+1}], v[{SS+2*ii}:{SS+2*ii+1}], v[{SB2+2*ii}:{SB2+2*ii+1}]")
                a(f"v_lshlrev_b32 v{TZ+2*q}, 16, v{z}"); a(f"v_and_b32 v{TZ+2*q+1}, 0xffff0000, v{z}")
                a(f"v_pk_mul_f32 v[{k+2*q}:{k+2*q+1}], v[{k+2*q}:{k+2*q+1}], v[{TZ+2*q}:{TZ+2*q+1}]")
    a(f"s_lshl_b32 s{t2}, s{sTB}, 3"); a(f"s_lshl_b32 s{t3}, s{sTH}, 2"); a(f"s_add_u32 s{t2}, s{t2}, s{t3}"); a(f"s_lshl_b32 s{t3}, s{sKH}, 1"); a(f"s_add_u32 s{t2}, s{t2}, s{t3}")
    a(f"s_mul_i32 s{t2}, s{t2}, {NKB}"); a(f"s_lshl_b32 s{t3}, s{sFB}, 2"); a(f"s_add_u32 s{t2}, s{t2}, s{t3}"); a(f"s_lshl_b32 s{t3}, s{sFH}, 1"); a(f"s_add_u32 s{t2}, s{t2}, s{t3}")
    a(f"s_add_u32 s{t2}, s{t2}, 32"); a(f"s_lshl_b32 s{t2}, s{t2}, 10"); a(f"s_add_u32 s{t2}, s{t2}, {ACAT_OFF}")
    O = 64
    for ii in range(2):
        for pr in range(2):
            r = O + (ii*2+pr)*4
            pack8(a, r, KEEP + ((2*pr)*2+ii)*4, KEEP + ((2*pr+1)*2+ii)*4)
            a(f"buffer_store_dwordx4 v[{r}:{r+3}], v{vL16}, s[{SWS}:{SWS+3}], s{t2} offen offset:{pr*1024} {st}")
        if ii == 0: a(f"s_add_u32 s{t2}, s{t2}, {NKB*1024}")
    if rl_tail:
        a("s_waitcnt vmcnt(4)")
        for i in range(4):
            a(f"buffer_store_dwordx4 v[{RLT+4*i}:{RLT+4*i+3}], v{vL16}, s[{SWS}:{SWS+3}], s{sRd} offen {st}")
            a(f"s_add_u32 s{sRd}, s{sRd}, {44*8192}")
    a(f"s_branch L_{name}_fin")

    a.label(f"L_{name}_att")
    sH = sTB
    a(f"s_lshl_b32 s{t0}, s{t0}, 2"); a(f"s_sub_u32 s{t1}, s{t1}, 28"); a(f"s_add_u32 s{sH}, s{t0}, s{t1}")
    srd(a, SB, pPHI, 0, 65536)
    WPHI, KVS = 0, 2048
    a(f"s_and_b32 s{t0}, s{sW}, 1"); a(f"s_lshl_b32 s{t0}, s{t0}, 10"); a(f"s_lshl_b32 s{t1}, s{sH}, 11"); a(f"s_add_u32 s{t1}, s{t1}, s{t0}")
    a(f"s_add_u32 m0, s{t0}, {WPHI}")
    a(f"buffer_load_dwordx4 v{vL16}, s[{SB}:{SB+3}], s{t1} offen lds")
    QN = 2 if qall else 4
    QR = 112
    GR = 128
    QL, GL_ = 8192, 8192 + 131072
    vQa, vGa = 23, 29
    sQ, sGo, sO = sKX, sKZ, sMx
    a(f"s_lshl_b32 s{sQ}, s{sH}, 7"); a(f"s_lshl_b32 s{t0}, s{sW}, 4"); a(f"s_add_u32 s{sQ}, s{sQ}, s{t0}"); a(f"s_lshl_b32 s{sQ}, s{sQ}, 10"); a(f"s_add_u32 s{sQ}, s{sQ}, {QBUF_OFF}")
    a(f"s_lshl_b32 s{sGo}, s{sW}, 10"); a(f"s_add_u32 s{sGo}, s{sGo}, {GATE_OFF}")
    a(f"v_and_b32 v{vD}, 15, v{vLane}"); a(f"v_lshlrev_b32 v{vD}, 2, v{vD}")
    a(f"s_lshl_b32 s{sO}, s{sW}, 4"); a(f"s_mul_i32 s{sO}, s{sO}, {NKB}"); a(f"s_add_u32 s{sO}, s{sO}, s{sH}"); a(f"s_lshl_b32 s{sO}, s{sO}, 10"); a(f"s_add_u32 s{sO}, s{sO}, {ACAT_OFF}")
    a(f"s_cmp_ge_u32 s{sW}, 6")
    a(f"s_cbranch_scc1 L_{name}_nokv")
    a(f"s_cmp_ge_u32 s{sW}, 3"); a(f"s_cselect_b32 s{t0}, 1, 0"); a(f"s_mul_i32 s{t1}, s{t0}, 3"); a(f"s_sub_u32 s{t1}, s{sW}, s{t1}")
    a(f"s_mul_i32 s{t0}, s{t0}, 6"); a(f"s_add_u32 s{t0}, s{t0}, s{t1}")
    a(f"s_mul_i32 s{t1}, s{sH}, 12"); a(f"s_add_u32 s{t0}, s{t0}, s{t1}"); a(f"s_lshl_b32 s{t0}, s{t0}, 10"); a(f"s_add_u32 s{t0}, s{t0}, {KVP_OFF}")
    KR = 32
    for mi in range(8):
        for fb in range(2):
            r = KR + (mi*2+fb)*4
            a(f"buffer_load_dwordx4 v[{r}:{r+3}], v{vL16}, s[{SWS}:{SWS+3}], s{t0} offen offset:{fb*3072}")
        a(f"s_add_u32 s{t0}, s{t0}, {32*12*1024}")
    a("s_waitcnt vmcnt(0)")
    for hlf in (4, 2, 1):
        for mi in range(hlf):
            for q in range(0, 8, 2):
                r = KR + mi*8 + q
                a(f"v_pk_add_f32 v[{r}:{r+1}], v[{r}:{r+1}], v[{r+8*hlf}:{r+8*hlf+1}]")
    pack8(a, KR+8, KR, KR+4)
    a(f"s_lshl_b32 s{t0}, s{sW}, 10"); a(f"s_add_u32 s{t0}, s{t0}, {KVS}"); a(f"v_add_u32 v{vA}, s{t0}, v{vL16}")
    a(f"ds_write_b128 v{vA}, v[{KR+8}:{KR+11}]")
    a.label(f"L_{name}_nokv")
    vq = VmTracker()
    RLB, vRL = 152, 20
    if relayout:
        a(f"s_lshl_b32 s{t0}, s{sH}, 3"); a(f"s_add_u32 s{t0}, s{t0}, s{sW}")
        a(f"s_and_b32 s{sRn}, s{t0}, 15"); a(f"s_lshr_b32 s{t0}, s{t0}, 4"); a(f"s_mul_i32 s{sRg}, s{t0}, 22")
        a(f"s_mul_i32 s{sRd}, s{sRn}, {44*8192}"); a(f"s_lshl_b32 s{t0}, s{sRg}, 10"); a(f"s_add_u32 s{sRd}, s{sRd}, s{t0}"); a(f"s_add_u32 s{sRd}, s{sRd}, {WT_OFF}")
        a(f"s_lshl_b32 s{sRn}, s{sRn}, 7"); a(f"s_mov_b32 s{sRi}, 0"); a(f"s_mov_b32 s{SRL+3}, {hex(SRD3)}")
        a(f"v_lshrrev_b32 v{vA}, 3, v{vLane}"); a(f"v_lshrrev_b32 v{vB_}, 1, v{vA}")
        a(f"v_bfe_u32 v{vC}, v{vLane}, 1, 2"); a(f"v_xor_b32 v{vC}, v{vC}, v{vB_}"); a(f"v_lshlrev_b32 v{vC}, 5, v{vC}")
        a(f"v_and_b32 v{vB_}, 1, v{vLane}"); a(f"v_lshlrev_b32 v{vB_}, 4, v{vB_}"); a(f"v_add_u32 v{vC}, v{vC}, v{vB_}")
        a(f"v_lshlrev_b32 v{vA}, 11, v{vA}"); a(f"v_add_u32 v{vRL}, v{vA}, v{vC}")
    def rl_load(n):
        o = []
        for bi in range(2):
            b = RLB + 8*(n % 2) + 4*bi
            vq.issue(("RL", n, bi))
            o += [f"s_cmp_lt_u32 s{sRg}, 128",
                  f"s_cselect_b32 s{SRL}, s{pWO}, s{pWOUT}", f"s_cselect_b32 s{SRL+1}, s{pWO+1}, s{pWOUT+1}",
                  f"s_cselect_b32 s{t0}, 0, 128", f"s_mov_b32 s{t1}, {1792*2048}", f"s_cselect_b32 s{SRL+2}, {1024*2048}, s{t1}",
                  f"s_sub_u32 s{t0}, s{sRg}, s{t0}", f"s_lshl_b32 s{t0}, s{t0}, 14", f"s_add_u32 s{t0}, s{t0}, s{sRn}",
                  f"s_cmp_lt_u32 s{sRi}, 22", f"s_cselect_b32 s{t0}, s{t0}, 0x40000000",
                  f"buffer_load_dwordx4 v[{b}:{b+3}], v{vRL}, s[{SRL}:{SRL+3}], s{t0} offen",
                  f"s_add_u32 s{sRg}, s{sRg}, 1", f"s_add_u32 s{sRi}, s{sRi}, 1"]
        return o
    def rl_store(n):
        o = [f"s_waitcnt vmcnt({vq.need([('RL', n, 1)])})"]
        for bi in range(2):
            b = RLB + 8*(n % 2) + 4*bi
            vq.issue(("RS", n, bi))
            if 2*n + bi < 22 or True:
                o += [f"s_cmp_lt_u32 s{sRs}, 22", f"s_cselect_b32 s{t0}, s{sRd}, 0x40000000",
                      f"buffer_store_dwordx4 v[{b}:{b+3}], v{vL16}, s[{SWS}:{SWS+3}], s{t0} offen {st}",
                      f"s_add_u32 s{sRd}, s{sRd}, 1024", f"s_add_u32 s{sRs}, s{sRs}, 1"]
        return o
    def qstage():
        o = [f"s_lshl_b32 s{t2}, s{sW}, 14", f"s_add_u32 s{t2}, s{t2}, {QL}"]
        for n in range(16):
            vq.issue(("q", n))
            o += [f"s_add_u32 m0, s{t2}, {n*1024}", "s_nop 0", f"buffer_load_dwordx4 v{vL16}, s[{SWS}:{SWS+3}], s{sQ} offen lds", f"s_add_u32 s{sQ}, s{sQ}, 1024"]
            if n == 0:
                vq.issue("gall")
                o += [f"s_lshl_b32 s{t3}, s{sW}, 10", f"s_add_u32 m0, s{t3}, {GL_}", "s_nop 0", f"buffer_load_dwordx4 v{vL16}, s[{SWS}:{SWS+3}], s{sGo} offen lds"]
        o += [f"v_add_u32 v{vQa}, s{t2}, v{vL16}", f"s_lshl_b32 s{t3}, s{sW}, 10", f"s_add_u32 s{t3}, s{t3}, {GL_}", f"v_add_u32 v{vGa}, s{t3}, v{vD}"]
        return o
    def qread(n):
        return [f"ds_read_b128 v[{QR+4*(n%QN)}:{QR+4*(n%QN)+3}], v{vQa}", f"ds_read_b32 v{GR+(n%QN)}, v{vGa}",
                f"v_add_u32 v{vQa}, 1024, v{vQa}", f"v_add_u32 v{vGa}, 64, v{vGa}"]
    def qload(n):
        vq.issue(("q", n)); vq.issue(("g", n))
        return [f"buffer_load_dwordx4 v[{QR+4*(n%QN)}:{QR+4*(n%QN)+3}], v{vL16}, s[{SWS}:{SWS+3}], s{sQ} offen",
                f"buffer_load_dword v{GR+(n%QN)}, v{vD}, s[{SWS}:{SWS+3}], s{sGo} offen",
                f"s_add_u32 s{sQ}, s{sQ}, 1024", f"s_add_u32 s{sGo}, s{sGo}, 64"]
    a("s_waitcnt vmcnt(0) lgkmcnt(0)")
    if relayout: a(f"s_mov_b32 s{sRs}, 0")
    if qall:
        for l in qstage(): a(l)
    else:
        for n in range(3):
            for l in qload(n): a(l)
    if w_touch:
        a(f"s_lshl_b32 s{t0}, s{sH}, 3"); a(f"s_add_u32 s{t0}, s{t0}, s{sW}"); a(f"s_lshl_b32 s{t0}, s{t0}, 13")
        a(f"v_lshlrev_b32 v22, 7, v{vLane}")
        srd(a, SRL, pWO, 0, 1024*2048)
        a(f"buffer_load_dword v21, v22, s[{SRL}:{SRL+3}], s{t0} offen")
        vq.issue("wt0")
        srd(a, SRL, pWOUT, 0, 1792*2048)
        a(f"buffer_load_dword v21, v22, s[{SRL}:{SRL+3}], s{t0} offen"); vq.issue("wt1")
        a(f"s_add_u32 s{t0}, s{t0}, {256*8192}")
        a(f"buffer_load_dword v21, v22, s[{SRL}:{SRL+3}], s{t0} offen"); vq.issue("wt2")
    a("s_barrier")
    P.stamp(1)
    WP = 32; KV = 40
    a(f"v_lshrrev_b32 v{vA}, 2, v{vLane}"); a(f"v_lshlrev_b32 v{vA}, 6, v{vA}"); a(f"v_and_b32 v{vB_}, 3, v{vLane}"); a(f"v_lshlrev_b32 v{vB_}, 3, v{vB_}"); a(f"v_add_u32 v{vA}, v{vA}, v{vB_}")
    for fb in range(2):
        for sec in range(2):
            r = WP + 4*fb + 2*sec
            a(f"ds_read_b64_tr_b16 v[{r}:{r+1}], v{vA} offset:{WPHI + sec*1024 + fb*32}")
    for b in range(6): a(f"ds_read_b128 v[{KV+4*b}:{KV+4*b+3}], v{vL16} offset:{KVS + b*1024}")
    a("s_waitcnt lgkmcnt(0)")
    if qall:
        a(f"s_waitcnt vmcnt({vq.need([('q', 0), 'gall'])})")
        for l in qread(0): a(l)
    LG, PH, TMP, NUM, OUT = 64, 72, 80, 132, 144
    ONES, EPS, CPM = 24, 28, 16
    if mfsum:
        for i in range(4): a(f"v_mov_b32 v{ONES+i}, 0x3f803f80")
        a(f"v_mov_b32 v{EPS}, {f2h(1e-6)}")
    blocks = []
    for n in range(16):
        seq = Asm()
        if relayout and 2 <= n < 14:
            for l in rl_store(n - 2): seq(l)
        if n + 3 < 16 and not qall:
            for l in qload(n + 3): seq(l)
        if relayout and n < 12:
            for l in rl_load(n): seq(l)
        if qall:
            if n + 1 < 16:
                seq(f"s_waitcnt vmcnt({vq.need([('q', n+1), 'gall'])})")
                for l in qread(n + 1)[:2]: seq(l)
                for l in qread(n + 1)[2:]: seq(l)
                seq("s_waitcnt lgkmcnt(2)")
            else: seq("s_waitcnt lgkmcnt(0)")
        else:
            seq(f"s_waitcnt vmcnt({vq.need([('q', n), ('g', n)])})")
        q = QR + 4*(n % QN)
        for fb in range(2):
            seq(f"v_mfma_f32_16x16x32_bf16 v[{LG+4*fb}:{LG+4*fb+3}], v[{WP+4*fb}:{WP+4*fb+3}], v[{q}:{q+3}], 0")
        if not mfsum:
            softmax_pm(seq, LG, PH, TMP, sC)
            for db in range(3):
                d = NUM + 4*db
                seq(f"v_mfma_f32_16x16x32_bf16 v[{d}:{d+3}], v[{KV+4*db}:{KV+4*db+3}], v[{PH}:{PH+3}], 0")
            for db in range(3):
                d = NUM + 4*db
                seq(f"v_mfma_f32_16x16x32_bf16 v[{d}:{d+3}], v[{KV+12+4*db}:{KV+12+4*db+3}], v[{PH+4}:{PH+7}], v[{d}:{d+3}]")
            seq(f"v_add_f32 v{NUM+8}, {f2h(1e-6)}, v{NUM+8}")
            seq(f"v_rcp_f32 v{NUM+8}, v{NUM+8}")
            seq(f"v_mul_f32 v{NUM+8}, v{NUM+8}, v{GR+(n%QN)}")
            seq(f"v_mov_b32 v{NUM+9}, v{NUM+8}")
            for qq in range(0, 8, 2):
                seq(f"v_pk_mul_f32 v[{NUM+qq}:{NUM+qq+1}], v[{NUM+qq}:{NUM+qq+1}], v[{NUM+8}:{NUM+9}]")
        else:
            softmax_exp(seq, LG, PH, TMP)
            NP, NM = TMP, TMP + 16
            for db in range(4):
                av = (KV + 4*db) if db < 3 else ONES
                seq(f"v_mfma_f32_16x16x32_bf16 v[{NP+4*db}:{NP+4*db+3}], v[{av}:{av+3}], v[{PH}:{PH+3}], 0")
            for db in range(4):
                av = (KV + 12 + 4*db) if db < 3 else ONES
                seq(f"v_mfma_f32_16x16x32_bf16 v[{NM+4*db}:{NM+4*db+3}], v[{av}:{av+3}], v[{PH+4}:{PH+7}], 0")
            rp, rm, dn = NP+12, NM+12, NP+8
            seq(f"v_rcp_f32 v{rp}, v{rp}"); seq(f"v_rcp_f32 v{rm}, v{rm}")
            seq(f"v_fma_f32 v{dn}, v{dn}, v{rp}, v{EPS}")
            seq(f"v_fma_f32 v{dn}, v{NM+8}, v{rm}, v{dn}")
            seq(f"v_rcp_f32 v{dn}, v{dn}")
            seq(f"v_mul_f32 v{dn}, v{dn}, v{GR+(n%QN)}")
            seq(f"v_mul_f32 v{rp}, v{rp}, v{dn}"); seq(f"v_mul_f32 v{rp+1}, v{rp}, 1.0"); seq(f"v_mul_f32 v{rm}, v{rm}, v{dn}"); seq(f"v_mul_f32 v{rm+1}, v{rm}, 1.0")
            for qq in range(0, 8, 2):
                seq(f"v_pk_mul_f32 v[{NUM+qq}:{NUM+qq+1}], v[{NP+qq}:{NP+qq+1}], v[{rp}:{rp+1}]")
            for qq in range(0, 8, 2):
                seq(f"v_pk_fma_f32 v[{NUM+qq}:{NUM+qq+1}], v[{NM+qq}:{NM+qq+1}], v[{rm}:{rm+1}], v[{NUM+qq}:{NUM+qq+1}]")
        o = OUT + 4*(n % 2)
        pack8(seq, o, NUM, NUM+4)
        vq.issue(("o", n))
        seq(f"buffer_store_dwordx4 v[{o}:{o+3}], v{vL16}, s[{SWS}:{SWS+3}], s{sO} offen {st}")
        seq(f"s_add_u32 s{sO}, s{sO}, {NKB*1024}")
        blocks.append([l.strip() for l in seq.lines])
    if qall:
        for n in range(2):
            for l in blocks[n]: a(l)
        lo = 2; hi = 12 if relayout else 14
        fold_loop(a, blocks, lo, (hi - lo)//2, 2, f"L_{name}_aloop", sIT)
        for n in range(lo + (hi - lo)//2*2, 16):
            for l in blocks[n]: a(l)
    else:
        if relayout:
            for n in range(4):
                for l in blocks[n]: a(l)
            fold_loop(a, blocks, 4, 2, 4, f"L_{name}_aloop", sIT)
        else:
            fold_loop(a, blocks, 0, 3, 4, f"L_{name}_aloop", sIT)
        for n in range(12, 16):
            for l in blocks[n]: a(l)
    P.stamp(2)
    a.label(f"L_{name}_fin")
    if prof: a("s_waitcnt vmcnt(0)")
    P.stamp(5)
    P.dump(vLane, sW)
    a.label(f"L_{name}_end")
    a("s_endpgm")
    return kernel_text(name, a, nv=192, ns=(102 if prof else 64), ao=192), (max(R*SLOT, 8192 + 131072 + 8192) if qall else R*SLOT)
```

```python
from asmlib import *
from common import *
import struct
LOG2E = 1.4426950408889634
def f2h(x): return hex(struct.unpack("<I", struct.pack("<f", x))[0])

A_SLOT = 32768; NA = 3
W_BASE = NA*A_SLOT; W_SLOT = 14336
WPHI   = W_BASE + 4*W_SLOT
DUMMY  = WPHI + 2048
MISC   = DUMMY + 1024
S1_LDS = MISC + 256
PHI_SCR = 0
KV_SCR  = 32768
OOB = 0x40000000

def gen_s1(name="s1_kernel", prof=False, st="sc1", touch=True, relayout=True, wsp=False, wsp_epi=False, wsp_tail=29, PT=4, prio=True, pmode="epi", dedupe=True, burst=False, tfl="", dfl="", rfl="", norm="pair", NW=4, bmode=6, first_gather=True, codewarm=1, wsplit=False, selective=True, early3=False, wsp_aff=1, defer_gelu=False, dpos="spread", rl_skip=True, ninit=2, lprio=""):
    a = Asm()
    P = Prof(a, prof); P.mode = pmode
    NS = 32
    U = 12 if NW == 4 else 6
    pX, pQKV, pPHI, pWO = 4, 6, 8, 10
    pWIN, pWSP = 12, 14
    pWOUT, pGATE = 16, 18
    pDBG, pWS = 20, 22
    SX, SD, SD3, SWS = 24, 28, 32, 36
    ST, SRL = 40, 44
    sW, sWQ, sMI, sNJ, sODD = 48, 49, 50, 51, 52
    sKA, sKD, sKD3, sIncD = 53, 54, 55, 56
    sM0, sM0d = 57, 58
    sMs = [59, 60, 61, 62]
    sTo, sTinc = 63, 64
    sRLs, sRLd = 65, 66
    sIT = 67
    t0, t1, t2, t3 = 68, 69, 70, 71
    sC = 72
    sH, sHq = 74, 75
    sSt = 3
    vLane, vA, vB_, vC, vD = 1, 2, 3, 4, 5
    vX = [[6, 7], [8, 9]]
    vDs = [10, 11, 12, 13, 14, 15, 16, 17]
    vW1 = [18, 19]; vW2 = [18, 19]
    vT, vRL, vRLd, vDum = 20, 21, 22, 23
    vRLb = 24
    XF = 32; WF = 64
    ACC_A = 112; ACC_G = 120
    GV = 232

    a("s_cmp_ge_u32 s2, 256")
    a(f"s_cbranch_scc1 L_{name}_end")
    P.stamp(0)
    a(f"s_load_dwordx8 s[4:11], s[0:1], 0")
    a(f"s_load_dwordx4 s[12:15], s[0:1], {KA_WIN}")
    a(f"s_load_dwordx4 s[16:19], s[0:1], {KA_WOUT}")
    a(f"s_load_dwordx4 s[20:23], s[0:1], {KA_DBG}")
    a(f"v_lshrrev_b32 v{vA}, 6, v0")
    a(f"v_and_b32 v{vLane}, 63, v0")
    a(f"v_readfirstlane_b32 s{sW}, v{vA}")
    a(f"s_and_b32 s{t0}, s2, 7")
    a(f"s_lshr_b32 s{t1}, s2, 3")
    a(f"s_and_b32 s{t2}, s{t0}, 1"); a(f"s_lshl_b32 s{t2}, s{t2}, 2"); a(f"s_and_b32 s{t3}, s{t1}, 3")
    a(f"s_add_u32 s{sMI}, s{t2}, s{t3}")
    a(f"s_lshr_b32 s{t1}, s{t1}, 2")
    a(f"s_lshr_b32 s{t0}, s{t0}, 1"); a(f"s_lshl_b32 s{t0}, s{t0}, 2")
    a(f"s_and_b32 s{t2}, s{t1}, 3"); a(f"s_add_u32 s{t0}, s{t0}, s{t2}")
    a(f"s_lshr_b32 s{t2}, s{t1}, 2"); a(f"s_lshl_b32 s{t2}, s{t2}, 4"); a(f"s_add_u32 s{sNJ}, s{t0}, s{t2}")
    a(f"s_and_b32 s{sODD}, s{sNJ}, 1")
    a(f"s_lshr_b32 s{t2}, s{sNJ}, 2"); a(f"s_xor_b32 s{sH}, s{sNJ}, 24")
    a(f"s_cmp_eq_u32 s{t2}, 3"); a(f"s_cselect_b32 s{t3}, s{sH}, s{sNJ}")
    a(f"s_cmp_eq_u32 s{t2}, 5"); a(f"s_cselect_b32 s{sH}, s{sH}, s{t3}")
    a(f"s_xor_b32 s{sHq}, s{sH}, 2"); a(f"s_cmp_lt_u32 s{sNJ}, 16"); a(f"s_cselect_b32 s{sHq}, s{sHq}, s{sH}")
    a(f"s_and_b32 s{sWQ}, s{sW}, 3")
    a(f"v_lshlrev_b32 v{vRLd}, 4, v{vLane}")
    vmA = VmTracker(); vmG = VmTracker()
    a(f"s_cmp_ge_u32 s{sW}, 4")
    a(f"s_cbranch_scc1 L_{name}_gsetup")

    def common_late():
        a(f"s_mov_b32 s{sC}, 1.0"); a(f"s_mov_b32 s{sC+1}, 1.0")
        srd(a, SWS, pWS, 0, WS_USED)
        a(f"v_and_b32 v{vA}, 15, v{vLane}")
        a(f"v_lshrrev_b32 v{vB_}, 1, v{vA}")
        a(f"v_lshrrev_b32 v{vC}, 4, v{vLane}")
        a(f"v_xor_b32 v{vB_}, v{vB_}, v{vC}")
        a(f"v_lshlrev_b32 v{vA}, 7, v{vA}")
        a(f"s_lshl_b32 s{t0}, s{sWQ}, 13")
        a(f"v_add_u32 v{vA}, s{t0}, v{vA}")
        a(f"v_lshlrev_b32 v{vC}, 4, v{vB_}")
        a(f"v_add_u32 v{vX[0][0]}, v{vA}, v{vC}")
        a(f"v_xor_b32 v{vX[0][1]}, 64, v{vX[0][0]}")
        a(f"v_add_u32 v{vX[1][0]}, 65536, v{vX[0][0]}")
        a(f"v_add_u32 v{vX[1][1]}, 65536, v{vX[0][1]}")

    a("s_waitcnt lgkmcnt(0)")
    P.stamp(3, "pro")
    a(f"s_lshr_b32 s{t1}, s2, 3"); a(f"s_and_b32 s{t2}, s{t1}, 3"); a(f"s_lshr_b32 s{t1}, s{t1}, 2")
    a(f"s_cmp_eq_u32 s{sWQ}, 0")
    a(f"s_cbranch_scc0 L_{name}_t1")
    srd(a, ST, pX, 0, 2048*2048)
    a(f"s_lshl_b32 s{t0}, s{sMI}, 8"); a(f"s_lshl_b32 s{t3}, s{t1}, 5"); a(f"s_add_u32 s{t0}, s{t0}, s{t3}")
    a(f"v_add_u32 v{vT}, s{t0}, v{vLane}"); a(f"v_lshlrev_b32 v{vT}, 11, v{vT}")
    a(f"v_cmp_gt_u32 vcc, 32, v{vLane}"); a(f"v_mov_b32 v{vA}, {hex(OOB)}"); a(f"v_cndmask_b32 v{vT}, v{vA}, v{vT}, vcc")
    a(f"s_mov_b32 s{sTinc}, 128")
    a(f"s_branch L_{name}_tdone")
    a.label(f"L_{name}_t1")
    a(f"v_mul_u32_u24 v{vA}, 43, v{vLane}"); a(f"v_lshrrev_b32 v{vA}, 7, v{vA}")
    a(f"v_mul_u32_u24 v{vB_}, 3, v{vA}"); a(f"v_sub_u32 v{vB_}, v{vLane}, v{vB_}")
    a(f"s_lshl_b32 s{t0}, s{t2}, 4"); a(f"v_add_u32 v{vA}, s{t0}, v{vA}")
    a(f"s_cmp_eq_u32 s{sWQ}, 1")
    a(f"s_cbranch_scc0 L_{name}_t2")
    srd(a, ST, pQKV, 0, 1024*6144)
    if dedupe:
        a(f"s_and_b32 s{t0}, s{sH}, 1"); a(f"s_lshl_b32 s{t0}, s{t0}, 3"); a(f"v_add_u32 v{vA}, s{t0}, v{vA}")
    a(f"v_cmp_eq_u32 vcc, 0, v{vB_}")
    a(f"v_mul_u32_u24 v{vT}, 6144, v{vA}"); a(f"v_lshlrev_b32 v{vB_}, 11, v{vB_}"); a(f"v_add_u32 v{vT}, v{vT}, v{vB_}")
    a(f"s_lshl_b32 s{t0}, s{sH}, 6"); a(f"s_lshl_b32 s{t3}, s{sHq}, 6"); a(f"v_mov_b32 v{vA}, s{t0}"); a(f"v_mov_b32 v{vB_}, s{t3}"); a(f"v_cndmask_b32 v{vA}, v{vA}, v{vB_}, vcc")
    a(f"v_add_u32 v{vT}, v{vA}, v{vT}")
    a(f"v_cmp_gt_u32 vcc, {24 if dedupe else 48}, v{vLane}"); a(f"v_mov_b32 v{vA}, {hex(OOB)}"); a(f"v_cndmask_b32 v{vT}, v{vA}, v{vT}, vcc")
    a(f"s_mov_b32 s{sTinc}, {64*6144}")
    a(f"s_branch L_{name}_tdone")
    a.label(f"L_{name}_t2")
    a(f"s_cmp_eq_u32 s{sWQ}, 2")
    a(f"s_cbranch_scc0 L_{name}_t3")
    srd(a, ST, pWIN, 0, 1024*7168)
    a(f"v_mul_u32_u24 v{vT}, 7168, v{vA}"); a(f"v_lshlrev_b32 v{vB_}, 7, v{vB_}"); a(f"v_min_u32 v{vB_}, 252, v{vB_}"); a(f"v_add_u32 v{vT}, v{vT}, v{vB_}")
    a(f"s_mul_i32 s{t0}, s{sNJ}, 224"); a(f"s_lshl_b32 s{t3}, s{sODD}, 5"); a(f"s_sub_u32 s{t0}, s{t0}, s{t3}"); a(f"v_add_u32 v{vT}, s{t0}, v{vT}")
    a(f"v_cmp_gt_u32 vcc, 48, v{vLane}"); a(f"v_mov_b32 v{vA}, {hex(OOB)}"); a(f"v_cndmask_b32 v{vT}, v{vA}, v{vT}, vcc")
    a(f"s_mov_b32 s{sTinc}, {64*7168}")
    a(f"s_branch L_{name}_tdone")
    a.label(f"L_{name}_t3")
    srd(a, ST, pWSP, 0, 2048*4096)
    if wsplit:
        a(f"v_lshrrev_b32 v{vT}, 4, v{vLane}"); a(f"v_lshlrev_b32 v{vT}, 12, v{vT}"); a(f"v_and_b32 v{vA}, 15, v{vLane}"); a(f"v_lshlrev_b32 v{vA}, 7, v{vA}")
        a(f"v_add_u32 v{vT}, v{vT}, v{vA}"); a(f"s_lshl_b32 s{t0}, s2, 15"); a(f"v_add_u32 v{vT}, s{t0}, v{vT}")
        a(f"s_mov_b32 s{sTinc}, 16384")
        a(f"s_add_u32 s{ST+2}, s{t0}, 32768")
    else:
        a(f"v_lshlrev_b32 v{vT}, 7, v{vLane}"); a(f"s_lshl_b32 s{t0}, s2, 15"); a(f"v_add_u32 v{vT}, s{t0}, v{vT}")
        a(f"s_mov_b32 s{sTinc}, 8192")
        a(f"s_add_u32 s{ST+2}, s{t0}, 32768") if wsp else a(f"s_mov_b32 s{ST+2}, 0")
    a.label(f"L_{name}_tdone")
    a(f"s_mov_b32 s{sTo}, 0")
    def touch_ops(vm, tag):
        vm.issue(tag)
        return [f"buffer_load_dword v{vDum}, v{vT}, s[{ST}:{ST+3}], s{sTo} offen {tfl}", f"s_add_u32 s{sTo}, s{sTo}, s{sTinc}"]
    a(f"s_cmp_eq_u32 s{sWQ}, 3")
    a(f"s_cbranch_scc1 L_{name}_notouch0")
    if touch:
        for q in range(ninit):
            for l in touch_ops(vmA, ("T", q)): a(l)
    a.label(f"L_{name}_notouch0")
    a(f"v_lshrrev_b32 v{vA}, 3, v{vLane}")
    a(f"s_lshl_b32 s{t0}, s{sMI}, 8"); a(f"s_lshl_b32 s{t1}, s{sWQ}, 6"); a(f"s_add_u32 s{t0}, s{t0}, s{t1}")
    a(f"v_add_u32 v{vA}, s{t0}, v{vA}"); a(f"v_lshlrev_b32 v{vA}, 11, v{vA}")
    a(f"v_and_b32 v{vB_}, 7, v{vLane}"); a(f"v_lshrrev_b32 v{vC}, 4, v{vLane}"); a(f"v_xor_b32 v{vB_}, v{vB_}, v{vC}")
    a(f"v_lshlrev_b32 v{vC}, 4, v{vB_}"); a(f"v_add_u32 v{vDs[0]}, v{vA}, v{vC}")
    a(f"v_xor_b32 v{vC}, 64, v{vC}"); a(f"v_add_u32 v{vDs[1]}, v{vA}, v{vC}"); a(f"v_add_u32 v{vDs[1]}, {8*2048}, v{vDs[1]}")
    for e in range(2, 8): a(f"v_add_u32 v{vDs[e]}, {16*2048}, v{vDs[e-2]}")
    a(f"s_lshl_b32 s{sM0}, s{sWQ}, 13")
    a(f"s_mov_b32 s{sKA}, 0")
    srd(a, SX, pX, 0, 2048*2048)
    def dmaA(tile, half):
        out = []
        for e in range(4*half, 4*half+4):
            vmA.issue(("A", tile, e))
            out.append([f"s_add_u32 m0, s{sM0}, {(tile % NA)*A_SLOT + e*1024}",
                        f"buffer_load_dwordx4 v{vDs[e]}, s[{SX}:{SX+3}], s{sKA} offen {dfl} lds"])
        if half == 1: out[-1].append(f"s_add_u32 s{sKA}, s{sKA}, 128")
        return out
    a("s_barrier")
    for half in range(2):
        for grp in dmaA(0, half):
            for l in grp: a(l)
    if touch and ninit < 2:
        a(f"s_cmp_eq_u32 s{sWQ}, 3"); a(f"s_cbranch_scc1 L_{name}_notouch1")
        for q in range(ninit, 2):
            a(f"buffer_load_dword v{vDum}, v{vT}, s[{ST}:{ST+3}], s{sTo} offen {tfl}"); a(f"s_add_u32 s{sTo}, s{sTo}, s{sTinc}")
        a.label(f"L_{name}_notouch1")
    P.stamp(4, "pro")
    common_late()
    a(f"v_mov_b32 v{vA}, 0"); a(f"v_lshlrev_b32 v{vB_}, 2, v{vLane}"); a(f"v_add_u32 v{vB_}, {MISC}, v{vB_}"); a(f"ds_write_b32 v{vB_}, v{vA}")
    a(f"v_lshrrev_b32 v{vA}, 4, v{vLane}"); a(f"v_mul_u32_u24 v{vB_}, 1536, v{vA}")
    a(f"v_bfe_u32 v{vC}, v{vLane}, 2, 2"); a(f"v_lshlrev_b32 v{vC}, 6, v{vC}"); a(f"v_add_u32 v{vB_}, v{vB_}, v{vC}")
    a(f"v_and_b32 v{vC}, 3, v{vLane}"); a(f"v_lshlrev_b32 v{vC}, 3, v{vC}"); a(f"v_add_u32 v{vB_}, v{vB_}, v{vC}")
    a(f"v_and_b32 v{vA}, 1, v{vA}"); a(f"v_lshlrev_b32 v{vA}, 5, v{vA}"); a(f"v_add_u32 v{vB_}, {W_BASE}, v{vB_}")
    a(f"v_add_u32 v{vW1[0]}, v{vB_}, v{vA}"); a(f"v_xor_b32 v{vA}, 32, v{vA}"); a(f"v_add_u32 v{vW1[1]}, v{vB_}, v{vA}")
    if relayout:
        if rl_skip:
            a(f"s_cmp_gt_u32 s{sNJ}, 7"); a(f"s_cselect_b32 s{t1}, 2, 0"); a(f"s_sub_u32 s{t0}, s{sNJ}, s{t1}")
            a(f"s_cmp_gt_u32 s{sNJ}, 15"); a(f"s_cselect_b32 s{t1}, 2, 0"); a(f"s_sub_u32 s{t0}, s{t0}, s{t1}")
            a(f"s_mul_i32 s{t1}, s{sMI}, 28"); a(f"s_add_u32 s{t0}, s{t0}, s{t1}"); a(f"s_mul_i32 s{t1}, s{sWQ}, 224"); a(f"s_add_u32 s{t0}, s{t0}, s{t1}")
            a(f"s_and_b32 s{t1}, s{sNJ}, 0x16"); a(f"s_cmp_eq_u32 s{t1}, 6"); a(f"s_cselect_b32 s{t0}, 4096, s{t0}")
        else:
            a(f"s_lshl_b32 s{t0}, s{sWQ}, 8"); a(f"s_add_u32 s{t0}, s{t0}, s2")
        a(f"s_lshr_b32 s{t1}, s{t0}, 1")
        a(f"s_and_b32 s{t2}, s{t0}, 1")
        a(f"s_cmp_lt_u32 s{t1}, 128")
        a(f"s_cselect_b32 s{SRL}, s{pWO}, s{pWOUT}")
        a(f"s_cselect_b32 s{SRL+1}, s{pWO+1}, s{pWOUT+1}")
        a(f"s_mov_b32 s{t3}, {1792*2048}")
        a(f"s_cselect_b32 s{SRL+2}, {1024*2048}, s{t3}")
        a(f"s_mov_b32 s{SRL+3}, {hex(SRD3)}")
        a(f"s_cselect_b32 s{t3}, 0, 128")
        a(f"s_sub_u32 s{t3}, s{t1}, s{t3}")
        a(f"s_lshl_b32 s{t3}, s{t3}, 14")
        a(f"s_lshl_b32 s{sRLs}, s{t2}, 10"); a(f"s_add_u32 s{sRLs}, s{sRLs}, s{t3}")
        a(f"s_mul_i32 s{sRLd}, s{t2}, {8*44*8192}"); a(f"s_lshl_b32 s{t3}, s{t1}, 10"); a(f"s_add_u32 s{sRLd}, s{sRLd}, s{t3}")
        a(f"s_add_u32 s{sRLd}, s{sRLd}, {WT_OFF}")
        a(f"s_cmp_lt_u32 s{t0}, 704")
        a(f"s_cselect_b32 s{sRLs}, s{sRLs}, {hex(OOB)}")
        a(f"s_cselect_b32 s{sRLd}, s{sRLd}, {hex(OOB)}")
        a(f"v_lshrrev_b32 v{vA}, 3, v{vLane}"); a(f"v_lshrrev_b32 v{vB_}, 1, v{vA}")
        a(f"v_bfe_u32 v{vC}, v{vLane}, 1, 2"); a(f"v_xor_b32 v{vC}, v{vC}, v{vB_}"); a(f"v_lshlrev_b32 v{vC}, 5, v{vC}")
        a(f"v_and_b32 v{vB_}, 1, v{vLane}"); a(f"v_lshlrev_b32 v{vB_}, 4, v{vB_}"); a(f"v_add_u32 v{vC}, v{vC}, v{vB_}")
        a(f"v_lshlrev_b32 v{vA}, 11, v{vA}"); a(f"v_add_u32 v{vRL}, v{vA}, v{vC}")
    def att_second():
        for half in range(2):
            for grp in dmaA(1, half):
                for l in grp: a(l)
        if early3:
            a(f"s_cmp_eq_u32 s{sWQ}, 3"); a(f"s_cbranch_scc0 L_{name}_noe3")
            for (ptr, size, per, div, mul, stride) in ((pQKV, 1024*6144, 24, 6, 10923, 6144), (pWIN, 1024*7168, 28, 7, 9363, 7168)):
                srd(a, SRL if not relayout else SD, ptr, 0, size)
                sr_ = SRL if not relayout else SD
                a(f"s_mul_i32 s{t0}, s2, {per}"); a(f"v_add_u32 v{vA}, s{t0}, v{vLane}")
                a(f"v_mul_u32_u24 v{vB_}, {mul}, v{vA}"); a(f"v_lshrrev_b32 v{vB_}, 16, v{vB_}")
                a(f"v_mul_u32_u24 v{vC}, {div}, v{vB_}"); a(f"v_sub_u32 v{vC}, v{vA}, v{vC}")
                a(f"v_mul_u32_u24 v{vB_}, {stride}, v{vB_}"); a(f"v_lshlrev_b32 v{vC}, 10, v{vC}"); a(f"v_add_u32 v{vB_}, v{vB_}, v{vC}"); a(f"v_add_u32 v{vB_}, 384, v{vB_}")
                a(f"v_cmp_gt_u32 vcc, {per}, v{vLane}"); a(f"v_mov_b32 v{vC}, {hex(OOB)}"); a(f"v_cndmask_b32 v{vB_}, v{vC}, v{vB_}, vcc")
                a(f"buffer_load_dword v{vDum}, v{vB_}, s[{sr_}:{sr_+3}], 0 offen")
            a.label(f"L_{name}_noe3")
    def wphi_ops():
        vmA.issue("wphi")
        return [f"s_mov_b32 s{SD}, s{pPHI}", f"s_mov_b32 s{SD+1}, s{pPHI+1}", f"s_mov_b32 s{SD+2}, 65536", f"s_mov_b32 s{SD+3}, {hex(SRD3)}",
                f"s_and_b32 s{t0}, s{sWQ}, 1", f"s_lshl_b32 s{t0}, s{t0}, 10", f"s_lshl_b32 s{t1}, s{sH}, 11", f"s_add_u32 s{t1}, s{t1}, s{t0}",
                f"s_add_u32 m0, s{t0}, {WPHI}", "s_nop 0", f"buffer_load_dwordx4 v{vRLd}, s[{SD}:{SD+3}], s{t1} offen lds"]
    a(f"s_branch L_{name}_amain")

    a.label(f"L_{name}_gsetup")
    a(f"v_lshrrev_b32 v{vA}, 2, v{vLane}")
    a(f"v_and_b32 v{vB_}, 3, v{vA}")
    a(f"v_lshrrev_b32 v{vC}, 2, v{vA}")
    a(f"v_and_b32 v{vD}, 3, v{vLane}")
    a(f"s_mul_i32 s{t3}, s{sNJ}, 224"); a(f"s_lshl_b32 s{t2}, s{sODD}, 5"); a(f"s_sub_u32 s{t3}, s{t3}, s{t2}")
    def w2src(dst, kq_s):
        a(f"s_lshl_b32 s{t0}, s{kq_s}, 2")
        a(f"v_add_u32 v{dst}, s{t0}, v{vB_}"); a(f"v_mul_u32_u24 v{dst}, 7168, v{dst}")
        a(f"s_and_b32 s{t0}, s{kq_s}, 2")
        a(f"v_xor_b32 v{vDum}, s{t0}, v{vD}"); a(f"v_lshlrev_b32 v{vDum}, 4, v{vDum}"); a(f"v_add_u32 v{dst}, v{dst}, v{vDum}")
        a(f"v_lshlrev_b32 v{vDum}, 6, v{vC}"); a(f"v_add_u32 v{dst}, v{dst}, v{vDum}")
        a(f"v_add_u32 v{dst}, s{t3}, v{dst}")
    a(f"s_cmp_ge_u32 s{sWQ}, 2")
    a(f"s_cbranch_scc1 L_{name}_g23")
    a(f"s_mov_b32 s{sIncD}, {32*6144}")
    for j in range(3):
        a(f"s_mul_i32 s{t0}, s{sWQ}, 12"); a(f"s_add_u32 s{t0}, s{t0}, {4*j}")
        a(f"v_add_u32 v{vDs[j]}, s{t0}, v{vC}")
        a(f"v_mul_u32_u24 v{vDum}, 11, v{vDs[j]}"); a(f"v_lshrrev_b32 v{vDum}, 5, v{vDum}")
        a(f"v_mul_u32_u24 v{vT}, 3, v{vDum}"); a(f"v_sub_u32 v{vT}, v{vDs[j]}, v{vT}")
        a(f"v_cmp_eq_u32 vcc, 0, v{vT}")
        a(f"v_lshlrev_b32 v{vT}, 11, v{vT}")
        a(f"v_and_b32 v{vDs[j]}, 2, v{vDum}"); a(f"v_xor_b32 v{vDs[j]}, v{vDs[j]}, v{vD}"); a(f"v_lshlrev_b32 v{vDs[j]}, 4, v{vDs[j]}")
        a(f"v_add_u32 v{vT}, v{vT}, v{vDs[j]}")
        a(f"v_lshlrev_b32 v{vDum}, 2, v{vDum}"); a(f"v_add_u32 v{vDum}, v{vDum}, v{vB_}"); a(f"v_mul_u32_u24 v{vDum}, 6144, v{vDum}")
        a(f"v_add_u32 v{vT}, v{vT}, v{vDum}")
        a(f"s_lshl_b32 s{t0}, s{sH}, 6"); a(f"s_lshl_b32 s{t1}, s{sHq}, 6"); a(f"v_mov_b32 v{vDum}, s{t0}"); a(f"v_mov_b32 v{vDs[j]}, s{t1}")
        a(f"v_cndmask_b32 v{vDum}, v{vDum}, v{vDs[j]}, vcc"); a(f"v_add_u32 v{vDs[j]}, v{vDum}, v{vT}")
        a(f"s_mul_i32 s{t0}, s{sWQ}, 3072"); a(f"s_add_u32 s{sMs[j]}, s{t0}, {W_BASE + j*1024}")
    a(f"s_mov_b32 s{t1}, s{sWQ}"); w2src(vDs[3], t1)
    a(f"s_lshl_b32 s{t0}, s{sWQ}, 10"); a(f"s_add_u32 s{sMs[3]}, s{t0}, {W_BASE + 6144}")
    a("s_waitcnt lgkmcnt(0)")
    srd(a, SD, pQKV, 0, 1024*6144)
    a(f"s_branch L_{name}_g23done")
    a.label(f"L_{name}_g23")
    a(f"s_mov_b32 s{sIncD}, {32*7168}")
    for j in range(3):
        a(f"s_mul_i32 s{t1}, s{sWQ}, 3"); a(f"s_add_u32 s{t1}, s{t1}, {j}"); a(f"s_sub_u32 s{t1}, s{t1}, 4")
        w2src(vDs[j], t1)
        a(f"s_lshl_b32 s{t0}, s{t1}, 10"); a(f"s_add_u32 s{sMs[j]}, s{t0}, {W_BASE + 6144}")
    a(f"v_mov_b32 v{vDs[3]}, {hex(OOB)}")
    a(f"s_mov_b32 s{sMs[3]}, {DUMMY}")
    a("s_waitcnt lgkmcnt(0)")
    srd(a, SD, pWIN, 0, 1024*7168)
    a.label(f"L_{name}_g23done")
    P.stamp(3, "pro")
    srd(a, SD3, pWIN, 0, 1024*7168)
    a(f"s_cmp_ge_u32 s{sWQ}, 2"); a(f"s_cselect_b32 s{sM0d}, 0, {W_SLOT}")
    a(f"s_mov_b32 s{sKD}, 0"); a(f"s_mov_b32 s{sKD3}, 0")
    def dmaW(tile):
        out = []
        for j in range(4):
            vmG.issue(("W", tile, j))
            slot = tile % NW
            if j < 3:
                out.append([f"s_add_u32 m0, s{sMs[j]}, {slot*W_SLOT}",
                            f"buffer_load_dwordx4 v{vDs[j]}, s[{SD}:{SD+3}], s{sKD} offen {dfl} lds"])
            else:
                out.append([f"s_mul_i32 s{t0}, s{sM0d}, {slot}", f"s_add_u32 m0, s{sMs[3]}, s{t0}",
                            f"buffer_load_dwordx4 v{vDs[3]}, s[{SD3}:{SD3+3}], s{sKD3} offen {dfl} lds",
                            f"s_add_u32 s{sKD}, s{sKD}, s{sIncD}", f"s_add_u32 s{sKD3}, s{sKD3}, {32*7168}"])
        return out
    srd(a, SWS, pWS, 0, WS_USED)
    a(f"s_lshl_b32 s{t0}, s{sMI}, 4"); a(f"s_add_u32 s{t0}, s{t0}, s{sNJ}"); a(f"s_sub_u32 s{t0}, s{t0}, 16"); a(f"s_lshl_b32 s{t0}, s{t0}, 11")
    a(f"s_lshl_b32 s{t1}, s{sWQ}, 9"); a(f"s_add_u32 s{t0}, s{t0}, s{t1}"); a(f"s_add_u32 s{sSt}, s{t0}, {STAT_OFF}")
    a(f"s_cmp_lt_u32 s{sNJ}, 16"); a(f"s_cselect_b32 s{sSt}, {hex(OOB)}, s{sSt}")
    a(f"v_mov_b32 v{GV}, 0"); a(f"v_mov_b32 v{GV+1}, -1.0"); a(f"v_lshlrev_b32 v{GV+2}, 3, v{vLane}")
    a(f"buffer_store_dwordx2 v[{GV}:{GV+1}], v{GV+2}, s[{SWS}:{SWS+3}], s{sSt} offen sc1")
    vmG.issue("mark")
    if codewarm:
        a(f"s_cmp_eq_u32 s{sW}, 7")
        a(f"s_cbranch_scc0 L_{name}_nocw")
        a(f"s_getpc_b64 s[{t2}:{t3}]")
        a.label(f"L_{name}_pc")
        a(f"s_lshr_b32 s{t0}, s2, 3"); a(f"s_lshl_b32 s{t0}, s{t0}, 4")
        a(f"v_and_b32 v{GV+4}, 15, v{vLane}"); a(f"v_add_u32 v{GV+4}, s{t0}, v{GV+4}"); a(f"v_lshlrev_b32 v{GV+4}, 7, v{GV+4}")
        a(f"v_mov_b32 v{GV+7}, s{t3}"); a(f"v_add_co_u32 v{GV+6}, vcc, s{t2}, v{GV+4}"); a(f"v_addc_co_u32 v{GV+7}, vcc, 0, v{GV+7}, vcc")
        a(f"s_mov_b32 s{t0}, L_text_end-L_{name}_pc")
        a(f"v_cmp_gt_u32 vcc, s{t0}, v{GV+4}")
        a(f"s_and_saveexec_b64 s[{t2}:{t3}], vcc")
        a(f"s_cbranch_execz L_{name}_cwx")
        a(f"global_load_dword v{GV+5}, v[{GV+6}:{GV+7}], off")
        a.label(f"L_{name}_cwx")
        a(f"s_mov_b64 exec, s[{t2}:{t3}]")
        a.label(f"L_{name}_nocw")
    a("s_barrier")
    for grp in dmaW(0):
        for l in grp: a(l)
    P.stamp(4, "pro")
    gm_w1 = True
    common_late()
    srd(a, SX, pX, 0, 2048*2048)
    a(f"v_lshrrev_b32 v{vA}, 4, v{vLane}"); a(f"v_lshlrev_b32 v{vB_}, 11, v{vA}")
    a(f"v_bfe_u32 v{vC}, v{vLane}, 2, 2"); a(f"v_lshlrev_b32 v{vC}, 6, v{vC}"); a(f"v_add_u32 v{vB_}, v{vB_}, v{vC}")
    a(f"v_and_b32 v{vC}, 3, v{vLane}"); a(f"v_lshlrev_b32 v{vC}, 3, v{vC}"); a(f"v_add_u32 v{vB_}, v{vB_}, v{vC}")
    a(f"v_add_u32 v{vB_}, {W_BASE + 6144}, v{vB_}")
    a(f"v_and_b32 v{vA}, 1, v{vA}"); a(f"v_xor_b32 v{vA}, s{sODD}, v{vA}"); a(f"v_lshlrev_b32 v{vA}, 5, v{vA}")
    a(f"v_add_u32 v{vW2[0]}, v{vB_}, v{vA}"); a(f"v_xor_b32 v{vA}, 32, v{vA}"); a(f"v_add_u32 v{vW2[1]}, v{vB_}, v{vA}")
    a(f"s_lshl_b32 s{t0}, s{sODD}, 8"); a(f"v_add_u32 v{vW2[1]}, s{t0}, v{vW2[1]}")
    a(f"s_branch L_{name}_gmain")

    def gate_loads(vm):
        ops = [f"s_lshl_b32 s{t0}, s{sMI}, 8", f"s_lshl_b32 s{t1}, s{sNJ}, 3", f"s_add_u32 s{t0}, s{t0}, s{t1}", f"s_add_u32 s{t0}, s{t0}, s{sW}",
               f"s_lshl_b32 s{sTo}, s{t0}, 2", f"s_add_u32 s{sTo}, s{sTo}, {GATE_OFF}", f"s_lshl_b32 s{t0}, s{t0}, 11",
               f"s_mov_b32 s{ST}, s{pGATE}", f"s_mov_b32 s{ST+1}, s{pGATE+1}", f"s_mov_b32 s{ST+2}, 2048", f"s_mov_b32 s{ST+3}, {hex(SRD3)}"]
        ld = [f"buffer_load_dwordx4 v[{GV}:{GV+3}], v{vRLd}, s[{SX}:{SX+3}], s{t0} offen",
              f"buffer_load_dwordx4 v[{GV+4}:{GV+7}], v{vRLd}, s[{SX}:{SX+3}], s{t0} offen offset:1024",
              f"buffer_load_dwordx4 v[{GV+8}:{GV+11}], v{vRLd}, s[{ST}:{ST+3}], 0 offen",
              f"buffer_load_dwordx4 v[{GV+12}:{GV+15}], v{vRLd}, s[{ST}:{ST+3}], 0 offen offset:1024"]
        for q in range(4): vm.issue(("gate", q))
        return ops + ld
    def gate_compute():
        T = GV + 16
        o = [f"v_mov_b32 v{T+2}, 0", f"v_mov_b32 v{T+3}, 0"]
        for q in range(8):
            xr, gr = GV + q, GV + 8 + q
            o += [f"v_lshlrev_b32 v{T}, 16, v{xr}", f"v_and_b32 v{T+1}, 0xffff0000, v{xr}",
                  f"v_lshlrev_b32 v{T+4}, 16, v{gr}", f"v_and_b32 v{T+5}, 0xffff0000, v{gr}",
                  f"v_fma_f32 v{T+2}, v{T}, v{T+4}, v{T+2}", f"v_fma_f32 v{T+3}, v{T+1}, v{T+5}, v{T+3}"]
        o.append(f"v_add_f32 v{T}, v{T+2}, v{T+3}")
        for sh in (8, 4, 2, 1):
            o.append(f"v_add_f32_dpp v{T}, v{T}, v{T} row_ror:{sh} row_mask:0xf bank_mask:0xf")
        o += [f"v_mov_b32 v{T+1}, v{T}", f"v_permlane16_swap_b32 v{T}, v{T+1}", f"v_add_f32 v{T}, v{T}, v{T+1}",
              f"v_mov_b32 v{T+1}, v{T}", f"v_permlane32_swap_b32 v{T}, v{T+1}", f"v_add_f32 v{T}, v{T}, v{T+1}",
              f"v_mul_f32 v{T}, {f2h(-LOG2E)}, v{T}", f"v_exp_f32 v{T}, v{T}", f"v_add_f32 v{T}, 1.0, v{T}", f"v_rcp_f32 v{T}, v{T}",
              f"v_lshlrev_b32 v{T+1}, 2, v{vLane}", f"v_cmp_eq_u32 vcc, 0, v{vLane}", f"v_mov_b32 v{T+2}, {hex(OOB)}", f"v_cndmask_b32 v{T+1}, v{T+2}, v{T+1}, vcc"]
        return o, f"buffer_store_dword v{T}, v{T+1}, s[{SWS}:{SWS+3}], s{sTo} offen"

    def xreads(step):
        tile = step >> 1; kh = step & 1; slot = tile % NA
        base = XF + (step % 2)*16
        hi = 1 if slot == 2 else 0; off = 0 if slot == 2 else slot*A_SLOT
        return [f"ds_read_b128 v[{base+4*tb}:{base+4*tb+3}], v{vX[hi][kh]} offset:{off + tb*2048}" for tb in range(4)]
    def main_loop(role):
        att = role == "A"
        vm = vmA if att else vmG
        nb = 6 if att else 7
        ACC = ACC_A if att else ACC_G
        WSET = 4*nb
        def wreads(step):
            base = WF + (step % 2)*WSET; slot = step % NW; out = []
            for i in range(nb):
                for sec in range(2):
                    r = base + 4*i + 2*sec
                    if att: out.append(f"ds_read_b64_tr_b16 v[{r}:{r+1}], v{vW1[i & 1]} offset:{slot*W_SLOT + sec*768 + (i >> 1)*256}")
                    else:   out.append(f"ds_read_b64_tr_b16 v[{r}:{r+1}], v{vW2[i & 1]} offset:{slot*W_SLOT + sec*1024 + (i >> 1)*256}")
            return out
        def mfmas(step):
            xb = XF + (step % 2)*16; wb = WF + (step % 2)*WSET; out = []
            for i in range(nb):
                for tb in (range(4) if i % 2 == 0 else range(3, -1, -1)):
                    c = ACC + (i*4+tb)*4
                    w_, x_ = f"v[{wb+4*i}:{wb+4*i+3}]", f"v[{xb+4*tb}:{xb+4*tb+3}]"
                    if att and i >= 4: w_, x_ = x_, w_
                    out.append(f"v_mfma_f32_16x16x32_bf16 v[{c}:{c+3}], {w_}, {x_}, v[{c}:{c+3}]")
            return out
        for i in range(nb*16): a(f"v_mov_b32 v{ACC+i}, 0")
        if not att:
            for grp in dmaW(1):
                for l in grp: a(l)
        need = [("A", 0, e) for e in range(8)] if att else [("W", 0, j) for j in range(4)]
        a(f"s_waitcnt vmcnt({vm.need(need)}) lgkmcnt(0)")
        a("s_barrier")
        for l in xreads(0) + wreads(0): a(l)
        if att:
            att_second()
            a("s_waitcnt lgkmcnt(0)")
        else:
            for grp in dmaW(2):
                for l in grp: a(l)
            a(f"s_waitcnt vmcnt({max(vm.need([('W', 1, j) for j in range(4)]), 0)}) lgkmcnt(0)")
        a("s_barrier")
        P.stamp(1)
        if lprio == role: a("s_setprio 1")
        steps = []; pend_rl = []
        gcomp, gstore = gate_compute()
        GL, GS0, GS1 = 26, 28, 31
        L0 = 2
        for s in range(NS):
            m = mfmas(s); nm = len(m)
            rd = (xreads(s+1) + wreads(s+1)) if s + 1 < NS else []
            dm = []
            if s == GS0: gate_wait = vm.need([("gate", 3)])
            if att:
                t2_ = ((s + 1) >> 1) + 2; half = (s + 1) & 1
                if s == 0: dm += dmaA(2, 0)
                if t2_ < NS // 2: dm += dmaA(t2_, half)
                if s == 1: dm.append(wphi_ops())
                cold = []
                if burst and bmode == 4:
                    inloop = L0 <= s < L0 + 24
                    r = (s - L0) % 12
                    if touch and s == 0: cold += sum([touch_ops(vm, ("T", q)) for q in (2, 3, 4)], [])
                    if inloop and r % 4 == 0:
                        bidx = r // 4
                        if touch: cold += sum([touch_ops(vm, ("T", s, q)) for q in range(2)], [])
                        if relayout:
                            cur = []
                            for bi in range(2 if bidx == 0 else 1):
                                b = vRLb + 4*bi; tag = ("RL", s, bi); vm.issue(tag); cur.append((tag, b))
                                cold += [f"buffer_load_dwordx4 v[{b}:{b+3}], v{vRL}, s[{SRL}:{SRL+3}], s{sRLs} offen {rfl}", f"s_add_u32 s{sRLs}, s{sRLs}, 128"]
                            pend_rl.append(cur)
                    if relayout and inloop and r % 4 == 3:
                        prev = pend_rl.pop(0)
                        n = vm.need([prev[-1][0]])
                        cold.append(f"s_waitcnt vmcnt({n})")
                        for tag, b in prev:
                            vm.issue(("RS", tag))
                            cold += [f"buffer_store_dwordx4 v[{b}:{b+3}], v{vRLd}, s[{SWS}:{SWS+3}], s{sRLd} offen {st}", f"s_add_u32 s{sRLd}, s{sRLd}, {44*8192}"]
                elif burst:
                    if touch and s == 0: cold += sum([touch_ops(vm, ("T", q)) for q in (2, 3, 4)], [])
                    if touch and L0 <= s < L0 + 24 and (s - L0) % U == 1: cold += sum([touch_ops(vm, ("T", s, q)) for q in range(3)], [])
                    if relayout and L0 <= s < L0 + 24:
                        r6 = (s - L0) % U
                        if r6 == 1:
                            for bi in range(2):
                                b = vRLb + 4*bi
                                vm.issue(("RL", s, bi))
                                cold += [f"buffer_load_dwordx4 v[{b}:{b+3}], v{vRL}, s[{SRL}:{SRL+3}], s{sRLs} offen", f"s_add_u32 s{sRLs}, s{sRLs}, 128"]
                        if r6 == 5:
                            n = vm.need([("RL", s - 4, 1)])
                            cold.append(f"s_waitcnt vmcnt({n})")
                            for bi in range(2):
                                b = vRLb + 4*bi
                                vm.issue(("RS", s, bi))
                                cold += [f"buffer_store_dwordx4 v[{b}:{b+3}], v{vRLd}, s[{SWS}:{SWS+3}], s{sRLd} offen {st}", f"s_add_u32 s{sRLd}, s{sRLd}, {44*8192}"]
                    pass
                if burst:
                    if cold: dm.append(cold)
                else:
                    if touch and s < 2:
                        for q in range(2 + s*((PT-1)//2), min(PT, 2 + (s+1)*((PT-1)//2)) if s == 0 else PT): dm.append(touch_ops(vm, ("T", q)))
                    if touch and s % 2 == 0 and s < L0 + 24: dm.append(touch_ops(vm, ("T", s // 2 + PT)))
                    if relayout and L0 <= s < L0 + 24:
                        r6 = (s - L0) % 6
                        if r6 in (0, 2):
                            b = vRLb + 2*r6
                            vm.issue(("RL", s))
                            dm.append([f"buffer_load_dwordx4 v[{b}:{b+3}], v{vRL}, s[{SRL}:{SRL+3}], s{sRLs} offen {rfl}", f"s_add_u32 s{sRLs}, s{sRLs}, 128"])
                        if r6 in (4, 5):
                            src = s - 4 if r6 == 4 else s - 3
                            b = vRLb + (0 if r6 == 4 else 4)
                            n = vm.need([("RL", src)])
                            vm.issue(("RS", s))
                            dm.append([f"s_waitcnt vmcnt({n})", f"buffer_store_dwordx4 v[{b}:{b+3}], v{vRLd}, s[{SWS}:{SWS+3}], s{sRLd} offen {st}", f"s_add_u32 s{sRLd}, s{sRLd}, {44*8192}"])
            else:
                if NW == 4 and s == 0: dm += dmaW(3)
                if s + NW < NS: dm += dmaW(s + NW)
            if att and wsp_tail and s == wsp_tail:
                vm.issue("wsp")
                if wsplit:
                    dm.append([f"s_mov_b32 s{SRL}, s{pWSP}", f"s_mov_b32 s{SRL+1}, s{pWSP+1}", f"s_mov_b32 s{SRL+2}, {2048*4096}", f"s_mov_b32 s{SRL+3}, {hex(SRD3)}",
                               f"s_lshl_b32 s{t0}, s2, 15", f"s_lshl_b32 s{t1}, s{sWQ}, 13", f"s_add_u32 s{t0}, s{t0}, s{t1}", f"s_add_u32 s{t0}, s{t0}, 2048",
                               f"v_lshrrev_b32 v{vRL}, 4, v{vLane}", f"v_lshlrev_b32 v{vRL}, 12, v{vRL}", f"v_and_b32 v{vDum}, 15, v{vLane}", f"v_lshlrev_b32 v{vDum}, 7, v{vDum}",
                               f"v_add_u32 v{vRL}, v{vRL}, v{vDum}", f"v_cmp_gt_u32 vcc, 32, v{vLane}", f"v_mov_b32 v{vDum}, {hex(OOB)}", f"v_cndmask_b32 v{vRL}, v{vDum}, v{vRL}, vcc",
                               f"buffer_load_dword v{vDum}, v{vRL}, s[{SRL}:{SRL+3}], s{t0} offen"])
                else:
                    dm.append([f"s_mov_b32 s{SRL}, s{pWSP}", f"s_mov_b32 s{SRL+1}, s{pWSP+1}", f"s_mov_b32 s{SRL+2}, {2048*4096}", f"s_mov_b32 s{SRL+3}, {hex(SRD3)}",
                               ] + (
                               [f"s_and_b32 s{t0}, s2, 7", f"s_lshr_b32 s{t2}, s{t0}, 1", f"s_lshl_b32 s{t2}, s{t2}, 21", f"s_lshr_b32 s{t3}, s2, 3"] +
                               ([f"s_and_b32 s{t0}, s{t0}, 1", f"s_lshl_b32 s{t0}, s{t0}, 5", f"s_add_u32 s{t3}, s{t3}, s{t0}", f"s_lshl_b32 s{t3}, s{t3}, 15", f"s_lshl_b32 s{t1}, s{sWQ}, 13"] if wsp_aff == 1 else
                                [f"s_lshl_b32 s{t3}, s{t3}, 16", f"s_lshl_b32 s{t1}, s{sWQ}, 14"]) +
                               [f"s_add_u32 s{t0}, s{t2}, s{t3}", f"s_add_u32 s{t0}, s{t0}, s{t1}"]
                               if wsp_aff else
                               [f"s_lshl_b32 s{t0}, s2, 15", f"s_lshl_b32 s{t1}, s{sWQ}, 13", f"s_add_u32 s{t0}, s{t0}, s{t1}"]) + [
                               f"v_lshlrev_b32 v{vRL}, 7, v{vLane}", f"buffer_load_dword v{vDum}, v{vRL}, s[{SRL}:{SRL+3}], s{t0} offen"] +
                               ([f"s_add_u32 s{t0}, s{t0}, 8192", f"buffer_load_dword v{vDum}, v{vRL}, s[{SRL}:{SRL+3}], s{t0} offen"] if wsp_aff == 2 else []))
                    if wsp_aff == 2: vm.issue("wsp2")
            if s == GL: dm.append(gate_loads(vm))
            slots = [[] for _ in range(nm)]
            for k, x in enumerate(rd): slots[min(nm-1, (k*(nm-5))//len(rd))].append(x)
            last_pos = -9
            for k, g in enumerate(dm):
                if dpos == "late" and 2*len(dm) + 2 <= nm: pos = nm - 2*len(dm) + 2*k
                elif dpos == "mid" and 3*len(dm) + 2 <= nm: pos = nm - 3*len(dm) + 3*k
                else: pos = min(nm-1, 1 + (k*(nm-3))//max(len(dm), 1))
                assert pos - last_pos >= 2, (role, s, k, len(dm)); last_pos = pos
                if g[0].startswith("s_add_u32 m0") or g[0].startswith("s_mul_i32"):
                    n0 = 2 if g[0].startswith("s_mul_i32") else 1
                    slots[pos-1].extend(g[:n0]); slots[pos] = g[n0:] + slots[pos]
                else: slots[pos].extend(g)
            if GS0 <= s < GS1:
                per = -(-len(gcomp)//(GS1 - GS0)); part = gcomp[(s-GS0)*per:(s-GS0+1)*per]
                if s == GS0: slots[0].append(f"s_waitcnt vmcnt({gate_wait})")
                for k, x in enumerate(part): slots[min(nm-1, 1 + (k*(nm-2))//len(part))].append(x)
            if not att and s == 29: assert vm.need([("W", 31, 3)]) == 0
            if not att and s == 30:
                slots[0] += [f"s_cmp_eq_u32 s{sWQ}, 0", f"s_cselect_b32 s{t0}, s{sNJ}, 0", f"s_cmp_ge_u32 s{t0}, 16", f"s_cbranch_scc0 L_{name}_noc1",
                             f"s_mov_b32 s{ST}, s{pDBG}", f"s_mov_b32 s{ST+1}, s{pDBG+1}", f"s_mov_b32 s{ST+2}, 256", f"s_mov_b32 s{ST+3}, {hex(SRD3)}",
                             f"s_lshl_b32 s{t1}, s{sMI}, 5", f"v_mov_b32 v{vA}, 0", f"v_mov_b32 v{vB_}, 1",
                             f"s_mov_b64 s[{t2}:{t3}], exec", "s_mov_b64 exec, 1",
                             f"buffer_atomic_add v{vB_}, v{vA}, s[{ST}:{ST+3}], s{t1} offen sc1",
                             f"s_mov_b64 exec, s[{t2}:{t3}]", f"L_{name}_noc1:"]
            if s == GS1:
                vm.issue("gst"); slots[2].append(gstore)
            seq = []
            for k in range(nm):
                seq.append(m[k]); seq += slots[k]
            need = []
            if s + 2 < NS:
                if att: need = [("A", (s+2) >> 1, e) for e in range(8)]
                else: need = [("W", s+2, j) for j in range(4)]
            if s + 1 < NS:
                w = f"s_waitcnt lgkmcnt(0)" if not need else f"s_waitcnt vmcnt({vm.need(need)}) lgkmcnt(0)"
                seq.append(w); seq.append("s_barrier")
            steps.append(seq)
        n_iter = 24 // U
        for s in range(L0):
            for l in steps[s]: a(l)
        fold_loop(a, steps, L0, n_iter, U, f"L_{name}_loop{role}", sIT)
        for s in range(L0 + n_iter*U, NS):
            for l in steps[s]: a(l)
    a.label(f"L_{name}_amain")
    main_loop("A")
    if lprio == "A": a("s_setprio 0")
    P.stamp(2)
    epilogue_att(a, locals())
    a(f"s_branch L_{name}_fin")
    a.label(f"L_{name}_gmain")
    main_loop("G")
    if lprio == "G": a("s_setprio 0")
    P.stamp(2)
    epilogue_gmlp(a, locals())
    a.label(f"L_{name}_fin")
    if prof: a("s_waitcnt vmcnt(0)")
    P.stamp(5)
    P.dump(vLane, sW)
    if wsp_epi:
        srd(a, ST, pWSP, 0, 2048*4096)
        a(f"s_lshl_b32 s{t0}, s{sMI}, 4"); a(f"s_add_u32 s{t0}, s{t0}, s{sNJ}"); a(f"s_lshl_b32 s{t0}, s{t0}, 16")
        a(f"s_lshl_b32 s{t1}, s{sW}, 13"); a(f"s_add_u32 s{t0}, s{t0}, s{t1}")
        a(f"s_cmp_lt_u32 s{sNJ}, 16"); a(f"s_cselect_b32 s{t0}, s{t0}, {hex(OOB)}")
        a(f"v_lshlrev_b32 v{vA}, 7, v{vLane}")
        a(f"buffer_load_dword v{vDum}, v{vA}, s[{ST}:{ST+3}], s{t0} offen")
    a.label(f"L_{name}_end")
    a("s_endpgm")
    return kernel_text(name, a, nv=256, ns=102, ao=256), S1_LDS

from s1_epi import epilogue_att, epilogue_gmlp
```

```python
from asmlib import *
from common import *
OOB = 0x40000000

def gen_s3(name="s3_kernel", R=4, dist=4, PF=6, prof=False, pmode="epi", pf=False, n0=2, catch=3, ost="sc1", wlate=False, hprio=False):
    a = Asm()
    P = Prof(a, prof); P.mode = pmode
    NS = NKB // 2
    D = R; U = R
    sOUT, pWS = 28, 34
    SA, SW, SO = 8, 12, 16
    sW, sTQ, sKH, sIT, sAoff, sWoff, sM0, sTB, sNB = 20, 21, 22, 23, 24, 25, 27, 32, 33
    t0, t1, t2 = 36, 37, 38
    vLane, vT0, vT1, vT2 = 1, 2, 3, 4
    vA0, vA1, vWs = 5, 6, 7
    vB = [8, 9, 10, 11]
    ACC = 16
    WF = 48
    AR = 80
    NV = AR + 8*D
    a(f"s_cmp_ge_u32 s2, 256")
    a(f"s_cbranch_scc1 L_{name}_end")
    P.stamp(0)
    a(f"s_load_dwordx2 s[{sOUT}:{sOUT+1}], s[0:1], {KA_OUT}")
    a(f"s_load_dwordx2 s[{pWS}:{pWS+1}], s[0:1], {KA_WS}")
    a(f"v_lshrrev_b32 v{vT0}, 6, v0")
    a(f"v_and_b32 v{vLane}, 63, v0")
    a(f"v_readfirstlane_b32 s{sW}, v{vT0}")
    a(f"s_and_b32 s3, s2, 7"); a(f"s_lshr_b32 s{t0}, s2, 3")
    a(f"s_lshr_b32 s{t1}, s3, 1"); a(f"s_lshl_b32 s{t1}, s{t1}, 2"); a(f"s_and_b32 s{t2}, s{t0}, 3"); a(f"s_add_u32 s{sTB}, s{t1}, s{t2}")
    a(f"s_and_b32 s{t1}, s3, 1"); a(f"s_lshl_b32 s{t1}, s{t1}, 3"); a(f"s_lshr_b32 s{t2}, s{t0}, 2"); a(f"s_add_u32 s{sNB}, s{t1}, s{t2}")
    if pf:
        a(f"s_cmp_eq_u32 s{sW}, 8")
        a(f"s_cbranch_scc1 L_{name}_pf")
    a(f"s_and_b32 s{sTQ}, s{sW}, 3"); a(f"s_lshr_b32 s{sKH}, s{sW}, 2")
    a(f"s_lshl_b32 s{t0}, s{sTB}, 3"); a(f"s_lshl_b32 s{t1}, s{sTQ}, 1"); a(f"s_add_u32 s{t0}, s{t0}, s{t1}")
    a(f"s_mul_i32 s{t0}, s{t0}, {NKB}"); a(f"s_add_u32 s{t0}, s{t0}, s{sKH}"); a(f"s_lshl_b32 s{t0}, s{t0}, 10")
    a(f"v_lshlrev_b32 v{vT0}, 4, v{vLane}")
    a(f"v_add_u32 v{vA0}, s{t0}, v{vT0}")
    a(f"v_add_u32 v{vA1}, {NKB*1024}, v{vA0}")
    a(f"s_mul_i32 s{t0}, s{sNB}, {44*8192}"); a(f"s_lshl_b32 s{sM0}, s{sW}, 10"); a(f"s_add_u32 s{t0}, s{t0}, s{sM0}")
    a(f"v_add_u32 v{vWs}, s{t0}, v{vT0}")
    a(f"s_mov_b32 s{sAoff}, 0"); a(f"s_mov_b32 s{sWoff}, 0")
    a("s_waitcnt lgkmcnt(0)")
    P.stamp(3, "pro")
    srd(a, SA, pWS, ACAT_OFF, ACAT_SZ)
    srd(a, SW, pWS, WT_OFF, WT_SZ)
    vm = VmTracker()
    def dma(tile):
        vm.issue(("W", tile))
        return [f"s_add_u32 m0, s{sM0}, {(tile % R)*8192}",
                f"buffer_load_dwordx4 v{vWs}, s[{SW}:{SW+3}], s{sWoff} offen lds",
                f"s_add_u32 s{sWoff}, s{sWoff}, 8192"]
    def aload(step):
        r = AR + (step % D)*8
        vm.issue(("A", step, 0)); vm.issue(("A", step, 1))
        return [f"buffer_load_dwordx4 v[{r}:{r+3}], v{vA0}, s[{SA}:{SA+3}], s{sAoff} offen",
                f"buffer_load_dwordx4 v[{r+4}:{r+7}], v{vA1}, s[{SA}:{SA+3}], s{sAoff} offen",
                f"s_add_u32 s{sAoff}, s{sAoff}, 2048"]
    if pf: a("s_barrier")
    for i in range(n0):
        for l in dma(i): a(l)
        for l in aload(i): a(l)
    P.stamp(4, "pro")
    a(f"v_lshrrev_b32 v{vT0}, 2, v{vLane}"); a(f"v_bfe_u32 v{vT1}, v{vLane}, 3, 2"); a(f"v_lshlrev_b32 v{vT0}, 7, v{vT0}")
    a(f"v_and_b32 v{vT2}, 3, v{vLane}"); a(f"v_lshlrev_b32 v{vT2}, 3, v{vT2}"); a(f"v_add_u32 v{vT0}, v{vT0}, v{vT2}")
    a(f"s_lshl_b32 s{t0}, s{sKH}, 12"); a(f"v_add_u32 v{vT0}, s{t0}, v{vT0}")
    for j in range(4):
        a(f"v_xor_b32 v{vT2}, {j}, v{vT1}"); a(f"v_lshlrev_b32 v{vT2}, 5, v{vT2}"); a(f"v_add_u32 v{vB[j]}, v{vT0}, v{vT2}")
    for i in range(32): a(f"v_mov_b32 v{ACC+i}, 0")
    srd(a, SO, sOUT, 0, 2048*2048)
    def wreads(tile):
        base = WF + (tile % 2)*16
        return [f"ds_read_b64_tr_b16 v[{base+4*j+2*sec}:{base+4*j+2*sec+1}], v{vB[j]} offset:{(tile % R)*8192 + sec*2048}" for j in range(4) for sec in range(2)]
    def mfmas(step):
        wb = WF + (step % 2)*16; ab = AR + (step % D)*8
        return [f"v_mfma_f32_16x16x32_bf16 v[{ACC+(T*4+j)*4}:{ACC+(T*4+j)*4+3}], v[{wb+4*j}:{wb+4*j+3}], v[{ab+4*T}:{ab+4*T+3}], v[{ACC+(T*4+j)*4}:{ACC+(T*4+j)*4+3}]" for T in range(2) for j in (range(4) if T == 0 else range(3, -1, -1))]
    a(f"s_waitcnt vmcnt({vm.need([('W', 0)])})")
    a("s_barrier")
    for l in wreads(0): a(l)
    a(f"s_waitcnt vmcnt({vm.need([('W', 1), ('A', 0, 0), ('A', 0, 1)])}) lgkmcnt(0)")
    a("s_barrier")
    P.stamp(1)
    if hprio:
        a(f"s_cmp_ge_u32 s{sW}, 4"); a(f"s_cbranch_scc0 L_{name}_np"); a("s_setprio 1"); a.label(f"L_{name}_np")
    nxt = n0; steps = []; first_steady = None
    for s in range(NS):
        m = mfmas(s)
        rd = wreads(s + 1) if s + 1 < NS else []
        tiles = []
        while nxt < NS and nxt <= s + dist and len(tiles) < catch:
            tiles.append(nxt); nxt += 1
        early = [t for t in tiles if t - D < s]; late = [t for t in tiles if t - D == s]
        assert all(t - D <= s for t in tiles)
        seq = [m[0]]
        groups = []
        for t in tiles: groups.append(dma(t))
        late_g = []
        if wlate and len(groups) == 1: late_g = groups; groups = []
        k = 0
        seq += rd[0:2]
        for g_ in groups[:1]: seq += [g_[0], m[1]] + g_[1:]
        if not groups: seq.append(m[1])
        seq += rd[2:4]
        seq.append(m[2]); seq += rd[4:6]
        if len(groups) > 1: seq += [groups[1][0], m[3]] + groups[1][1:]
        else: seq.append(m[3])
        seq += rd[6:8]
        if len(groups) > 2: seq += [groups[2][0], m[4]] + groups[2][1:] + m[5:8]
        else: seq += m[4:8]
        assert len(groups) <= 3
        for g_ in late_g: seq += [g_[0], "s_nop 0"] + g_[1:]
        for t in tiles: seq += aload(t)
        need = []
        if s + 2 < NS: need.append(("W", s + 2))
        if s + 1 < NS: need += [("A", s + 1, 0), ("A", s + 1, 1)]
        if need:
            seq.append(f"s_waitcnt vmcnt({min(63, vm.need(need))}) lgkmcnt(0)")
            seq.append("s_barrier")
        steps.append(seq)
        if first_steady is None and len(tiles) == 1 and tiles[0] == s + dist: first_steady = s
    L0 = first_steady
    last_issue = NS - 1 - dist
    n_iter = (last_issue + 1 - L0) // R
    for s in range(L0):
        for l in steps[s]: a(l)
    fold_loop(a, steps, L0, n_iter, R, f"L_{name}_loop", sIT)
    for s in range(L0 + n_iter*R, NS):
        for l in steps[s]: a(l)
    P.stamp(2)
    RS = 272
    a(f"v_and_b32 v{vT0}, 15, v{vLane}")
    a(f"s_lshl_b32 s{t0}, s{sTQ}, 5"); a(f"s_lshl_b32 s{t1}, s{sKH}, 7"); a(f"s_add_u32 s{t0}, s{t0}, s{t1}")
    a(f"v_add_u32 v{vT0}, s{t0}, v{vT0}"); a(f"v_mul_u32_u24 v{vT0}, {RS}, v{vT0}")
    a(f"v_lshrrev_b32 v{vT1}, 4, v{vLane}"); a(f"v_lshlrev_b32 v{vT1}, 4, v{vT1}"); a(f"v_add_u32 v{vT0}, v{vT0}, v{vT1}")
    for T in range(2):
        for j in range(4):
            c = ACC + (T*4+j)*4
            a(f"ds_write_b128 v{vT0}, v[{c}:{c+3}] offset:{T*16*RS + 64*j}")
    a(f"v_lshrrev_b32 v{vT1}, 3, v{vLane}"); a(f"s_lshl_b32 s{t0}, s{sW}, 4"); a(f"v_add_u32 v{vT1}, s{t0}, v{vT1}")
    a(f"v_mul_u32_u24 v{vT2}, {RS}, v{vT1}"); a(f"v_and_b32 v{vT0}, 7, v{vLane}"); a(f"v_lshlrev_b32 v{vA0}, 5, v{vT0}"); a(f"v_add_u32 v{vT2}, v{vT2}, v{vA0}")
    a(f"s_lshl_b32 s{t0}, s{sTB}, 7"); a(f"v_add_u32 v{vT1}, s{t0}, v{vT1}"); a(f"v_lshlrev_b32 v{vT1}, 11, v{vT1}")
    a(f"v_lshlrev_b32 v{vT0}, 4, v{vT0}"); a(f"v_add_u32 v{vT1}, v{vT1}, v{vT0}"); a(f"s_lshl_b32 s{t0}, s{sNB}, 7"); a(f"v_add_u32 v{vT1}, s{t0}, v{vT1}")
    a("s_waitcnt lgkmcnt(0)")
    a("s_barrier")
    X = 48
    for p in range(2):
        for h in range(2):
            for q in range(2):
                r = X + p*16 + h*8 + q*4
                a(f"ds_read_b128 v[{r}:{r+3}], v{vT2} offset:{p*8*RS + h*128*RS + q*16}")
    for p in range(2):
        a(f"s_waitcnt lgkmcnt({4 if p == 0 else 0})")
        b = X + p*16
        for i in range(0, 8, 2):
            a(f"v_pk_add_f32 v[{b+i}:{b+i+1}], v[{b+i}:{b+i+1}], v[{b+8+i}:{b+9+i}]")
        for i in range(4):
            a(f"v_cvt_pk_bf16_f32 v{b+8+i}, v{b+2*i}, v{b+2*i+1}")
        a(f"buffer_store_dwordx4 v[{b+8}:{b+11}], v{vT1}, s[{SO}:{SO+3}], 0 offen {ost}")
        if p == 0: a(f"v_add_u32 v{vT1}, {8*2048}, v{vT1}")
    if prof: a("s_waitcnt vmcnt(0)")
    P.stamp(5)
    P.dump(vLane, sW)
    a("s_endpgm")
    if pf:
        a.label(f"L_{name}_pf")
        a(f"s_lshr_b32 s{t0}, s2, 3"); a(f"s_and_b32 s{t1}, s{t0}, 3"); a(f"s_lshr_b32 s{t0}, s{t0}, 2")
        a(f"v_bfe_u32 v{vT0}, v{vLane}, 3, 1")
        a(f"s_lshl_b32 s{t2}, s{sTB}, 3"); a(f"s_add_u32 s{t2}, s{t2}, s{t0}"); a(f"s_mul_i32 s{t2}, s{t2}, {NKB}")
        a(f"v_add_u32 v{vT0}, s{t2}, v{vT0}"); a(f"v_lshlrev_b32 v{vT0}, 10, v{vT0}")
        a(f"v_and_b32 v{vT1}, 7, v{vLane}"); a(f"v_lshlrev_b32 v{vT1}, 7, v{vT1}"); a(f"v_add_u32 v{vT0}, v{vT0}, v{vT1}")
        a(f"v_add_u32 v{vT0}, {ACAT_OFF}, v{vT0}")
        a(f"s_mul_i32 s{t2}, s{sNB}, {44*8192}"); a(f"s_lshl_b32 s{t1}, s{t1}, 11"); a(f"s_add_u32 s{t2}, s{t2}, s{t1}"); a(f"s_add_u32 s{t2}, s{t2}, {WT_OFF}")
        a(f"v_and_b32 v{vT1}, 15, v{vLane}"); a(f"v_lshlrev_b32 v{vT1}, 7, v{vT1}"); a(f"v_add_u32 v{vT1}, s{t2}, v{vT1}")
        a(f"v_cmp_gt_u32 vcc, 16, v{vLane}"); a(f"v_cndmask_b32 v{vA0}, v{vT1}, v{vT0}, vcc")
        a(f"v_mov_b32 v{vT0}, 2048"); a(f"v_mov_b32 v{vT1}, 8192"); a(f"v_cndmask_b32 v{vA1}, v{vT1}, v{vT0}, vcc")
        a(f"v_cmp_gt_u32 vcc, 32, v{vLane}"); a(f"v_mov_b32 v{vT0}, {hex(OOB)}"); a(f"v_cndmask_b32 v{vA0}, v{vT0}, v{vA0}, vcc")
        a(f"v_mov_b32 v{vT0}, 0"); a(f"v_cndmask_b32 v{vA1}, v{vT0}, v{vA1}, vcc")
        a("s_waitcnt lgkmcnt(0)")
        srd(a, SA, pWS, 0, WS_USED)
        def touch():
            a(f"buffer_load_dword v{vT2}, v{vA0}, s[{SA}:{SA+3}], 0 offen")
            a(f"v_add_u32 v{vA0}, v{vA0}, v{vA1}")
        n0 = min(4, PF)
        for q in range(n0): touch()
        a("s_barrier")
        a("s_barrier")
        for q in range(n0, PF): touch()
        a("s_barrier")
        a(f"s_mov_b32 s{sIT}, 0")
        a.label(f"L_{name}_pfl")
        touch()
        a("s_barrier")
        a(f"s_add_u32 s{sIT}, s{sIT}, 1"); a(f"s_cmp_lt_u32 s{sIT}, {NS - PF}"); a(f"s_cbranch_scc1 L_{name}_pfl")
    a.label(f"L_{name}_end")
    a("s_endpgm")
    lds = max(R*8192, 2*128*RS, 98304)
    return kernel_text(name, a, nv=NV, ns=(102 if prof else 48), ao=NV), lds, (576 if pf else 512)
```

```python
from asmlib import *
from common import *
import struct
LOG2E = 1.4426950408889634
def f2h(x): return hex(struct.unpack("<I", struct.pack("<f", x))[0])

A_SLOT = 32768; NA = 3
W_BASE = NA*A_SLOT; W_SLOT = 14336
WPHI   = W_BASE + 4*W_SLOT
DUMMY  = WPHI + 2048
MISC   = DUMMY + 1024
S1_LDS = MISC + 256
PHI_SCR = 0
KV_SCR  = 32768
OOB = 0x40000000

def gen_s1(name="s1_kernel", prof=False, st="sc1", touch=True, relayout=True, wsp=False, wsp_epi=False, wsp_tail=29, PT=4, prio=True, pmode="epi", dedupe=True, burst=False, tfl="", dfl="", rfl="", norm="pair", NW=4, bmode=6, first_gather=True, codewarm=1, wsplit=False, selective=True, early3=False, wsp_aff=1, defer_gelu=False, dpos="spread", rl_skip=True, ninit=2, lprio="", rl_z1=True):
    a = Asm()
    P = Prof(a, prof); P.mode = pmode
    NS = 32
    U = 12 if NW == 4 else 6
    pX, pQKV, pPHI, pWO = 4, 6, 8, 10
    pWIN, pWSP = 12, 14
    pWOUT, pGATE = 16, 18
    pDBG, pWS = 20, 22
    SX, SD, SD3, SWS = 24, 28, 32, 36
    ST, SRL = 40, 44
    sW, sWQ, sMI, sNJ, sODD = 48, 49, 50, 51, 52
    sKA, sKD, sKD3, sIncD = 53, 54, 55, 56
    sM0, sM0d = 57, 58
    sMs = [59, 60, 61, 62]
    sTo, sTinc = 63, 64
    sRLs, sRLd = 65, 66
    sIT = 67
    t0, t1, t2, t3 = 68, 69, 70, 71
    sC = 72
    sH, sHq = 74, 75
    sSt = 3
    vLane, vA, vB_, vC, vD = 1, 2, 3, 4, 5
    vX = [[6, 7], [8, 9]]
    vDs = [10, 11, 12, 13, 14, 15, 16, 17]
    vW1 = [18, 19]; vW2 = [18, 19]
    vT, vRL, vRLd, vDum = 20, 21, 22, 23
    vRLb = 24
    XF = 32; WF = 64
    ACC_A = 112; ACC_G = 120
    GV = 232

    a("s_cmp_ge_u32 s2, 256")
    a(f"s_cbranch_scc1 L_{name}_end")
    P.stamp(0)
    a(f"s_load_dwordx8 s[4:11], s[0:1], 0")
    a(f"s_load_dwordx4 s[12:15], s[0:1], {KA_WIN}")
    a(f"s_load_dwordx4 s[16:19], s[0:1], {KA_WOUT}")
    a(f"s_load_dwordx4 s[20:23], s[0:1], {KA_DBG}")
    a(f"v_lshrrev_b32 v{vA}, 6, v0")
    a(f"v_and_b32 v{vLane}, 63, v0")
    a(f"v_readfirstlane_b32 s{sW}, v{vA}")
    a(f"s_and_b32 s{t0}, s2, 7")
    a(f"s_lshr_b32 s{t1}, s2, 3")
    a(f"s_and_b32 s{t2}, s{t0}, 1"); a(f"s_lshl_b32 s{t2}, s{t2}, 2"); a(f"s_and_b32 s{t3}, s{t1}, 3")
    a(f"s_add_u32 s{sMI}, s{t2}, s{t3}")
    a(f"s_lshr_b32 s{t1}, s{t1}, 2")
    a(f"s_lshr_b32 s{t0}, s{t0}, 1"); a(f"s_lshl_b32 s{t0}, s{t0}, 2")
    a(f"s_and_b32 s{t2}, s{t1}, 3"); a(f"s_add_u32 s{t0}, s{t0}, s{t2}")
    a(f"s_lshr_b32 s{t2}, s{t1}, 2"); a(f"s_lshl_b32 s{t2}, s{t2}, 4"); a(f"s_add_u32 s{sNJ}, s{t0}, s{t2}")
    a(f"s_and_b32 s{sODD}, s{sNJ}, 1")
    a(f"s_lshr_b32 s{t2}, s{sNJ}, 2"); a(f"s_xor_b32 s{sH}, s{sNJ}, 24")
    a(f"s_cmp_eq_u32 s{t2}, 3"); a(f"s_cselect_b32 s{t3}, s{sH}, s{sNJ}")
    a(f"s_cmp_eq_u32 s{t2}, 5"); a(f"s_cselect_b32 s{sH}, s{sH}, s{t3}")
    a(f"s_xor_b32 s{sHq}, s{sH}, 2"); a(f"s_cmp_lt_u32 s{sNJ}, 16"); a(f"s_cselect_b32 s{sHq}, s{sHq}, s{sH}")
    a(f"s_and_b32 s{sWQ}, s{sW}, 3")
    a(f"v_lshlrev_b32 v{vRLd}, 4, v{vLane}")
    vmA = VmTracker(); vmG = VmTracker()
    a(f"s_cmp_ge_u32 s{sW}, 4")
    a(f"s_cbranch_scc1 L_{name}_gsetup")

    def common_late():
        a(f"s_mov_b32 s{sC}, 1.0"); a(f"s_mov_b32 s{sC+1}, 1.0")
        srd(a, SWS, pWS, 0, WS_USED)
        a(f"v_and_b32 v{vA}, 15, v{vLane}")
        a(f"v_lshrrev_b32 v{vB_}, 1, v{vA}")
        a(f"v_lshrrev_b32 v{vC}, 4, v{vLane}")
        a(f"v_xor_b32 v{vB_}, v{vB_}, v{vC}")
        a(f"v_lshlrev_b32 v{vA}, 7, v{vA}")
        a(f"s_lshl_b32 s{t0}, s{sWQ}, 13")
        a(f"v_add_u32 v{vA}, s{t0}, v{vA}")
        a(f"v_lshlrev_b32 v{vC}, 4, v{vB_}")
        a(f"v_add_u32 v{vX[0][0]}, v{vA}, v{vC}")
        a(f"v_xor_b32 v{vX[0][1]}, 64, v{vX[0][0]}")
        a(f"v_add_u32 v{vX[1][0]}, 65536, v{vX[0][0]}")
        a(f"v_add_u32 v{vX[1][1]}, 65536, v{vX[0][1]}")

    a("s_waitcnt lgkmcnt(0)")
    P.stamp(3, "pro")
    a(f"s_lshr_b32 s{t1}, s2, 3"); a(f"s_and_b32 s{t2}, s{t1}, 3"); a(f"s_lshr_b32 s{t1}, s{t1}, 2")
    a(f"s_cmp_eq_u32 s{sWQ}, 0")
    a(f"s_cbranch_scc0 L_{name}_t1")
    srd(a, ST, pX, 0, 2048*2048)
    a(f"s_lshl_b32 s{t0}, s{sMI}, 8"); a(f"s_lshl_b32 s{t3}, s{t1}, 5"); a(f"s_add_u32 s{t0}, s{t0}, s{t3}")
    a(f"v_add_u32 v{vT}, s{t0}, v{vLane}"); a(f"v_lshlrev_b32 v{vT}, 11, v{vT}")
    a(f"v_cmp_gt_u32 vcc, 32, v{vLane}"); a(f"v_mov_b32 v{vA}, {hex(OOB)}"); a(f"v_cndmask_b32 v{vT}, v{vA}, v{vT}, vcc")
    a(f"s_mov_b32 s{sTinc}, 128")
    a(f"s_branch L_{name}_tdone")
    a.label(f"L_{name}_t1")
    a(f"v_mul_u32_u24 v{vA}, 43, v{vLane}"); a(f"v_lshrrev_b32 v{vA}, 7, v{vA}")
    a(f"v_mul_u32_u24 v{vB_}, 3, v{vA}"); a(f"v_sub_u32 v{vB_}, v{vLane}, v{vB_}")
    a(f"s_lshl_b32 s{t0}, s{t2}, 4"); a(f"v_add_u32 v{vA}, s{t0}, v{vA}")
    a(f"s_cmp_eq_u32 s{sWQ}, 1")
    a(f"s_cbranch_scc0 L_{name}_t2")
    srd(a, ST, pQKV, 0, 1024*6144)
    if dedupe:
        a(f"s_and_b32 s{t0}, s{sH}, 1"); a(f"s_lshl_b32 s{t0}, s{t0}, 3"); a(f"v_add_u32 v{vA}, s{t0}, v{vA}")
    a(f"v_cmp_eq_u32 vcc, 0, v{vB_}")
    a(f"v_mul_u32_u24 v{vT}, 6144, v{vA}"); a(f"v_lshlrev_b32 v{vB_}, 11, v{vB_}"); a(f"v_add_u32 v{vT}, v{vT}, v{vB_}")
    a(f"s_lshl_b32 s{t0}, s{sH}, 6"); a(f"s_lshl_b32 s{t3}, s{sHq}, 6"); a(f"v_mov_b32 v{vA}, s{t0}"); a(f"v_mov_b32 v{vB_}, s{t3}"); a(f"v_cndmask_b32 v{vA}, v{vA}, v{vB_}, vcc")
    a(f"v_add_u32 v{vT}, v{vA}, v{vT}")
    a(f"v_cmp_gt_u32 vcc, {24 if dedupe else 48}, v{vLane}"); a(f"v_mov_b32 v{vA}, {hex(OOB)}"); a(f"v_cndmask_b32 v{vT}, v{vA}, v{vT}, vcc")
    a(f"s_mov_b32 s{sTinc}, {64*6144}")
    a(f"s_branch L_{name}_tdone")
    a.label(f"L_{name}_t2")
    a(f"s_cmp_eq_u32 s{sWQ}, 2")
    a(f"s_cbranch_scc0 L_{name}_t3")
    srd(a, ST, pWIN, 0, 1024*7168)
    a(f"v_mul_u32_u24 v{vT}, 7168, v{vA}"); a(f"v_lshlrev_b32 v{vB_}, 7, v{vB_}"); a(f"v_min_u32 v{vB_}, 252, v{vB_}"); a(f"v_add_u32 v{vT}, v{vT}, v{vB_}")
    a(f"s_mul_i32 s{t0}, s{sNJ}, 224"); a(f"s_lshl_b32 s{t3}, s{sODD}, 5"); a(f"s_sub_u32 s{t0}, s{t0}, s{t3}"); a(f"v_add_u32 v{vT}, s{t0}, v{vT}")
    a(f"v_cmp_gt_u32 vcc, 48, v{vLane}"); a(f"v_mov_b32 v{vA}, {hex(OOB)}"); a(f"v_cndmask_b32 v{vT}, v{vA}, v{vT}, vcc")
    a(f"s_mov_b32 s{sTinc}, {64*7168}")
    a(f"s_branch L_{name}_tdone")
    a.label(f"L_{name}_t3")
    srd(a, ST, pWSP, 0, 2048*4096)
    if wsplit:
        a(f"v_lshrrev_b32 v{vT}, 4, v{vLane}"); a(f"v_lshlrev_b32 v{vT}, 12, v{vT}"); a(f"v_and_b32 v{vA}, 15, v{vLane}"); a(f"v_lshlrev_b32 v{vA}, 7, v{vA}")
        a(f"v_add_u32 v{vT}, v{vT}, v{vA}"); a(f"s_lshl_b32 s{t0}, s2, 15"); a(f"v_add_u32 v{vT}, s{t0}, v{vT}")
        a(f"s_mov_b32 s{sTinc}, 16384")
        a(f"s_add_u32 s{ST+2}, s{t0}, 32768")
    else:
        a(f"v_lshlrev_b32 v{vT}, 7, v{vLane}"); a(f"s_lshl_b32 s{t0}, s2, 15"); a(f"v_add_u32 v{vT}, s{t0}, v{vT}")
        a(f"s_mov_b32 s{sTinc}, 8192")
        a(f"s_add_u32 s{ST+2}, s{t0}, 32768") if wsp else a(f"s_mov_b32 s{ST+2}, 0")
    a.label(f"L_{name}_tdone")
    a(f"s_mov_b32 s{sTo}, 0")
    def touch_ops(vm, tag):
        vm.issue(tag)
        return [f"buffer_load_dword v{vDum}, v{vT}, s[{ST}:{ST+3}], s{sTo} offen {tfl}", f"s_add_u32 s{sTo}, s{sTo}, s{sTinc}"]
    a(f"s_cmp_eq_u32 s{sWQ}, 3")
    a(f"s_cbranch_scc1 L_{name}_notouch0")
    if touch:
        for q in range(ninit):
            for l in touch_ops(vmA, ("T", q)): a(l)
    a.label(f"L_{name}_notouch0")
    a(f"v_lshrrev_b32 v{vA}, 3, v{vLane}")
    a(f"s_lshl_b32 s{t0}, s{sMI}, 8"); a(f"s_lshl_b32 s{t1}, s{sWQ}, 6"); a(f"s_add_u32 s{t0}, s{t0}, s{t1}")
    a(f"v_add_u32 v{vA}, s{t0}, v{vA}"); a(f"v_lshlrev_b32 v{vA}, 11, v{vA}")
    a(f"v_and_b32 v{vB_}, 7, v{vLane}"); a(f"v_lshrrev_b32 v{vC}, 4, v{vLane}"); a(f"v_xor_b32 v{vB_}, v{vB_}, v{vC}")
    a(f"v_lshlrev_b32 v{vC}, 4, v{vB_}"); a(f"v_add_u32 v{vDs[0]}, v{vA}, v{vC}")
    a(f"v_xor_b32 v{vC}, 64, v{vC}"); a(f"v_add_u32 v{vDs[1]}, v{vA}, v{vC}"); a(f"v_add_u32 v{vDs[1]}, {8*2048}, v{vDs[1]}")
    for e in range(2, 8): a(f"v_add_u32 v{vDs[e]}, {16*2048}, v{vDs[e-2]}")
    a(f"s_lshl_b32 s{sM0}, s{sWQ}, 13")
    a(f"s_mov_b32 s{sKA}, 0")
    srd(a, SX, pX, 0, 2048*2048)
    def dmaA(tile, half):
        out = []
        for e in range(4*half, 4*half+4):
            vmA.issue(("A", tile, e))
            out.append([f"s_add_u32 m0, s{sM0}, {(tile % NA)*A_SLOT + e*1024}",
                        f"buffer_load_dwordx4 v{vDs[e]}, s[{SX}:{SX+3}], s{sKA} offen {dfl} lds"])
        if half == 1: out[-1].append(f"s_add_u32 s{sKA}, s{sKA}, 128")
        return out
    a("s_barrier")
    for half in range(2):
        for grp in dmaA(0, half):
            for l in grp: a(l)
    if touch and ninit < 2:
        a(f"s_cmp_eq_u32 s{sWQ}, 3"); a(f"s_cbranch_scc1 L_{name}_notouch1")
        for q in range(ninit, 2):
            a(f"buffer_load_dword v{vDum}, v{vT}, s[{ST}:{ST+3}], s{sTo} offen {tfl}"); a(f"s_add_u32 s{sTo}, s{sTo}, s{sTinc}")
        a.label(f"L_{name}_notouch1")
    P.stamp(4, "pro")
    common_late()
    a(f"v_mov_b32 v{vA}, 0"); a(f"v_lshlrev_b32 v{vB_}, 2, v{vLane}"); a(f"v_add_u32 v{vB_}, {MISC}, v{vB_}"); a(f"ds_write_b32 v{vB_}, v{vA}")
    a(f"v_lshrrev_b32 v{vA}, 4, v{vLane}"); a(f"v_mul_u32_u24 v{vB_}, 1536, v{vA}")
    a(f"v_bfe_u32 v{vC}, v{vLane}, 2, 2"); a(f"v_lshlrev_b32 v{vC}, 6, v{vC}"); a(f"v_add_u32 v{vB_}, v{vB_}, v{vC}")
    a(f"v_and_b32 v{vC}, 3, v{vLane}"); a(f"v_lshlrev_b32 v{vC}, 3, v{vC}"); a(f"v_add_u32 v{vB_}, v{vB_}, v{vC}")
    a(f"v_and_b32 v{vA}, 1, v{vA}"); a(f"v_lshlrev_b32 v{vA}, 5, v{vA}"); a(f"v_add_u32 v{vB_}, {W_BASE}, v{vB_}")
    a(f"v_add_u32 v{vW1[0]}, v{vB_}, v{vA}"); a(f"v_xor_b32 v{vA}, 32, v{vA}"); a(f"v_add_u32 v{vW1[1]}, v{vB_}, v{vA}")
    if relayout:
        if rl_z1:
            a(f"s_cmp_gt_u32 s{sNJ}, 7"); a(f"s_cselect_b32 s{t1}, 2, 0"); a(f"s_sub_u32 s{t0}, s{sNJ}, s{t1}")
            a(f"s_mul_i32 s{t1}, s{sMI}, 12"); a(f"s_add_u32 s{t0}, s{t0}, s{t1}"); a(f"s_mul_i32 s{t1}, s{sWQ}, 96"); a(f"s_add_u32 s{t0}, s{t0}, s{t1}")
            a(f"s_and_b32 s{t1}, s{sNJ}, 0x16"); a(f"s_cmp_eq_u32 s{t1}, 6"); a(f"s_cselect_b32 s{t0}, 4096, s{t0}")
            a(f"s_cmp_ge_u32 s{sNJ}, 16"); a(f"s_cselect_b32 s{t0}, 4096, s{t0}")
            a(f"s_mov_b32 s{t1}, s{t0}"); a(f"s_mov_b32 s{t2}, 0")
            NEL = 352
        else:
            if rl_skip:
                a(f"s_cmp_gt_u32 s{sNJ}, 7"); a(f"s_cselect_b32 s{t1}, 2, 0"); a(f"s_sub_u32 s{t0}, s{sNJ}, s{t1}")
                a(f"s_cmp_gt_u32 s{sNJ}, 15"); a(f"s_cselect_b32 s{t1}, 2, 0"); a(f"s_sub_u32 s{t0}, s{t0}, s{t1}")
                a(f"s_mul_i32 s{t1}, s{sMI}, 28"); a(f"s_add_u32 s{t0}, s{t0}, s{t1}"); a(f"s_mul_i32 s{t1}, s{sWQ}, 224"); a(f"s_add_u32 s{t0}, s{t0}, s{t1}")
                a(f"s_and_b32 s{t1}, s{sNJ}, 0x16"); a(f"s_cmp_eq_u32 s{t1}, 6"); a(f"s_cselect_b32 s{t0}, 4096, s{t0}")
            else:
                a(f"s_lshl_b32 s{t0}, s{sWQ}, 8"); a(f"s_add_u32 s{t0}, s{t0}, s2")
            a(f"s_lshr_b32 s{t1}, s{t0}, 1")
            a(f"s_and_b32 s{t2}, s{t0}, 1")
            NEL = 704
        a(f"s_cmp_lt_u32 s{t1}, 128")
        a(f"s_cselect_b32 s{SRL}, s{pWO}, s{pWOUT}")
        a(f"s_cselect_b32 s{SRL+1}, s{pWO+1}, s{pWOUT+1}")
        a(f"s_mov_b32 s{t3}, {1792*2048}")
        a(f"s_cselect_b32 s{SRL+2}, {1024*2048}, s{t3}")
        a(f"s_mov_b32 s{SRL+3}, {hex(SRD3)}")
        a(f"s_cselect_b32 s{t3}, 0, 128")
        a(f"s_sub_u32 s{t3}, s{t1}, s{t3}")
        a(f"s_lshl_b32 s{t3}, s{t3}, 14")
        a(f"s_lshl_b32 s{sRLs}, s{t2}, 10"); a(f"s_add_u32 s{sRLs}, s{sRLs}, s{t3}")
        a(f"s_mul_i32 s{sRLd}, s{t2}, {8*44*8192}"); a(f"s_lshl_b32 s{t3}, s{t1}, 10"); a(f"s_add_u32 s{sRLd}, s{sRLd}, s{t3}")
        a(f"s_add_u32 s{sRLd}, s{sRLd}, {WT_OFF}")
        a(f"s_cmp_lt_u32 s{t0}, {NEL}")
        a(f"s_cselect_b32 s{sRLs}, s{sRLs}, {hex(OOB)}")
        a(f"s_cselect_b32 s{sRLd}, s{sRLd}, {hex(OOB)}")
        a(f"v_lshrrev_b32 v{vA}, 3, v{vLane}"); a(f"v_lshrrev_b32 v{vB_}, 1, v{vA}")
        a(f"v_bfe_u32 v{vC}, v{vLane}, 1, 2"); a(f"v_xor_b32 v{vC}, v{vC}, v{vB_}"); a(f"v_lshlrev_b32 v{vC}, 5, v{vC}")
        a(f"v_and_b32 v{vB_}, 1, v{vLane}"); a(f"v_lshlrev_b32 v{vB_}, 4, v{vB_}"); a(f"v_add_u32 v{vC}, v{vC}, v{vB_}")
        a(f"v_lshlrev_b32 v{vA}, 11, v{vA}"); a(f"v_add_u32 v{vRL}, v{vA}, v{vC}")
    def att_second():
        for half in range(2):
            for grp in dmaA(1, half):
                for l in grp: a(l)
        if early3:
            a(f"s_cmp_eq_u32 s{sWQ}, 3"); a(f"s_cbranch_scc0 L_{name}_noe3")
            for (ptr, size, per, div, mul, stride) in ((pQKV, 1024*6144, 24, 6, 10923, 6144), (pWIN, 1024*7168, 28, 7, 9363, 7168)):
                srd(a, SRL if not relayout else SD, ptr, 0, size)
                sr_ = SRL if not relayout else SD
                a(f"s_mul_i32 s{t0}, s2, {per}"); a(f"v_add_u32 v{vA}, s{t0}, v{vLane}")
                a(f"v_mul_u32_u24 v{vB_}, {mul}, v{vA}"); a(f"v_lshrrev_b32 v{vB_}, 16, v{vB_}")
                a(f"v_mul_u32_u24 v{vC}, {div}, v{vB_}"); a(f"v_sub_u32 v{vC}, v{vA}, v{vC}")
                a(f"v_mul_u32_u24 v{vB_}, {stride}, v{vB_}"); a(f"v_lshlrev_b32 v{vC}, 10, v{vC}"); a(f"v_add_u32 v{vB_}, v{vB_}, v{vC}"); a(f"v_add_u32 v{vB_}, 384, v{vB_}")
                a(f"v_cmp_gt_u32 vcc, {per}, v{vLane}"); a(f"v_mov_b32 v{vC}, {hex(OOB)}"); a(f"v_cndmask_b32 v{vB_}, v{vC}, v{vB_}, vcc")
                a(f"buffer_load_dword v{vDum}, v{vB_}, s[{sr_}:{sr_+3}], 0 offen")
            a.label(f"L_{name}_noe3")
    def wphi_ops():
        vmA.issue("wphi")
        return [f"s_mov_b32 s{SD}, s{pPHI}", f"s_mov_b32 s{SD+1}, s{pPHI+1}", f"s_mov_b32 s{SD+2}, 65536", f"s_mov_b32 s{SD+3}, {hex(SRD3)}",
                f"s_and_b32 s{t0}, s{sWQ}, 1", f"s_lshl_b32 s{t0}, s{t0}, 10", f"s_lshl_b32 s{t1}, s{sH}, 11", f"s_add_u32 s{t1}, s{t1}, s{t0}",
                f"s_add_u32 m0, s{t0}, {WPHI}", "s_nop 0", f"buffer_load_dwordx4 v{vRLd}, s[{SD}:{SD+3}], s{t1} offen lds"]
    a(f"s_branch L_{name}_amain")

    a.label(f"L_{name}_gsetup")
    a(f"v_lshrrev_b32 v{vA}, 2, v{vLane}")
    a(f"v_and_b32 v{vB_}, 3, v{vA}")
    a(f"v_lshrrev_b32 v{vC}, 2, v{vA}")
    a(f"v_and_b32 v{vD}, 3, v{vLane}")
    a(f"s_mul_i32 s{t3}, s{sNJ}, 224"); a(f"s_lshl_b32 s{t2}, s{sODD}, 5"); a(f"s_sub_u32 s{t3}, s{t3}, s{t2}")
    def w2src(dst, kq_s):
        a(f"s_lshl_b32 s{t0}, s{kq_s}, 2")
        a(f"v_add_u32 v{dst}, s{t0}, v{vB_}"); a(f"v_mul_u32_u24 v{dst}, 7168, v{dst}")
        a(f"s_and_b32 s{t0}, s{kq_s}, 2")
        a(f"v_xor_b32 v{vDum}, s{t0}, v{vD}"); a(f"v_lshlrev_b32 v{vDum}, 4, v{vDum}"); a(f"v_add_u32 v{dst}, v{dst}, v{vDum}")
        a(f"v_lshlrev_b32 v{vDum}, 6, v{vC}"); a(f"v_add_u32 v{dst}, v{dst}, v{vDum}")
        a(f"v_add_u32 v{dst}, s{t3}, v{dst}")
    a(f"s_cmp_ge_u32 s{sWQ}, 2")
    a(f"s_cbranch_scc1 L_{name}_g23")
    a(f"s_mov_b32 s{sIncD}, {32*6144}")
    for j in range(3):
        a(f"s_mul_i32 s{t0}, s{sWQ}, 12"); a(f"s_add_u32 s{t0}, s{t0}, {4*j}")
        a(f"v_add_u32 v{vDs[j]}, s{t0}, v{vC}")
        a(f"v_mul_u32_u24 v{vDum}, 11, v{vDs[j]}"); a(f"v_lshrrev_b32 v{vDum}, 5, v{vDum}")
        a(f"v_mul_u32_u24 v{vT}, 3, v{vDum}"); a(f"v_sub_u32 v{vT}, v{vDs[j]}, v{vT}")
        a(f"v_cmp_eq_u32 vcc, 0, v{vT}")
        a(f"v_lshlrev_b32 v{vT}, 11, v{vT}")
        a(f"v_and_b32 v{vDs[j]}, 2, v{vDum}"); a(f"v_xor_b32 v{vDs[j]}, v{vDs[j]}, v{vD}"); a(f"v_lshlrev_b32 v{vDs[j]}, 4, v{vDs[j]}")
        a(f"v_add_u32 v{vT}, v{vT}, v{vDs[j]}")
        a(f"v_lshlrev_b32 v{vDum}, 2, v{vDum}"); a(f"v_add_u32 v{vDum}, v{vDum}, v{vB_}"); a(f"v_mul_u32_u24 v{vDum}, 6144, v{vDum}")
        a(f"v_add_u32 v{vT}, v{vT}, v{vDum}")
        a(f"s_lshl_b32 s{t0}, s{sH}, 6"); a(f"s_lshl_b32 s{t1}, s{sHq}, 6"); a(f"v_mov_b32 v{vDum}, s{t0}"); a(f"v_mov_b32 v{vDs[j]}, s{t1}")
        a(f"v_cndmask_b32 v{vDum}, v{vDum}, v{vDs[j]}, vcc"); a(f"v_add_u32 v{vDs[j]}, v{vDum}, v{vT}")
        a(f"s_mul_i32 s{t0}, s{sWQ}, 3072"); a(f"s_add_u32 s{sMs[j]}, s{t0}, {W_BASE + j*1024}")
    a(f"s_mov_b32 s{t1}, s{sWQ}"); w2src(vDs[3], t1)
    a(f"s_lshl_b32 s{t0}, s{sWQ}, 10"); a(f"s_add_u32 s{sMs[3]}, s{t0}, {W_BASE + 6144}")
    a("s_waitcnt lgkmcnt(0)")
    srd(a, SD, pQKV, 0, 1024*6144)
    a(f"s_branch L_{name}_g23done")
    a.label(f"L_{name}_g23")
    a(f"s_mov_b32 s{sIncD}, {32*7168}")
    for j in range(3):
        a(f"s_mul_i32 s{t1}, s{sWQ}, 3"); a(f"s_add_u32 s{t1}, s{t1}, {j}"); a(f"s_sub_u32 s{t1}, s{t1}, 4")
        w2src(vDs[j], t1)
        a(f"s_lshl_b32 s{t0}, s{t1}, 10"); a(f"s_add_u32 s{sMs[j]}, s{t0}, {W_BASE + 6144}")
    a(f"v_mov_b32 v{vDs[3]}, {hex(OOB)}")
    a(f"s_mov_b32 s{sMs[3]}, {DUMMY}")
    a("s_waitcnt lgkmcnt(0)")
    srd(a, SD, pWIN, 0, 1024*7168)
    a.label(f"L_{name}_g23done")
    P.stamp(3, "pro")
    srd(a, SD3, pWIN, 0, 1024*7168)
    a(f"s_cmp_ge_u32 s{sWQ}, 2"); a(f"s_cselect_b32 s{sM0d}, 0, {W_SLOT}")
    a(f"s_mov_b32 s{sKD}, 0"); a(f"s_mov_b32 s{sKD3}, 0")
    def dmaW(tile):
        out = []
        for j in range(4):
            vmG.issue(("W", tile, j))
            slot = tile % NW
            if j < 3:
                out.append([f"s_add_u32 m0, s{sMs[j]}, {slot*W_SLOT}",
                            f"buffer_load_dwordx4 v{vDs[j]}, s[{SD}:{SD+3}], s{sKD} offen {dfl} lds"])
            else:
                out.append([f"s_mul_i32 s{t0}, s{sM0d}, {slot}", f"s_add_u32 m0, s{sMs[3]}, s{t0}",
                            f"buffer_load_dwordx4 v{vDs[3]}, s[{SD3}:{SD3+3}], s{sKD3} offen {dfl} lds",
                            f"s_add_u32 s{sKD}, s{sKD}, s{sIncD}", f"s_add_u32 s{sKD3}, s{sKD3}, {32*7168}"])
        return out
    srd(a, SWS, pWS, 0, WS_USED)
    a(f"s_lshl_b32 s{t0}, s{sMI}, 4"); a(f"s_add_u32 s{t0}, s{t0}, s{sNJ}"); a(f"s_sub_u32 s{t0}, s{t0}, 16"); a(f"s_lshl_b32 s{t0}, s{t0}, 11")
    a(f"s_lshl_b32 s{t1}, s{sWQ}, 9"); a(f"s_add_u32 s{t0}, s{t0}, s{t1}"); a(f"s_add_u32 s{sSt}, s{t0}, {STAT_OFF}")
    a(f"s_cmp_lt_u32 s{sNJ}, 16"); a(f"s_cselect_b32 s{sSt}, {hex(OOB)}, s{sSt}")
    a(f"v_mov_b32 v{GV}, 0"); a(f"v_mov_b32 v{GV+1}, -1.0"); a(f"v_lshlrev_b32 v{GV+2}, 3, v{vLane}")
    a(f"buffer_store_dwordx2 v[{GV}:{GV+1}], v{GV+2}, s[{SWS}:{SWS+3}], s{sSt} offen sc1")
    vmG.issue("mark")
    if codewarm:
        a(f"s_cmp_eq_u32 s{sW}, 7")
        a(f"s_cbranch_scc0 L_{name}_nocw")
        a(f"s_getpc_b64 s[{t2}:{t3}]")
        a.label(f"L_{name}_pc")
        a(f"s_lshr_b32 s{t0}, s2, 3"); a(f"s_lshl_b32 s{t0}, s{t0}, 4")
        a(f"v_and_b32 v{GV+4}, 15, v{vLane}"); a(f"v_add_u32 v{GV+4}, s{t0}, v{GV+4}"); a(f"v_lshlrev_b32 v{GV+4}, 7, v{GV+4}")
        a(f"v_mov_b32 v{GV+7}, s{t3}"); a(f"v_add_co_u32 v{GV+6}, vcc, s{t2}, v{GV+4}"); a(f"v_addc_co_u32 v{GV+7}, vcc, 0, v{GV+7}, vcc")
        a(f"s_mov_b32 s{t0}, L_text_end-L_{name}_pc")
        a(f"v_cmp_gt_u32 vcc, s{t0}, v{GV+4}")
        a(f"s_and_saveexec_b64 s[{t2}:{t3}], vcc")
        a(f"s_cbranch_execz L_{name}_cwx")
        a(f"global_load_dword v{GV+5}, v[{GV+6}:{GV+7}], off")
        a.label(f"L_{name}_cwx")
        a(f"s_mov_b64 exec, s[{t2}:{t3}]")
        a.label(f"L_{name}_nocw")
    a("s_barrier")
    for grp in dmaW(0):
        for l in grp: a(l)
    P.stamp(4, "pro")
    gm_w1 = True
    common_late()
    srd(a, SX, pX, 0, 2048*2048)
    a(f"v_lshrrev_b32 v{vA}, 4, v{vLane}"); a(f"v_lshlrev_b32 v{vB_}, 11, v{vA}")
    a(f"v_bfe_u32 v{vC}, v{vLane}, 2, 2"); a(f"v_lshlrev_b32 v{vC}, 6, v{vC}"); a(f"v_add_u32 v{vB_}, v{vB_}, v{vC}")
    a(f"v_and_b32 v{vC}, 3, v{vLane}"); a(f"v_lshlrev_b32 v{vC}, 3, v{vC}"); a(f"v_add_u32 v{vB_}, v{vB_}, v{vC}")
    a(f"v_add_u32 v{vB_}, {W_BASE + 6144}, v{vB_}")
    a(f"v_and_b32 v{vA}, 1, v{vA}"); a(f"v_xor_b32 v{vA}, s{sODD}, v{vA}"); a(f"v_lshlrev_b32 v{vA}, 5, v{vA}")
    a(f"v_add_u32 v{vW2[0]}, v{vB_}, v{vA}"); a(f"v_xor_b32 v{vA}, 32, v{vA}"); a(f"v_add_u32 v{vW2[1]}, v{vB_}, v{vA}")
    a(f"s_lshl_b32 s{t0}, s{sODD}, 8"); a(f"v_add_u32 v{vW2[1]}, s{t0}, v{vW2[1]}")
    a(f"s_branch L_{name}_gmain")

    def gate_loads(vm):
        ops = [f"s_lshl_b32 s{t0}, s{sMI}, 8", f"s_lshl_b32 s{t1}, s{sNJ}, 3", f"s_add_u32 s{t0}, s{t0}, s{t1}", f"s_add_u32 s{t0}, s{t0}, s{sW}",
               f"s_lshl_b32 s{sTo}, s{t0}, 2", f"s_add_u32 s{sTo}, s{sTo}, {GATE_OFF}", f"s_lshl_b32 s{t0}, s{t0}, 11",
               f"s_mov_b32 s{ST}, s{pGATE}", f"s_mov_b32 s{ST+1}, s{pGATE+1}", f"s_mov_b32 s{ST+2}, 2048", f"s_mov_b32 s{ST+3}, {hex(SRD3)}"]
        ld = [f"buffer_load_dwordx4 v[{GV}:{GV+3}], v{vRLd}, s[{SX}:{SX+3}], s{t0} offen",
              f"buffer_load_dwordx4 v[{GV+4}:{GV+7}], v{vRLd}, s[{SX}:{SX+3}], s{t0} offen offset:1024",
              f"buffer_load_dwordx4 v[{GV+8}:{GV+11}], v{vRLd}, s[{ST}:{ST+3}], 0 offen",
              f"buffer_load_dwordx4 v[{GV+12}:{GV+15}], v{vRLd}, s[{ST}:{ST+3}], 0 offen offset:1024"]
        for q in range(4): vm.issue(("gate", q))
        return ops + ld
    def gate_compute():
        T = GV + 16
        o = [f"v_mov_b32 v{T+2}, 0", f"v_mov_b32 v{T+3}, 0"]
        for q in range(8):
            xr, gr = GV + q, GV + 8 + q
            o += [f"v_lshlrev_b32 v{T}, 16, v{xr}", f"v_and_b32 v{T+1}, 0xffff0000, v{xr}",
                  f"v_lshlrev_b32 v{T+4}, 16, v{gr}", f"v_and_b32 v{T+5}, 0xffff0000, v{gr}",
                  f"v_fma_f32 v{T+2}, v{T}, v{T+4}, v{T+2}", f"v_fma_f32 v{T+3}, v{T+1}, v{T+5}, v{T+3}"]
        o.append(f"v_add_f32 v{T}, v{T+2}, v{T+3}")
        for sh in (8, 4, 2, 1):
            o.append(f"v_add_f32_dpp v{T}, v{T}, v{T} row_ror:{sh} row_mask:0xf bank_mask:0xf")
        o += [f"v_mov_b32 v{T+1}, v{T}", f"v_permlane16_swap_b32 v{T}, v{T+1}", f"v_add_f32 v{T}, v{T}, v{T+1}",
              f"v_mov_b32 v{T+1}, v{T}", f"v_permlane32_swap_b32 v{T}, v{T+1}", f"v_add_f32 v{T}, v{T}, v{T+1}",
              f"v_mul_f32 v{T}, {f2h(-LOG2E)}, v{T}", f"v_exp_f32 v{T}, v{T}", f"v_add_f32 v{T}, 1.0, v{T}", f"v_rcp_f32 v{T}, v{T}",
              f"v_lshlrev_b32 v{T+1}, 2, v{vLane}", f"v_cmp_eq_u32 vcc, 0, v{vLane}", f"v_mov_b32 v{T+2}, {hex(OOB)}", f"v_cndmask_b32 v{T+1}, v{T+2}, v{T+1}, vcc"]
        return o, f"buffer_store_dword v{T}, v{T+1}, s[{SWS}:{SWS+3}], s{sTo} offen"

    def xreads(step):
        tile = step >> 1; kh = step & 1; slot = tile % NA
        base = XF + (step % 2)*16
        hi = 1 if slot == 2 else 0; off = 0 if slot == 2 else slot*A_SLOT
        return [f"ds_read_b128 v[{base+4*tb}:{base+4*tb+3}], v{vX[hi][kh]} offset:{off + tb*2048}" for tb in range(4)]
    def main_loop(role):
        att = role == "A"
        vm = vmA if att else vmG
        nb = 6 if att else 7
        ACC = ACC_A if att else ACC_G
        WSET = 4*nb
        def wreads(step):
            base = WF + (step % 2)*WSET; slot = step % NW; out = []
            for i in range(nb):
                for sec in range(2):
                    r = base + 4*i + 2*sec
                    if att: out.append(f"ds_read_b64_tr_b16 v[{r}:{r+1}], v{vW1[i & 1]} offset:{slot*W_SLOT + sec*768 + (i >> 1)*256}")
                    else:   out.append(f"ds_read_b64_tr_b16 v[{r}:{r+1}], v{vW2[i & 1]} offset:{slot*W_SLOT + sec*1024 + (i >> 1)*256}")
            return out
        def mfmas(step):
            xb = XF + (step % 2)*16; wb = WF + (step % 2)*WSET; out = []
            for i in range(nb):
                for tb in (range(4) if i % 2 == 0 else range(3, -1, -1)):
                    c = ACC + (i*4+tb)*4
                    w_, x_ = f"v[{wb+4*i}:{wb+4*i+3}]", f"v[{xb+4*tb}:{xb+4*tb+3}]"
                    if att and i >= 4: w_, x_ = x_, w_
                    out.append(f"v_mfma_f32_16x16x32_bf16 v[{c}:{c+3}], {w_}, {x_}, v[{c}:{c+3}]")
            return out
        for i in range(nb*16): a(f"v_mov_b32 v{ACC+i}, 0")
        if not att:
            for grp in dmaW(1):
                for l in grp: a(l)
        need = [("A", 0, e) for e in range(8)] if att else [("W", 0, j) for j in range(4)]
        a(f"s_waitcnt vmcnt({vm.need(need)}) lgkmcnt(0)")
        a("s_barrier")
        for l in xreads(0) + wreads(0): a(l)
        if att:
            att_second()
            a("s_waitcnt lgkmcnt(0)")
        else:
            for grp in dmaW(2):
                for l in grp: a(l)
            a(f"s_waitcnt vmcnt({max(vm.need([('W', 1, j) for j in range(4)]), 0)}) lgkmcnt(0)")
        a("s_barrier")
        P.stamp(1)
        if lprio == role: a("s_setprio 1")
        steps = []; pend_rl = []
        gcomp, gstore = gate_compute()
        GL, GS0, GS1 = 26, 28, 31
        L0 = 2
        for s in range(NS):
            m = mfmas(s); nm = len(m)
            rd = (xreads(s+1) + wreads(s+1)) if s + 1 < NS else []
            dm = []
            if s == GS0: gate_wait = vm.need([("gate", 3)])
            if att:
                t2_ = ((s + 1) >> 1) + 2; half = (s + 1) & 1
                if s == 0: dm += dmaA(2, 0)
                if t2_ < NS // 2: dm += dmaA(t2_, half)
                if s == 1: dm.append(wphi_ops())
                cold = []
                if burst and bmode == 4:
                    inloop = L0 <= s < L0 + 24
                    r = (s - L0) % 12
                    if touch and s == 0: cold += sum([touch_ops(vm, ("T", q)) for q in (2, 3, 4)], [])
                    if inloop and r % 4 == 0:
                        bidx = r // 4
                        if touch: cold += sum([touch_ops(vm, ("T", s, q)) for q in range(2)], [])
                        if relayout:
                            cur = []
                            for bi in range(2 if bidx == 0 else 1):
                                b = vRLb + 4*bi; tag = ("RL", s, bi); vm.issue(tag); cur.append((tag, b))
                                cold += [f"buffer_load_dwordx4 v[{b}:{b+3}], v{vRL}, s[{SRL}:{SRL+3}], s{sRLs} offen {rfl}", f"s_add_u32 s{sRLs}, s{sRLs}, 128"]
                            pend_rl.append(cur)
                    if relayout and inloop and r % 4 == 3:
                        prev = pend_rl.pop(0)
                        n = vm.need([prev[-1][0]])
                        cold.append(f"s_waitcnt vmcnt({n})")
                        for tag, b in prev:
                            vm.issue(("RS", tag))
                            cold += [f"buffer_store_dwordx4 v[{b}:{b+3}], v{vRLd}, s[{SWS}:{SWS+3}], s{sRLd} offen {st}", f"s_add_u32 s{sRLd}, s{sRLd}, {44*8192}"]
                elif burst:
                    if touch and s == 0: cold += sum([touch_ops(vm, ("T", q)) for q in (2, 3, 4)], [])
                    if touch and L0 <= s < L0 + 24 and (s - L0) % U == 1: cold += sum([touch_ops(vm, ("T", s, q)) for q in range(3)], [])
                    if relayout and L0 <= s < L0 + 24:
                        r6 = (s - L0) % U
                        if r6 == 1:
                            for bi in range(2):
                                b = vRLb + 4*bi
                                vm.issue(("RL", s, bi))
                                cold += [f"buffer_load_dwordx4 v[{b}:{b+3}], v{vRL}, s[{SRL}:{SRL+3}], s{sRLs} offen", f"s_add_u32 s{sRLs}, s{sRLs}, 128"]
                        if r6 == 5:
                            n = vm.need([("RL", s - 4, 1)])
                            cold.append(f"s_waitcnt vmcnt({n})")
                            for bi in range(2):
                                b = vRLb + 4*bi
                                vm.issue(("RS", s, bi))
                                cold += [f"buffer_store_dwordx4 v[{b}:{b+3}], v{vRLd}, s[{SWS}:{SWS+3}], s{sRLd} offen {st}", f"s_add_u32 s{sRLd}, s{sRLd}, {44*8192}"]
                    pass
                if burst:
                    if cold: dm.append(cold)
                else:
                    if touch and s < 2:
                        for q in range(2 + s*((PT-1)//2), min(PT, 2 + (s+1)*((PT-1)//2)) if s == 0 else PT): dm.append(touch_ops(vm, ("T", q)))
                    if touch and s % 2 == 0 and s < L0 + 24: dm.append(touch_ops(vm, ("T", s // 2 + PT)))
                    if relayout and L0 <= s < L0 + 24:
                        r6 = (s - L0) % 6
                        npc = 2 if rl_z1 else 1
                        bufs_ = lambda slot: [(vRLb + 4*slot) if (npc == 1) else (208 + 8*slot + 4*q) for q in range(npc)]
                        if r6 in (0, 2):
                            g_ = []
                            for b in bufs_(r6 // 2):
                                vm.issue(("RL", s, b))
                                g_ += [f"buffer_load_dwordx4 v[{b}:{b+3}], v{vRL}, s[{SRL}:{SRL+3}], s{sRLs} offen {rfl}", f"s_add_u32 s{sRLs}, s{sRLs}, 128"]
                            dm.append(g_)
                        if r6 in (4, 5):
                            src = s - 4 if r6 == 4 else s - 3
                            bs = bufs_(0 if r6 == 4 else 1)
                            n = vm.need([("RL", src, bs[-1])])
                            g_ = [f"s_waitcnt vmcnt({n})"]
                            for b in bs:
                                vm.issue(("RS", s, b))
                                g_ += [f"buffer_store_dwordx4 v[{b}:{b+3}], v{vRLd}, s[{SWS}:{SWS+3}], s{sRLd} offen {st}", f"s_add_u32 s{sRLd}, s{sRLd}, {44*8192}"]
                            dm.append(g_)
            else:
                if NW == 4 and s == 0: dm += dmaW(3)
                if s + NW < NS: dm += dmaW(s + NW)
            if att and wsp_tail and s == wsp_tail:
                vm.issue("wsp")
                if wsplit:
                    dm.append([f"s_mov_b32 s{SRL}, s{pWSP}", f"s_mov_b32 s{SRL+1}, s{pWSP+1}", f"s_mov_b32 s{SRL+2}, {2048*4096}", f"s_mov_b32 s{SRL+3}, {hex(SRD3)}",
                               f"s_lshl_b32 s{t0}, s2, 15", f"s_lshl_b32 s{t1}, s{sWQ}, 13", f"s_add_u32 s{t0}, s{t0}, s{t1}", f"s_add_u32 s{t0}, s{t0}, 2048",
                               f"v_lshrrev_b32 v{vRL}, 4, v{vLane}", f"v_lshlrev_b32 v{vRL}, 12, v{vRL}", f"v_and_b32 v{vDum}, 15, v{vLane}", f"v_lshlrev_b32 v{vDum}, 7, v{vDum}",
                               f"v_add_u32 v{vRL}, v{vRL}, v{vDum}", f"v_cmp_gt_u32 vcc, 32, v{vLane}", f"v_mov_b32 v{vDum}, {hex(OOB)}", f"v_cndmask_b32 v{vRL}, v{vDum}, v{vRL}, vcc",
                               f"buffer_load_dword v{vDum}, v{vRL}, s[{SRL}:{SRL+3}], s{t0} offen"])
                else:
                    dm.append([f"s_mov_b32 s{SRL}, s{pWSP}", f"s_mov_b32 s{SRL+1}, s{pWSP+1}", f"s_mov_b32 s{SRL+2}, {2048*4096}", f"s_mov_b32 s{SRL+3}, {hex(SRD3)}",
                               ] + (
                               [f"s_and_b32 s{t0}, s2, 7", f"s_lshr_b32 s{t2}, s{t0}, 1", f"s_lshl_b32 s{t2}, s{t2}, 21", f"s_lshr_b32 s{t3}, s2, 3"] +
                               ([f"s_and_b32 s{t0}, s{t0}, 1", f"s_lshl_b32 s{t0}, s{t0}, 5", f"s_add_u32 s{t3}, s{t3}, s{t0}", f"s_lshl_b32 s{t3}, s{t3}, 15", f"s_lshl_b32 s{t1}, s{sWQ}, 13"] if wsp_aff == 1 else
                                [f"s_lshl_b32 s{t3}, s{t3}, 16", f"s_lshl_b32 s{t1}, s{sWQ}, 14"]) +
                               [f"s_add_u32 s{t0}, s{t2}, s{t3}", f"s_add_u32 s{t0}, s{t0}, s{t1}"]
                               if wsp_aff else
                               [f"s_lshl_b32 s{t0}, s2, 15", f"s_lshl_b32 s{t1}, s{sWQ}, 13", f"s_add_u32 s{t0}, s{t0}, s{t1}"]) + [
                               f"v_lshlrev_b32 v{vRL}, 7, v{vLane}", f"buffer_load_dword v{vDum}, v{vRL}, s[{SRL}:{SRL+3}], s{t0} offen"] +
                               ([f"s_add_u32 s{t0}, s{t0}, 8192", f"buffer_load_dword v{vDum}, v{vRL}, s[{SRL}:{SRL+3}], s{t0} offen"] if wsp_aff == 2 else []))
                    if wsp_aff == 2: vm.issue("wsp2")
            if s == GL: dm.append(gate_loads(vm))
            slots = [[] for _ in range(nm)]
            for k, x in enumerate(rd): slots[min(nm-1, (k*(nm-5))//len(rd))].append(x)
            last_pos = -9
            for k, g in enumerate(dm):
                if dpos == "late" and 2*len(dm) + 2 <= nm: pos = nm - 2*len(dm) + 2*k
                elif dpos == "mid" and 3*len(dm) + 2 <= nm: pos = nm - 3*len(dm) + 3*k
                else: pos = min(nm-1, 1 + (k*(nm-3))//max(len(dm), 1))
                assert pos - last_pos >= 2, (role, s, k, len(dm)); last_pos = pos
                if g[0].startswith("s_add_u32 m0") or g[0].startswith("s_mul_i32"):
                    n0 = 2 if g[0].startswith("s_mul_i32") else 1
                    slots[pos-1].extend(g[:n0]); slots[pos] = g[n0:] + slots[pos]
                else: slots[pos].extend(g)
            if GS0 <= s < GS1:
                per = -(-len(gcomp)//(GS1 - GS0)); part = gcomp[(s-GS0)*per:(s-GS0+1)*per]
                if s == GS0: slots[0].append(f"s_waitcnt vmcnt({gate_wait})")
                for k, x in enumerate(part): slots[min(nm-1, 1 + (k*(nm-2))//len(part))].append(x)
            if not att and s == 29: assert vm.need([("W", 31, 3)]) == 0
            if not att and s == 30:
                slots[0] += [f"s_cmp_eq_u32 s{sWQ}, 0", f"s_cselect_b32 s{t0}, s{sNJ}, 0", f"s_cmp_ge_u32 s{t0}, 16", f"s_cbranch_scc0 L_{name}_noc1",
                             f"s_mov_b32 s{ST}, s{pDBG}", f"s_mov_b32 s{ST+1}, s{pDBG+1}", f"s_mov_b32 s{ST+2}, 256", f"s_mov_b32 s{ST+3}, {hex(SRD3)}",
                             f"s_lshl_b32 s{t1}, s{sMI}, 5", f"v_mov_b32 v{vA}, 0", f"v_mov_b32 v{vB_}, 1",
                             f"s_mov_b64 s[{t2}:{t3}], exec", "s_mov_b64 exec, 1",
                             f"buffer_atomic_add v{vB_}, v{vA}, s[{ST}:{ST+3}], s{t1} offen sc1",
                             f"s_mov_b64 exec, s[{t2}:{t3}]", f"L_{name}_noc1:"]
            if s == GS1:
                vm.issue("gst"); slots[2].append(gstore)
            seq = []
            for k in range(nm):
                seq.append(m[k]); seq += slots[k]
            need = []
            if s + 2 < NS:
                if att: need = [("A", (s+2) >> 1, e) for e in range(8)]
                else: need = [("W", s+2, j) for j in range(4)]
            if s + 1 < NS:
                w = f"s_waitcnt lgkmcnt(0)" if not need else f"s_waitcnt vmcnt({vm.need(need)}) lgkmcnt(0)"
                seq.append(w); seq.append("s_barrier")
            steps.append(seq)
        n_iter = 24 // U
        for s in range(L0):
            for l in steps[s]: a(l)
        fold_loop(a, steps, L0, n_iter, U, f"L_{name}_loop{role}", sIT)
        for s in range(L0 + n_iter*U, NS):
            for l in steps[s]: a(l)
    a.label(f"L_{name}_amain")
    main_loop("A")
    if lprio == "A": a("s_setprio 0")
    P.stamp(2)
    epilogue_att(a, locals())
    a(f"s_branch L_{name}_fin")
    a.label(f"L_{name}_gmain")
    main_loop("G")
    if lprio == "G": a("s_setprio 0")
    P.stamp(2)
    epilogue_gmlp(a, locals())
    a.label(f"L_{name}_fin")
    if prof: a("s_waitcnt vmcnt(0)")
    P.stamp(5)
    P.dump(vLane, sW)
    if wsp_epi:
        srd(a, ST, pWSP, 0, 2048*4096)
        a(f"s_lshl_b32 s{t0}, s{sMI}, 4"); a(f"s_add_u32 s{t0}, s{t0}, s{sNJ}"); a(f"s_lshl_b32 s{t0}, s{t0}, 16")
        a(f"s_lshl_b32 s{t1}, s{sW}, 13"); a(f"s_add_u32 s{t0}, s{t0}, s{t1}")
        a(f"s_cmp_lt_u32 s{sNJ}, 16"); a(f"s_cselect_b32 s{t0}, s{t0}, {hex(OOB)}")
        a(f"v_lshlrev_b32 v{vA}, 7, v{vLane}")
        a(f"buffer_load_dword v{vDum}, v{vA}, s[{ST}:{ST+3}], s{t0} offen")
    a.label(f"L_{name}_end")
    a("s_endpgm")
    return kernel_text(name, a, nv=256, ns=102, ao=256), S1_LDS

from s1_epi import epilogue_att, epilogue_gmlp
```

```python
from asmlib import *
from common import *
import struct
LOG2E = 1.4426950408889634
def f2h(x): return hex(struct.unpack("<I", struct.pack("<f", x))[0])

A_SLOT = 32768; NA = 3
W_BASE = NA*A_SLOT; W_SLOT = 14336
WPHI   = W_BASE + 4*W_SLOT
DUMMY  = WPHI + 2048
MISC   = DUMMY + 1024
S1_LDS = MISC + 256
PHI_SCR = 0
KV_SCR  = 32768
OOB = 0x40000000

def gen_s1(name="s1_kernel", prof=False, st="sc1", touch=True, relayout=True, wsp=False, wsp_epi=False, wsp_tail=29, PT=4, prio=True, pmode="epi", dedupe=True, burst=False, tfl="", dfl="", rfl="", norm="pair", NW=4, bmode=6, first_gather=True, codewarm=1, wsplit=False, selective=True, early3=False, wsp_aff=1, defer_gelu=False, dpos="spread", rl_skip=True, ninit=2, lprio="", rl_z1=True, tmask=7):
    a = Asm()
    P = Prof(a, prof); P.mode = pmode
    NS = 32
    U = 12 if NW == 4 else 6
    pX, pQKV, pPHI, pWO = 4, 6, 8, 10
    pWIN, pWSP = 12, 14
    pWOUT, pGATE = 16, 18
    pDBG, pWS = 20, 22
    SX, SD, SD3, SWS = 24, 28, 32, 36
    ST, SRL = 40, 44
    sW, sWQ, sMI, sNJ, sODD = 48, 49, 50, 51, 52
    sKA, sKD, sKD3, sIncD = 53, 54, 55, 56
    sM0, sM0d = 57, 58
    sMs = [59, 60, 61, 62]
    sTo, sTinc = 63, 64
    sRLs, sRLd = 65, 66
    sIT = 67
    t0, t1, t2, t3 = 68, 69, 70, 71
    sC = 72
    sH, sHq = 74, 75
    sSt = 3
    vLane, vA, vB_, vC, vD = 1, 2, 3, 4, 5
    vX = [[6, 7], [8, 9]]
    vDs = [10, 11, 12, 13, 14, 15, 16, 17]
    vW1 = [18, 19]; vW2 = [18, 19]
    vT, vRL, vRLd, vDum = 20, 21, 22, 23
    vRLb = 24
    XF = 32; WF = 64
    ACC_A = 112; ACC_G = 120
    GV = 232

    a("s_cmp_ge_u32 s2, 256")
    a(f"s_cbranch_scc1 L_{name}_end")
    P.stamp(0)
    a(f"s_load_dwordx8 s[4:11], s[0:1], 0")
    a(f"s_load_dwordx4 s[12:15], s[0:1], {KA_WIN}")
    a(f"s_load_dwordx4 s[16:19], s[0:1], {KA_WOUT}")
    a(f"s_load_dwordx4 s[20:23], s[0:1], {KA_DBG}")
    a(f"v_lshrrev_b32 v{vA}, 6, v0")
    a(f"v_and_b32 v{vLane}, 63, v0")
    a(f"v_readfirstlane_b32 s{sW}, v{vA}")
    a(f"s_and_b32 s{t0}, s2, 7")
    a(f"s_lshr_b32 s{t1}, s2, 3")
    a(f"s_and_b32 s{t2}, s{t0}, 1"); a(f"s_lshl_b32 s{t2}, s{t2}, 2"); a(f"s_and_b32 s{t3}, s{t1}, 3")
    a(f"s_add_u32 s{sMI}, s{t2}, s{t3}")
    a(f"s_lshr_b32 s{t1}, s{t1}, 2")
    a(f"s_lshr_b32 s{t0}, s{t0}, 1"); a(f"s_lshl_b32 s{t0}, s{t0}, 2")
    a(f"s_and_b32 s{t2}, s{t1}, 3"); a(f"s_add_u32 s{t0}, s{t0}, s{t2}")
    a(f"s_lshr_b32 s{t2}, s{t1}, 2"); a(f"s_lshl_b32 s{t2}, s{t2}, 4"); a(f"s_add_u32 s{sNJ}, s{t0}, s{t2}")
    a(f"s_and_b32 s{sODD}, s{sNJ}, 1")
    a(f"s_lshr_b32 s{t2}, s{sNJ}, 2"); a(f"s_xor_b32 s{sH}, s{sNJ}, 24")
    a(f"s_cmp_eq_u32 s{t2}, 3"); a(f"s_cselect_b32 s{t3}, s{sH}, s{sNJ}")
    a(f"s_cmp_eq_u32 s{t2}, 5"); a(f"s_cselect_b32 s{sH}, s{sH}, s{t3}")
    a(f"s_xor_b32 s{sHq}, s{sH}, 2"); a(f"s_cmp_lt_u32 s{sNJ}, 16"); a(f"s_cselect_b32 s{sHq}, s{sHq}, s{sH}")
    a(f"s_and_b32 s{sWQ}, s{sW}, 3")
    a(f"v_lshlrev_b32 v{vRLd}, 4, v{vLane}")
    vmA = VmTracker(); vmG = VmTracker()
    a(f"s_cmp_ge_u32 s{sW}, 4")
    a(f"s_cbranch_scc1 L_{name}_gsetup")

    def common_late():
        a(f"s_mov_b32 s{sC}, 1.0"); a(f"s_mov_b32 s{sC+1}, 1.0")
        srd(a, SWS, pWS, 0, WS_USED)
        a(f"v_and_b32 v{vA}, 15, v{vLane}")
        a(f"v_lshrrev_b32 v{vB_}, 1, v{vA}")
        a(f"v_lshrrev_b32 v{vC}, 4, v{vLane}")
        a(f"v_xor_b32 v{vB_}, v{vB_}, v{vC}")
        a(f"v_lshlrev_b32 v{vA}, 7, v{vA}")
        a(f"s_lshl_b32 s{t0}, s{sWQ}, 13")
        a(f"v_add_u32 v{vA}, s{t0}, v{vA}")
        a(f"v_lshlrev_b32 v{vC}, 4, v{vB_}")
        a(f"v_add_u32 v{vX[0][0]}, v{vA}, v{vC}")
        a(f"v_xor_b32 v{vX[0][1]}, 64, v{vX[0][0]}")
        a(f"v_add_u32 v{vX[1][0]}, 65536, v{vX[0][0]}")
        a(f"v_add_u32 v{vX[1][1]}, 65536, v{vX[0][1]}")

    a("s_waitcnt lgkmcnt(0)")
    P.stamp(3, "pro")
    a(f"s_lshr_b32 s{t1}, s2, 3"); a(f"s_and_b32 s{t2}, s{t1}, 3"); a(f"s_lshr_b32 s{t1}, s{t1}, 2")
    a(f"s_cmp_eq_u32 s{sWQ}, 0")
    a(f"s_cbranch_scc0 L_{name}_t1")
    srd(a, ST, pX, 0, 2048*2048)
    a(f"s_lshl_b32 s{t0}, s{sMI}, 8"); a(f"s_lshl_b32 s{t3}, s{t1}, 5"); a(f"s_add_u32 s{t0}, s{t0}, s{t3}")
    a(f"v_add_u32 v{vT}, s{t0}, v{vLane}"); a(f"v_lshlrev_b32 v{vT}, 11, v{vT}")
    a(f"v_cmp_gt_u32 vcc, 32, v{vLane}"); a(f"v_mov_b32 v{vA}, {hex(OOB)}"); a(f"v_cndmask_b32 v{vT}, v{vA}, v{vT}, vcc")
    a(f"s_mov_b32 s{sTinc}, 128")
    if not (tmask & 1): a(f"s_mov_b32 s{ST+2}, 0")
    a(f"s_branch L_{name}_tdone")
    a.label(f"L_{name}_t1")
    a(f"v_mul_u32_u24 v{vA}, 43, v{vLane}"); a(f"v_lshrrev_b32 v{vA}, 7, v{vA}")
    a(f"v_mul_u32_u24 v{vB_}, 3, v{vA}"); a(f"v_sub_u32 v{vB_}, v{vLane}, v{vB_}")
    a(f"s_lshl_b32 s{t0}, s{t2}, 4"); a(f"v_add_u32 v{vA}, s{t0}, v{vA}")
    a(f"s_cmp_eq_u32 s{sWQ}, 1")
    a(f"s_cbranch_scc0 L_{name}_t2")
    srd(a, ST, pQKV, 0, 1024*6144)
    if dedupe:
        a(f"s_and_b32 s{t0}, s{sH}, 1"); a(f"s_lshl_b32 s{t0}, s{t0}, 3"); a(f"v_add_u32 v{vA}, s{t0}, v{vA}")
    a(f"v_cmp_eq_u32 vcc, 0, v{vB_}")
    a(f"v_mul_u32_u24 v{vT}, 6144, v{vA}"); a(f"v_lshlrev_b32 v{vB_}, 11, v{vB_}"); a(f"v_add_u32 v{vT}, v{vT}, v{vB_}")
    a(f"s_lshl_b32 s{t0}, s{sH}, 6"); a(f"s_lshl_b32 s{t3}, s{sHq}, 6"); a(f"v_mov_b32 v{vA}, s{t0}"); a(f"v_mov_b32 v{vB_}, s{t3}"); a(f"v_cndmask_b32 v{vA}, v{vA}, v{vB_}, vcc")
    a(f"v_add_u32 v{vT}, v{vA}, v{vT}")
    a(f"v_cmp_gt_u32 vcc, {24 if dedupe else 48}, v{vLane}"); a(f"v_mov_b32 v{vA}, {hex(OOB)}"); a(f"v_cndmask_b32 v{vT}, v{vA}, v{vT}, vcc")
    a(f"s_mov_b32 s{sTinc}, {64*6144}")
    if not (tmask & 2): a(f"s_mov_b32 s{ST+2}, 0")
    a(f"s_branch L_{name}_tdone")
    a.label(f"L_{name}_t2")
    a(f"s_cmp_eq_u32 s{sWQ}, 2")
    a(f"s_cbranch_scc0 L_{name}_t3")
    srd(a, ST, pWIN, 0, 1024*7168)
    a(f"v_mul_u32_u24 v{vT}, 7168, v{vA}"); a(f"v_lshlrev_b32 v{vB_}, 7, v{vB_}"); a(f"v_min_u32 v{vB_}, 252, v{vB_}"); a(f"v_add_u32 v{vT}, v{vT}, v{vB_}")
    a(f"s_mul_i32 s{t0}, s{sNJ}, 224"); a(f"s_lshl_b32 s{t3}, s{sODD}, 5"); a(f"s_sub_u32 s{t0}, s{t0}, s{t3}"); a(f"v_add_u32 v{vT}, s{t0}, v{vT}")
    a(f"v_cmp_gt_u32 vcc, 48, v{vLane}"); a(f"v_mov_b32 v{vA}, {hex(OOB)}"); a(f"v_cndmask_b32 v{vT}, v{vA}, v{vT}, vcc")
    a(f"s_mov_b32 s{sTinc}, {64*7168}")
    if not (tmask & 4): a(f"s_mov_b32 s{ST+2}, 0")
    a(f"s_branch L_{name}_tdone")
    a.label(f"L_{name}_t3")
    srd(a, ST, pWSP, 0, 2048*4096)
    if wsplit:
        a(f"v_lshrrev_b32 v{vT}, 4, v{vLane}"); a(f"v_lshlrev_b32 v{vT}, 12, v{vT}"); a(f"v_and_b32 v{vA}, 15, v{vLane}"); a(f"v_lshlrev_b32 v{vA}, 7, v{vA}")
        a(f"v_add_u32 v{vT}, v{vT}, v{vA}"); a(f"s_lshl_b32 s{t0}, s2, 15"); a(f"v_add_u32 v{vT}, s{t0}, v{vT}")
        a(f"s_mov_b32 s{sTinc}, 16384")
        a(f"s_add_u32 s{ST+2}, s{t0}, 32768")
    else:
        a(f"v_lshlrev_b32 v{vT}, 7, v{vLane}"); a(f"s_lshl_b32 s{t0}, s2, 15"); a(f"v_add_u32 v{vT}, s{t0}, v{vT}")
        a(f"s_mov_b32 s{sTinc}, 8192")
        a(f"s_add_u32 s{ST+2}, s{t0}, 32768") if wsp else a(f"s_mov_b32 s{ST+2}, 0")
    a.label(f"L_{name}_tdone")
    a(f"s_mov_b32 s{sTo}, 0")
    def touch_ops(vm, tag):
        vm.issue(tag)
        return [f"buffer_load_dword v{vDum}, v{vT}, s[{ST}:{ST+3}], s{sTo} offen {tfl}", f"s_add_u32 s{sTo}, s{sTo}, s{sTinc}"]
    a(f"s_cmp_eq_u32 s{sWQ}, 3")
    a(f"s_cbranch_scc1 L_{name}_notouch0")
    if touch:
        for q in range(ninit):
            for l in touch_ops(vmA, ("T", q)): a(l)
    a.label(f"L_{name}_notouch0")
    a(f"v_lshrrev_b32 v{vA}, 3, v{vLane}")
    a(f"s_lshl_b32 s{t0}, s{sMI}, 8"); a(f"s_lshl_b32 s{t1}, s{sWQ}, 6"); a(f"s_add_u32 s{t0}, s{t0}, s{t1}")
    a(f"v_add_u32 v{vA}, s{t0}, v{vA}"); a(f"v_lshlrev_b32 v{vA}, 11, v{vA}")
    a(f"v_and_b32 v{vB_}, 7, v{vLane}"); a(f"v_lshrrev_b32 v{vC}, 4, v{vLane}"); a(f"v_xor_b32 v{vB_}, v{vB_}, v{vC}")
    a(f"v_lshlrev_b32 v{vC}, 4, v{vB_}"); a(f"v_add_u32 v{vDs[0]}, v{vA}, v{vC}")
    a(f"v_xor_b32 v{vC}, 64, v{vC}"); a(f"v_add_u32 v{vDs[1]}, v{vA}, v{vC}"); a(f"v_add_u32 v{vDs[1]}, {8*2048}, v{vDs[1]}")
    for e in range(2, 8): a(f"v_add_u32 v{vDs[e]}, {16*2048}, v{vDs[e-2]}")
    a(f"s_lshl_b32 s{sM0}, s{sWQ}, 13")
    a(f"s_mov_b32 s{sKA}, 0")
    srd(a, SX, pX, 0, 2048*2048)
    def dmaA(tile, half):
        out = []
        for e in range(4*half, 4*half+4):
            vmA.issue(("A", tile, e))
            out.append([f"s_add_u32 m0, s{sM0}, {(tile % NA)*A_SLOT + e*1024}",
                        f"buffer_load_dwordx4 v{vDs[e]}, s[{SX}:{SX+3}], s{sKA} offen {dfl} lds"])
        if half == 1: out[-1].append(f"s_add_u32 s{sKA}, s{sKA}, 128")
        return out
    a("s_barrier")
    for half in range(2):
        for grp in dmaA(0, half):
            for l in grp: a(l)
    if touch and ninit < 2:
        a(f"s_cmp_eq_u32 s{sWQ}, 3"); a(f"s_cbranch_scc1 L_{name}_notouch1")
        for q in range(ninit, 2):
            a(f"buffer_load_dword v{vDum}, v{vT}, s[{ST}:{ST+3}], s{sTo} offen {tfl}"); a(f"s_add_u32 s{sTo}, s{sTo}, s{sTinc}")
        a.label(f"L_{name}_notouch1")
    P.stamp(4, "pro")
    common_late()
    a(f"v_mov_b32 v{vA}, 0"); a(f"v_lshlrev_b32 v{vB_}, 2, v{vLane}"); a(f"v_add_u32 v{vB_}, {MISC}, v{vB_}"); a(f"ds_write_b32 v{vB_}, v{vA}")
    a(f"v_lshrrev_b32 v{vA}, 4, v{vLane}"); a(f"v_mul_u32_u24 v{vB_}, 1536, v{vA}")
    a(f"v_bfe_u32 v{vC}, v{vLane}, 2, 2"); a(f"v_lshlrev_b32 v{vC}, 6, v{vC}"); a(f"v_add_u32 v{vB_}, v{vB_}, v{vC}")
    a(f"v_and_b32 v{vC}, 3, v{vLane}"); a(f"v_lshlrev_b32 v{vC}, 3, v{vC}"); a(f"v_add_u32 v{vB_}, v{vB_}, v{vC}")
    a(f"v_and_b32 v{vA}, 1, v{vA}"); a(f"v_lshlrev_b32 v{vA}, 5, v{vA}"); a(f"v_add_u32 v{vB_}, {W_BASE}, v{vB_}")
    a(f"v_add_u32 v{vW1[0]}, v{vB_}, v{vA}"); a(f"v_xor_b32 v{vA}, 32, v{vA}"); a(f"v_add_u32 v{vW1[1]}, v{vB_}, v{vA}")
    if relayout:
        if rl_z1:
            a(f"s_cmp_gt_u32 s{sNJ}, 7"); a(f"s_cselect_b32 s{t1}, 2, 0"); a(f"s_sub_u32 s{t0}, s{sNJ}, s{t1}")
            a(f"s_mul_i32 s{t1}, s{sMI}, 12"); a(f"s_add_u32 s{t0}, s{t0}, s{t1}"); a(f"s_mul_i32 s{t1}, s{sWQ}, 96"); a(f"s_add_u32 s{t0}, s{t0}, s{t1}")
            a(f"s_and_b32 s{t1}, s{sNJ}, 0x16"); a(f"s_cmp_eq_u32 s{t1}, 6"); a(f"s_cselect_b32 s{t0}, 4096, s{t0}")
            a(f"s_cmp_ge_u32 s{sNJ}, 16"); a(f"s_cselect_b32 s{t0}, 4096, s{t0}")
            a(f"s_mov_b32 s{t1}, s{t0}"); a(f"s_mov_b32 s{t2}, 0")
            NEL = 352
        else:
            if rl_skip:
                a(f"s_cmp_gt_u32 s{sNJ}, 7"); a(f"s_cselect_b32 s{t1}, 2, 0"); a(f"s_sub_u32 s{t0}, s{sNJ}, s{t1}")
                a(f"s_cmp_gt_u32 s{sNJ}, 15"); a(f"s_cselect_b32 s{t1}, 2, 0"); a(f"s_sub_u32 s{t0}, s{t0}, s{t1}")
                a(f"s_mul_i32 s{t1}, s{sMI}, 28"); a(f"s_add_u32 s{t0}, s{t0}, s{t1}"); a(f"s_mul_i32 s{t1}, s{sWQ}, 224"); a(f"s_add_u32 s{t0}, s{t0}, s{t1}")
                a(f"s_and_b32 s{t1}, s{sNJ}, 0x16"); a(f"s_cmp_eq_u32 s{t1}, 6"); a(f"s_cselect_b32 s{t0}, 4096, s{t0}")
            else:
                a(f"s_lshl_b32 s{t0}, s{sWQ}, 8"); a(f"s_add_u32 s{t0}, s{t0}, s2")
            a(f"s_lshr_b32 s{t1}, s{t0}, 1")
            a(f"s_and_b32 s{t2}, s{t0}, 1")
            NEL = 704
        a(f"s_cmp_lt_u32 s{t1}, 128")
        a(f"s_cselect_b32 s{SRL}, s{pWO}, s{pWOUT}")
        a(f"s_cselect_b32 s{SRL+1}, s{pWO+1}, s{pWOUT+1}")
        a(f"s_mov_b32 s{t3}, {1792*2048}")
        a(f"s_cselect_b32 s{SRL+2}, {1024*2048}, s{t3}")
        a(f"s_mov_b32 s{SRL+3}, {hex(SRD3)}")
        a(f"s_cselect_b32 s{t3}, 0, 128")
        a(f"s_sub_u32 s{t3}, s{t1}, s{t3}")
        a(f"s_lshl_b32 s{t3}, s{t3}, 14")
        a(f"s_lshl_b32 s{sRLs}, s{t2}, 10"); a(f"s_add_u32 s{sRLs}, s{sRLs}, s{t3}")
        a(f"s_mul_i32 s{sRLd}, s{t2}, {8*44*8192}"); a(f"s_lshl_b32 s{t3}, s{t1}, 10"); a(f"s_add_u32 s{sRLd}, s{sRLd}, s{t3}")
        a(f"s_add_u32 s{sRLd}, s{sRLd}, {WT_OFF}")
        a(f"s_cmp_lt_u32 s{t0}, {NEL}")
        a(f"s_cselect_b32 s{sRLs}, s{sRLs}, {hex(OOB)}")
        a(f"s_cselect_b32 s{sRLd}, s{sRLd}, {hex(OOB)}")
        a(f"v_lshrrev_b32 v{vA}, 3, v{vLane}"); a(f"v_lshrrev_b32 v{vB_}, 1, v{vA}")
        a(f"v_bfe_u32 v{vC}, v{vLane}, 1, 2"); a(f"v_xor_b32 v{vC}, v{vC}, v{vB_}"); a(f"v_lshlrev_b32 v{vC}, 5, v{vC}")
        a(f"v_and_b32 v{vB_}, 1, v{vLane}"); a(f"v_lshlrev_b32 v{vB_}, 4, v{vB_}"); a(f"v_add_u32 v{vC}, v{vC}, v{vB_}")
        a(f"v_lshlrev_b32 v{vA}, 11, v{vA}"); a(f"v_add_u32 v{vRL}, v{vA}, v{vC}")
    def att_second():
        for half in range(2):
            for grp in dmaA(1, half):
                for l in grp: a(l)
        if early3:
            a(f"s_cmp_eq_u32 s{sWQ}, 3"); a(f"s_cbranch_scc0 L_{name}_noe3")
            for (ptr, size, per, div, mul, stride) in ((pQKV, 1024*6144, 24, 6, 10923, 6144), (pWIN, 1024*7168, 28, 7, 9363, 7168)):
                srd(a, SRL if not relayout else SD, ptr, 0, size)
                sr_ = SRL if not relayout else SD
                a(f"s_mul_i32 s{t0}, s2, {per}"); a(f"v_add_u32 v{vA}, s{t0}, v{vLane}")
                a(f"v_mul_u32_u24 v{vB_}, {mul}, v{vA}"); a(f"v_lshrrev_b32 v{vB_}, 16, v{vB_}")
                a(f"v_mul_u32_u24 v{vC}, {div}, v{vB_}"); a(f"v_sub_u32 v{vC}, v{vA}, v{vC}")
                a(f"v_mul_u32_u24 v{vB_}, {stride}, v{vB_}"); a(f"v_lshlrev_b32 v{vC}, 10, v{vC}"); a(f"v_add_u32 v{vB_}, v{vB_}, v{vC}"); a(f"v_add_u32 v{vB_}, 384, v{vB_}")
                a(f"v_cmp_gt_u32 vcc, {per}, v{vLane}"); a(f"v_mov_b32 v{vC}, {hex(OOB)}"); a(f"v_cndmask_b32 v{vB_}, v{vC}, v{vB_}, vcc")
                a(f"buffer_load_dword v{vDum}, v{vB_}, s[{sr_}:{sr_+3}], 0 offen")
            a.label(f"L_{name}_noe3")
    def wphi_ops():
        vmA.issue("wphi")
        return [f"s_mov_b32 s{SD}, s{pPHI}", f"s_mov_b32 s{SD+1}, s{pPHI+1}", f"s_mov_b32 s{SD+2}, 65536", f"s_mov_b32 s{SD+3}, {hex(SRD3)}",
                f"s_and_b32 s{t0}, s{sWQ}, 1", f"s_lshl_b32 s{t0}, s{t0}, 10", f"s_lshl_b32 s{t1}, s{sH}, 11", f"s_add_u32 s{t1}, s{t1}, s{t0}",
                f"s_add_u32 m0, s{t0}, {WPHI}", "s_nop 0", f"buffer_load_dwordx4 v{vRLd}, s[{SD}:{SD+3}], s{t1} offen lds"]
    a(f"s_branch L_{name}_amain")

    a.label(f"L_{name}_gsetup")
    a(f"v_lshrrev_b32 v{vA}, 2, v{vLane}")
    a(f"v_and_b32 v{vB_}, 3, v{vA}")
    a(f"v_lshrrev_b32 v{vC}, 2, v{vA}")
    a(f"v_and_b32 v{vD}, 3, v{vLane}")
    a(f"s_mul_i32 s{t3}, s{sNJ}, 224"); a(f"s_lshl_b32 s{t2}, s{sODD}, 5"); a(f"s_sub_u32 s{t3}, s{t3}, s{t2}")
    def w2src(dst, kq_s):
        a(f"s_lshl_b32 s{t0}, s{kq_s}, 2")
        a(f"v_add_u32 v{dst}, s{t0}, v{vB_}"); a(f"v_mul_u32_u24 v{dst}, 7168, v{dst}")
        a(f"s_and_b32 s{t0}, s{kq_s}, 2")
        a(f"v_xor_b32 v{vDum}, s{t0}, v{vD}"); a(f"v_lshlrev_b32 v{vDum}, 4, v{vDum}"); a(f"v_add_u32 v{dst}, v{dst}, v{vDum}")
        a(f"v_lshlrev_b32 v{vDum}, 6, v{vC}"); a(f"v_add_u32 v{dst}, v{dst}, v{vDum}")
        a(f"v_add_u32 v{dst}, s{t3}, v{dst}")
    a(f"s_cmp_ge_u32 s{sWQ}, 2")
    a(f"s_cbranch_scc1 L_{name}_g23")
    a(f"s_mov_b32 s{sIncD}, {32*6144}")
    for j in range(3):
        a(f"s_mul_i32 s{t0}, s{sWQ}, 12"); a(f"s_add_u32 s{t0}, s{t0}, {4*j}")
        a(f"v_add_u32 v{vDs[j]}, s{t0}, v{vC}")
        a(f"v_mul_u32_u24 v{vDum}, 11, v{vDs[j]}"); a(f"v_lshrrev_b32 v{vDum}, 5, v{vDum}")
        a(f"v_mul_u32_u24 v{vT}, 3, v{vDum}"); a(f"v_sub_u32 v{vT}, v{vDs[j]}, v{vT}")
        a(f"v_cmp_eq_u32 vcc, 0, v{vT}")
        a(f"v_lshlrev_b32 v{vT}, 11, v{vT}")
        a(f"v_and_b32 v{vDs[j]}, 2, v{vDum}"); a(f"v_xor_b32 v{vDs[j]}, v{vDs[j]}, v{vD}"); a(f"v_lshlrev_b32 v{vDs[j]}, 4, v{vDs[j]}")
        a(f"v_add_u32 v{vT}, v{vT}, v{vDs[j]}")
        a(f"v_lshlrev_b32 v{vDum}, 2, v{vDum}"); a(f"v_add_u32 v{vDum}, v{vDum}, v{vB_}"); a(f"v_mul_u32_u24 v{vDum}, 6144, v{vDum}")
        a(f"v_add_u32 v{vT}, v{vT}, v{vDum}")
        a(f"s_lshl_b32 s{t0}, s{sH}, 6"); a(f"s_lshl_b32 s{t1}, s{sHq}, 6"); a(f"v_mov_b32 v{vDum}, s{t0}"); a(f"v_mov_b32 v{vDs[j]}, s{t1}")
        a(f"v_cndmask_b32 v{vDum}, v{vDum}, v{vDs[j]}, vcc"); a(f"v_add_u32 v{vDs[j]}, v{vDum}, v{vT}")
        a(f"s_mul_i32 s{t0}, s{sWQ}, 3072"); a(f"s_add_u32 s{sMs[j]}, s{t0}, {W_BASE + j*1024}")
    a(f"s_mov_b32 s{t1}, s{sWQ}"); w2src(vDs[3], t1)
    a(f"s_lshl_b32 s{t0}, s{sWQ}, 10"); a(f"s_add_u32 s{sMs[3]}, s{t0}, {W_BASE + 6144}")
    a("s_waitcnt lgkmcnt(0)")
    srd(a, SD, pQKV, 0, 1024*6144)
    a(f"s_branch L_{name}_g23done")
    a.label(f"L_{name}_g23")
    a(f"s_mov_b32 s{sIncD}, {32*7168}")
    for j in range(3):
        a(f"s_mul_i32 s{t1}, s{sWQ}, 3"); a(f"s_add_u32 s{t1}, s{t1}, {j}"); a(f"s_sub_u32 s{t1}, s{t1}, 4")
        w2src(vDs[j], t1)
        a(f"s_lshl_b32 s{t0}, s{t1}, 10"); a(f"s_add_u32 s{sMs[j]}, s{t0}, {W_BASE + 6144}")
    a(f"v_mov_b32 v{vDs[3]}, {hex(OOB)}")
    a(f"s_mov_b32 s{sMs[3]}, {DUMMY}")
    a("s_waitcnt lgkmcnt(0)")
    srd(a, SD, pWIN, 0, 1024*7168)
    a.label(f"L_{name}_g23done")
    P.stamp(3, "pro")
    srd(a, SD3, pWIN, 0, 1024*7168)
    a(f"s_cmp_ge_u32 s{sWQ}, 2"); a(f"s_cselect_b32 s{sM0d}, 0, {W_SLOT}")
    a(f"s_mov_b32 s{sKD}, 0"); a(f"s_mov_b32 s{sKD3}, 0")
    def dmaW(tile):
        out = []
        for j in range(4):
            vmG.issue(("W", tile, j))
            slot = tile % NW
            if j < 3:
                out.append([f"s_add_u32 m0, s{sMs[j]}, {slot*W_SLOT}",
                            f"buffer_load_dwordx4 v{vDs[j]}, s[{SD}:{SD+3}], s{sKD} offen {dfl} lds"])
            else:
                out.append([f"s_mul_i32 s{t0}, s{sM0d}, {slot}", f"s_add_u32 m0, s{sMs[3]}, s{t0}",
                            f"buffer_load_dwordx4 v{vDs[3]}, s[{SD3}:{SD3+3}], s{sKD3} offen {dfl} lds",
                            f"s_add_u32 s{sKD}, s{sKD}, s{sIncD}", f"s_add_u32 s{sKD3}, s{sKD3}, {32*7168}"])
        return out
    srd(a, SWS, pWS, 0, WS_USED)
    a(f"s_lshl_b32 s{t0}, s{sMI}, 4"); a(f"s_add_u32 s{t0}, s{t0}, s{sNJ}"); a(f"s_sub_u32 s{t0}, s{t0}, 16"); a(f"s_lshl_b32 s{t0}, s{t0}, 11")
    a(f"s_lshl_b32 s{t1}, s{sWQ}, 9"); a(f"s_add_u32 s{t0}, s{t0}, s{t1}"); a(f"s_add_u32 s{sSt}, s{t0}, {STAT_OFF}")
    a(f"s_cmp_lt_u32 s{sNJ}, 16"); a(f"s_cselect_b32 s{sSt}, {hex(OOB)}, s{sSt}")
    a(f"v_mov_b32 v{GV}, 0"); a(f"v_mov_b32 v{GV+1}, -1.0"); a(f"v_lshlrev_b32 v{GV+2}, 3, v{vLane}")
    a(f"buffer_store_dwordx2 v[{GV}:{GV+1}], v{GV+2}, s[{SWS}:{SWS+3}], s{sSt} offen sc1")
    vmG.issue("mark")
    if codewarm:
        a(f"s_cmp_eq_u32 s{sW}, 7")
        a(f"s_cbranch_scc0 L_{name}_nocw")
        a(f"s_getpc_b64 s[{t2}:{t3}]")
        a.label(f"L_{name}_pc")
        a(f"s_lshr_b32 s{t0}, s2, 3"); a(f"s_lshl_b32 s{t0}, s{t0}, 4")
        a(f"v_and_b32 v{GV+4}, 15, v{vLane}"); a(f"v_add_u32 v{GV+4}, s{t0}, v{GV+4}"); a(f"v_lshlrev_b32 v{GV+4}, 7, v{GV+4}")
        a(f"v_mov_b32 v{GV+7}, s{t3}"); a(f"v_add_co_u32 v{GV+6}, vcc, s{t2}, v{GV+4}"); a(f"v_addc_co_u32 v{GV+7}, vcc, 0, v{GV+7}, vcc")
        a(f"s_mov_b32 s{t0}, L_text_end-L_{name}_pc")
        a(f"v_cmp_gt_u32 vcc, s{t0}, v{GV+4}")
        a(f"s_and_saveexec_b64 s[{t2}:{t3}], vcc")
        a(f"s_cbranch_execz L_{name}_cwx")
        a(f"global_load_dword v{GV+5}, v[{GV+6}:{GV+7}], off")
        a.label(f"L_{name}_cwx")
        a(f"s_mov_b64 exec, s[{t2}:{t3}]")
        a.label(f"L_{name}_nocw")
    a("s_barrier")
    for grp in dmaW(0):
        for l in grp: a(l)
    P.stamp(4, "pro")
    gm_w1 = True
    common_late()
    srd(a, SX, pX, 0, 2048*2048)
    a(f"v_lshrrev_b32 v{vA}, 4, v{vLane}"); a(f"v_lshlrev_b32 v{vB_}, 11, v{vA}")
    a(f"v_bfe_u32 v{vC}, v{vLane}, 2, 2"); a(f"v_lshlrev_b32 v{vC}, 6, v{vC}"); a(f"v_add_u32 v{vB_}, v{vB_}, v{vC}")
    a(f"v_and_b32 v{vC}, 3, v{vLane}"); a(f"v_lshlrev_b32 v{vC}, 3, v{vC}"); a(f"v_add_u32 v{vB_}, v{vB_}, v{vC}")
    a(f"v_add_u32 v{vB_}, {W_BASE + 6144}, v{vB_}")
    a(f"v_and_b32 v{vA}, 1, v{vA}"); a(f"v_xor_b32 v{vA}, s{sODD}, v{vA}"); a(f"v_lshlrev_b32 v{vA}, 5, v{vA}")
    a(f"v_add_u32 v{vW2[0]}, v{vB_}, v{vA}"); a(f"v_xor_b32 v{vA}, 32, v{vA}"); a(f"v_add_u32 v{vW2[1]}, v{vB_}, v{vA}")
    a(f"s_lshl_b32 s{t0}, s{sODD}, 8"); a(f"v_add_u32 v{vW2[1]}, s{t0}, v{vW2[1]}")
    a(f"s_branch L_{name}_gmain")

    def gate_loads(vm):
        ops = [f"s_lshl_b32 s{t0}, s{sMI}, 8", f"s_lshl_b32 s{t1}, s{sNJ}, 3", f"s_add_u32 s{t0}, s{t0}, s{t1}", f"s_add_u32 s{t0}, s{t0}, s{sW}",
               f"s_lshl_b32 s{sTo}, s{t0}, 2", f"s_add_u32 s{sTo}, s{sTo}, {GATE_OFF}", f"s_lshl_b32 s{t0}, s{t0}, 11",
               f"s_mov_b32 s{ST}, s{pGATE}", f"s_mov_b32 s{ST+1}, s{pGATE+1}", f"s_mov_b32 s{ST+2}, 2048", f"s_mov_b32 s{ST+3}, {hex(SRD3)}"]
        ld = [f"buffer_load_dwordx4 v[{GV}:{GV+3}], v{vRLd}, s[{SX}:{SX+3}], s{t0} offen",
              f"buffer_load_dwordx4 v[{GV+4}:{GV+7}], v{vRLd}, s[{SX}:{SX+3}], s{t0} offen offset:1024",
              f"buffer_load_dwordx4 v[{GV+8}:{GV+11}], v{vRLd}, s[{ST}:{ST+3}], 0 offen",
              f"buffer_load_dwordx4 v[{GV+12}:{GV+15}], v{vRLd}, s[{ST}:{ST+3}], 0 offen offset:1024"]
        for q in range(4): vm.issue(("gate", q))
        return ops + ld
    def gate_compute():
        T = GV + 16
        o = [f"v_mov_b32 v{T+2}, 0", f"v_mov_b32 v{T+3}, 0"]
        for q in range(8):
            xr, gr = GV + q, GV + 8 + q
            o += [f"v_lshlrev_b32 v{T}, 16, v{xr}", f"v_and_b32 v{T+1}, 0xffff0000, v{xr}",
                  f"v_lshlrev_b32 v{T+4}, 16, v{gr}", f"v_and_b32 v{T+5}, 0xffff0000, v{gr}",
                  f"v_fma_f32 v{T+2}, v{T}, v{T+4}, v{T+2}", f"v_fma_f32 v{T+3}, v{T+1}, v{T+5}, v{T+3}"]
        o.append(f"v_add_f32 v{T}, v{T+2}, v{T+3}")
        for sh in (8, 4, 2, 1):
            o.append(f"v_add_f32_dpp v{T}, v{T}, v{T} row_ror:{sh} row_mask:0xf bank_mask:0xf")
        o += [f"v_mov_b32 v{T+1}, v{T}", f"v_permlane16_swap_b32 v{T}, v{T+1}", f"v_add_f32 v{T}, v{T}, v{T+1}",
              f"v_mov_b32 v{T+1}, v{T}", f"v_permlane32_swap_b32 v{T}, v{T+1}", f"v_add_f32 v{T}, v{T}, v{T+1}",
              f"v_mul_f32 v{T}, {f2h(-LOG2E)}, v{T}", f"v_exp_f32 v{T}, v{T}", f"v_add_f32 v{T}, 1.0, v{T}", f"v_rcp_f32 v{T}, v{T}",
              f"v_lshlrev_b32 v{T+1}, 2, v{vLane}", f"v_cmp_eq_u32 vcc, 0, v{vLane}", f"v_mov_b32 v{T+2}, {hex(OOB)}", f"v_cndmask_b32 v{T+1}, v{T+2}, v{T+1}, vcc"]
        return o, f"buffer_store_dword v{T}, v{T+1}, s[{SWS}:{SWS+3}], s{sTo} offen"

    def xreads(step):
        tile = step >> 1; kh = step & 1; slot = tile % NA
        base = XF + (step % 2)*16
        hi = 1 if slot == 2 else 0; off = 0 if slot == 2 else slot*A_SLOT
        return [f"ds_read_b128 v[{base+4*tb}:{base+4*tb+3}], v{vX[hi][kh]} offset:{off + tb*2048}" for tb in range(4)]
    def main_loop(role):
        att = role == "A"
        vm = vmA if att else vmG
        nb = 6 if att else 7
        ACC = ACC_A if att else ACC_G
        WSET = 4*nb
        def wreads(step):
            base = WF + (step % 2)*WSET; slot = step % NW; out = []
            for i in range(nb):
                for sec in range(2):
                    r = base + 4*i + 2*sec
                    if att: out.append(f"ds_read_b64_tr_b16 v[{r}:{r+1}], v{vW1[i & 1]} offset:{slot*W_SLOT + sec*768 + (i >> 1)*256}")
                    else:   out.append(f"ds_read_b64_tr_b16 v[{r}:{r+1}], v{vW2[i & 1]} offset:{slot*W_SLOT + sec*1024 + (i >> 1)*256}")
            return out
        def mfmas(step):
            xb = XF + (step % 2)*16; wb = WF + (step % 2)*WSET; out = []
            for i in range(nb):
                for tb in (range(4) if i % 2 == 0 else range(3, -1, -1)):
                    c = ACC + (i*4+tb)*4
                    w_, x_ = f"v[{wb+4*i}:{wb+4*i+3}]", f"v[{xb+4*tb}:{xb+4*tb+3}]"
                    if att and i >= 4: w_, x_ = x_, w_
                    out.append(f"v_mfma_f32_16x16x32_bf16 v[{c}:{c+3}], {w_}, {x_}, v[{c}:{c+3}]")
            return out
        for i in range(nb*16): a(f"v_mov_b32 v{ACC+i}, 0")
        if not att:
            for grp in dmaW(1):
                for l in grp: a(l)
        need = [("A", 0, e) for e in range(8)] if att else [("W", 0, j) for j in range(4)]
        a(f"s_waitcnt vmcnt({vm.need(need)}) lgkmcnt(0)")
        a("s_barrier")
        for l in xreads(0) + wreads(0): a(l)
        if att:
            att_second()
            a("s_waitcnt lgkmcnt(0)")
        else:
            for grp in dmaW(2):
                for l in grp: a(l)
            a(f"s_waitcnt vmcnt({max(vm.need([('W', 1, j) for j in range(4)]), 0)}) lgkmcnt(0)")
        a("s_barrier")
        P.stamp(1)
        if lprio == role: a("s_setprio 1")
        steps = []; pend_rl = []
        gcomp, gstore = gate_compute()
        GL, GS0, GS1 = 26, 28, 31
        L0 = 2
        for s in range(NS):
            m = mfmas(s); nm = len(m)
            rd = (xreads(s+1) + wreads(s+1)) if s + 1 < NS else []
            dm = []
            if s == GS0: gate_wait = vm.need([("gate", 3)])
            if att:
                t2_ = ((s + 1) >> 1) + 2; half = (s + 1) & 1
                if s == 0: dm += dmaA(2, 0)
                if t2_ < NS // 2: dm += dmaA(t2_, half)
                if s == 1: dm.append(wphi_ops())
                cold = []
                if burst and bmode == 4:
                    inloop = L0 <= s < L0 + 24
                    r = (s - L0) % 12
                    if touch and s == 0: cold += sum([touch_ops(vm, ("T", q)) for q in (2, 3, 4)], [])
                    if inloop and r % 4 == 0:
                        bidx = r // 4
                        if touch: cold += sum([touch_ops(vm, ("T", s, q)) for q in range(2)], [])
                        if relayout:
                            cur = []
                            for bi in range(2 if bidx == 0 else 1):
                                b = vRLb + 4*bi; tag = ("RL", s, bi); vm.issue(tag); cur.append((tag, b))
                                cold += [f"buffer_load_dwordx4 v[{b}:{b+3}], v{vRL}, s[{SRL}:{SRL+3}], s{sRLs} offen {rfl}", f"s_add_u32 s{sRLs}, s{sRLs}, 128"]
                            pend_rl.append(cur)
                    if relayout and inloop and r % 4 == 3:
                        prev = pend_rl.pop(0)
                        n = vm.need([prev[-1][0]])
                        cold.append(f"s_waitcnt vmcnt({n})")
                        for tag, b in prev:
                            vm.issue(("RS", tag))
                            cold += [f"buffer_store_dwordx4 v[{b}:{b+3}], v{vRLd}, s[{SWS}:{SWS+3}], s{sRLd} offen {st}", f"s_add_u32 s{sRLd}, s{sRLd}, {44*8192}"]
                elif burst:
                    if touch and s == 0: cold += sum([touch_ops(vm, ("T", q)) for q in (2, 3, 4)], [])
                    if touch and L0 <= s < L0 + 24 and (s - L0) % U == 1: cold += sum([touch_ops(vm, ("T", s, q)) for q in range(3)], [])
                    if relayout and L0 <= s < L0 + 24:
                        r6 = (s - L0) % U
                        if r6 == 1:
                            for bi in range(2):
                                b = vRLb + 4*bi
                                vm.issue(("RL", s, bi))
                                cold += [f"buffer_load_dwordx4 v[{b}:{b+3}], v{vRL}, s[{SRL}:{SRL+3}], s{sRLs} offen", f"s_add_u32 s{sRLs}, s{sRLs}, 128"]
                        if r6 == 5:
                            n = vm.need([("RL", s - 4, 1)])
                            cold.append(f"s_waitcnt vmcnt({n})")
                            for bi in range(2):
                                b = vRLb + 4*bi
                                vm.issue(("RS", s, bi))
                                cold += [f"buffer_store_dwordx4 v[{b}:{b+3}], v{vRLd}, s[{SWS}:{SWS+3}], s{sRLd} offen {st}", f"s_add_u32 s{sRLd}, s{sRLd}, {44*8192}"]
                    pass
                if burst:
                    if cold: dm.append(cold)
                else:
                    if touch and s < 2:
                        qs = list(range(2 + s*((PT-1)//2), min(PT, 2 + (s+1)*((PT-1)//2)) if s == 0 else PT))
                        if qs: dm.append(sum([touch_ops(vm, ("T", q)) for q in qs], []))
                    if touch and s % 2 == 0 and s < L0 + 24: dm.append(touch_ops(vm, ("T", s // 2 + PT)))
                    if relayout and L0 <= s < L0 + 24:
                        r6 = (s - L0) % 6
                        npc = 2 if rl_z1 else 1
                        bufs_ = lambda slot: [(vRLb + 4*slot) if (npc == 1) else (208 + 8*slot + 4*q) for q in range(npc)]
                        if r6 in (0, 2):
                            g_ = []
                            for b in bufs_(r6 // 2):
                                vm.issue(("RL", s, b))
                                g_ += [f"buffer_load_dwordx4 v[{b}:{b+3}], v{vRL}, s[{SRL}:{SRL+3}], s{sRLs} offen {rfl}", f"s_add_u32 s{sRLs}, s{sRLs}, 128"]
                            dm.append(g_)
                        if r6 in (4, 5):
                            src = s - 4 if r6 == 4 else s - 3
                            bs = bufs_(0 if r6 == 4 else 1)
                            n = vm.need([("RL", src, bs[-1])])
                            g_ = [f"s_waitcnt vmcnt({n})"]
                            for b in bs:
                                vm.issue(("RS", s, b))
                                g_ += [f"buffer_store_dwordx4 v[{b}:{b+3}], v{vRLd}, s[{SWS}:{SWS+3}], s{sRLd} offen {st}", f"s_add_u32 s{sRLd}, s{sRLd}, {44*8192}"]
                            dm.append(g_)
            else:
                if NW == 4 and s == 0: dm += dmaW(3)
                if s + NW < NS: dm += dmaW(s + NW)
            if att and wsp_tail and s == wsp_tail:
                vm.issue("wsp")
                if wsplit:
                    dm.append([f"s_mov_b32 s{SRL}, s{pWSP}", f"s_mov_b32 s{SRL+1}, s{pWSP+1}", f"s_mov_b32 s{SRL+2}, {2048*4096}", f"s_mov_b32 s{SRL+3}, {hex(SRD3)}",
                               f"s_lshl_b32 s{t0}, s2, 15", f"s_lshl_b32 s{t1}, s{sWQ}, 13", f"s_add_u32 s{t0}, s{t0}, s{t1}", f"s_add_u32 s{t0}, s{t0}, 2048",
                               f"v_lshrrev_b32 v{vRL}, 4, v{vLane}", f"v_lshlrev_b32 v{vRL}, 12, v{vRL}", f"v_and_b32 v{vDum}, 15, v{vLane}", f"v_lshlrev_b32 v{vDum}, 7, v{vDum}",
                               f"v_add_u32 v{vRL}, v{vRL}, v{vDum}", f"v_cmp_gt_u32 vcc, 32, v{vLane}", f"v_mov_b32 v{vDum}, {hex(OOB)}", f"v_cndmask_b32 v{vRL}, v{vDum}, v{vRL}, vcc",
                               f"buffer_load_dword v{vDum}, v{vRL}, s[{SRL}:{SRL+3}], s{t0} offen"])
                else:
                    dm.append([f"s_mov_b32 s{SRL}, s{pWSP}", f"s_mov_b32 s{SRL+1}, s{pWSP+1}", f"s_mov_b32 s{SRL+2}, {2048*4096}", f"s_mov_b32 s{SRL+3}, {hex(SRD3)}",
                               ] + (
                               [f"s_and_b32 s{t0}, s2, 7", f"s_lshr_b32 s{t2}, s{t0}, 1", f"s_lshl_b32 s{t2}, s{t2}, 21", f"s_lshr_b32 s{t3}, s2, 3"] +
                               ([f"s_and_b32 s{t0}, s{t0}, 1", f"s_lshl_b32 s{t0}, s{t0}, 5", f"s_add_u32 s{t3}, s{t3}, s{t0}", f"s_lshl_b32 s{t3}, s{t3}, 15", f"s_lshl_b32 s{t1}, s{sWQ}, 13"] if wsp_aff == 1 else
                                [f"s_lshl_b32 s{t3}, s{t3}, 16", f"s_lshl_b32 s{t1}, s{sWQ}, 14"]) +
                               [f"s_add_u32 s{t0}, s{t2}, s{t3}", f"s_add_u32 s{t0}, s{t0}, s{t1}"]
                               if wsp_aff else
                               [f"s_lshl_b32 s{t0}, s2, 15", f"s_lshl_b32 s{t1}, s{sWQ}, 13", f"s_add_u32 s{t0}, s{t0}, s{t1}"]) + [
                               f"v_lshlrev_b32 v{vRL}, 7, v{vLane}", f"buffer_load_dword v{vDum}, v{vRL}, s[{SRL}:{SRL+3}], s{t0} offen"] +
                               ([f"s_add_u32 s{t0}, s{t0}, 8192", f"buffer_load_dword v{vDum}, v{vRL}, s[{SRL}:{SRL+3}], s{t0} offen"] if wsp_aff == 2 else []))
                    if wsp_aff == 2: vm.issue("wsp2")
            if s == GL: dm.append(gate_loads(vm))
            slots = [[] for _ in range(nm)]
            for k, x in enumerate(rd): slots[min(nm-1, (k*(nm-5))//len(rd))].append(x)
            last_pos = -9
            for k, g in enumerate(dm):
                if dpos == "late" and 2*len(dm) + 2 <= nm: pos = nm - 2*len(dm) + 2*k
                elif dpos == "mid" and 3*len(dm) + 2 <= nm: pos = nm - 3*len(dm) + 3*k
                else: pos = min(nm-1, 1 + (k*(nm-3))//max(len(dm), 1))
                assert pos - last_pos >= 2, (role, s, k, len(dm)); last_pos = pos
                if g[0].startswith("s_add_u32 m0") or g[0].startswith("s_mul_i32"):
                    n0 = 2 if g[0].startswith("s_mul_i32") else 1
                    slots[pos-1].extend(g[:n0]); slots[pos] = g[n0:] + slots[pos]
                else: slots[pos].extend(g)
            if GS0 <= s < GS1:
                per = -(-len(gcomp)//(GS1 - GS0)); part = gcomp[(s-GS0)*per:(s-GS0+1)*per]
                if s == GS0: slots[0].append(f"s_waitcnt vmcnt({gate_wait})")
                for k, x in enumerate(part): slots[min(nm-1, 1 + (k*(nm-2))//len(part))].append(x)
            if not att and s == 29: assert vm.need([("W", 31, 3)]) == 0
            if not att and s == 30:
                slots[0] += [f"s_cmp_eq_u32 s{sWQ}, 0", f"s_cselect_b32 s{t0}, s{sNJ}, 0", f"s_cmp_ge_u32 s{t0}, 16", f"s_cbranch_scc0 L_{name}_noc1",
                             f"s_mov_b32 s{ST}, s{pDBG}", f"s_mov_b32 s{ST+1}, s{pDBG+1}", f"s_mov_b32 s{ST+2}, 256", f"s_mov_b32 s{ST+3}, {hex(SRD3)}",
                             f"s_lshl_b32 s{t1}, s{sMI}, 5", f"v_mov_b32 v{vA}, 0", f"v_mov_b32 v{vB_}, 1",
                             f"s_mov_b64 s[{t2}:{t3}], exec", "s_mov_b64 exec, 1",
                             f"buffer_atomic_add v{vB_}, v{vA}, s[{ST}:{ST+3}], s{t1} offen sc1",
                             f"s_mov_b64 exec, s[{t2}:{t3}]", f"L_{name}_noc1:"]
            if s == GS1:
                vm.issue("gst"); slots[2].append(gstore)
            seq = []
            for k in range(nm):
                seq.append(m[k]); seq += slots[k]
            need = []
            if s + 2 < NS:
                if att: need = [("A", (s+2) >> 1, e) for e in range(8)]
                else: need = [("W", s+2, j) for j in range(4)]
            if s + 1 < NS:
                w = f"s_waitcnt lgkmcnt(0)" if not need else f"s_waitcnt vmcnt({vm.need(need)}) lgkmcnt(0)"
                seq.append(w); seq.append("s_barrier")
            steps.append(seq)
        n_iter = 24 // U
        for s in range(L0):
            for l in steps[s]: a(l)
        fold_loop(a, steps, L0, n_iter, U, f"L_{name}_loop{role}", sIT)
        for s in range(L0 + n_iter*U, NS):
            for l in steps[s]: a(l)
    a.label(f"L_{name}_amain")
    main_loop("A")
    if lprio == "A": a("s_setprio 0")
    P.stamp(2)
    epilogue_att(a, locals())
    a(f"s_branch L_{name}_fin")
    a.label(f"L_{name}_gmain")
    main_loop("G")
    if lprio == "G": a("s_setprio 0")
    P.stamp(2)
    epilogue_gmlp(a, locals())
    a.label(f"L_{name}_fin")
    if prof: a("s_waitcnt vmcnt(0)")
    P.stamp(5)
    P.dump(vLane, sW)
    if wsp_epi:
        srd(a, ST, pWSP, 0, 2048*4096)
        a(f"s_lshl_b32 s{t0}, s{sMI}, 4"); a(f"s_add_u32 s{t0}, s{t0}, s{sNJ}"); a(f"s_lshl_b32 s{t0}, s{t0}, 16")
        a(f"s_lshl_b32 s{t1}, s{sW}, 13"); a(f"s_add_u32 s{t0}, s{t0}, s{t1}")
        a(f"s_cmp_lt_u32 s{sNJ}, 16"); a(f"s_cselect_b32 s{t0}, s{t0}, {hex(OOB)}")
        a(f"v_lshlrev_b32 v{vA}, 7, v{vLane}")
        a(f"buffer_load_dword v{vDum}, v{vA}, s[{ST}:{ST+3}], s{t0} offen")
    a.label(f"L_{name}_end")
    a("s_endpgm")
    return kernel_text(name, a, nv=256, ns=102, ao=256), S1_LDS

from s1_epi import epilogue_att, epilogue_gmlp
```
